```python
import torch

def _softmax(x, axis=-1):
    return torch.softmax(x, dim=axis)
def _gelu(x):
    return torch.nn.functional.gelu(x, approximate="tanh")
def _silu(x):
    return torch.nn.functional.silu(x)
def _sigmoid(x):
    return torch.sigmoid(x)
def _layernorm(x, axis=-1, eps=1e-5):
    m = x.mean(dim=axis, keepdim=True)
    v = x.var(dim=axis, keepdim=True, unbiased=False)
    return (x - m) / torch.sqrt(v + eps)
def _scatter_add(tgt, idx, src, axis=0):
    return tgt.clone().index_add_(axis, idx, src)
def _segment_sum(src, seg, n):
    out = torch.zeros((n,) + src.shape[1:], dtype=src.dtype)
    return out.index_add_(0, seg, src)
def _pad(x, pw):
    flat = tuple(v for pair in reversed(pw) for v in pair)
    return torch.nn.functional.pad(x, flat)

kernel_name = 'standalone__molecular_angular_gemnet__graph'

def setup_inputs():

    _w = (lambda a: (lambda t: t.to(torch.bfloat16) if t.is_floating_point() else t)(torch.as_tensor(a)))
    N, deg, De, L = 25000, 16, 16, 1
    E = N * deg
    T = E * deg
    NR = 8
    dist = torch.rand(E).to(float)
    angle = (torch.rand(T) * torch.pi).to(float)
    centers = torch.linspace(0.0, 1.0, NR).to(float)
    ang_freq = torch.arange(1, L + 1).to(float)
    return {
        "m": _w((lambda *s: torch.randn(*s, dtype=torch.bfloat16) * 0.05)(E, De)),
        "idx_in": _w((lambda lo, hi, *s: torch.randint(lo, hi, s))(0, E, T).to(torch.int64)),
        "idx_out": _w((lambda lo, hi, *s: torch.randint(lo, hi, s))(0, E, T).to(torch.int64)),
        "dist": _w(dist),
        "angle": _w(angle),
        "centers": _w(centers),
        "ang_freq": _w(ang_freq),
        "w_rbf": _w((lambda *s: torch.randn(*s, dtype=torch.bfloat16) * 0.2)(NR, De)),
        "w_sbf": _w((lambda *s: torch.randn(*s, dtype=torch.bfloat16) * 0.2)(NR * L, De)),
        "w_down": _w((lambda *s: torch.randn(*s, dtype=torch.bfloat16) * 0.2)(De, De)),
        "w_up": _w((lambda *s: torch.randn(*s, dtype=torch.bfloat16) * 0.2)(De, De)),
    }

def reference(m, idx_in, idx_out, dist, angle, centers, ang_freq, w_rbf, w_sbf, w_down, w_up):
    E, De = m.shape[0], m.shape[1]
    NR = centers.shape[0]
    L = ang_freq.shape[0]
    rbf = torch.exp(-10.0 * (dist[:, None] - centers[None, :]) ** 2)
    cbf = torch.cos(ang_freq[None, :] * angle[:, None])
    rbf_t = rbf[idx_out]
    sbf = torch.reshape(rbf_t[:, :, None] * cbf[:, None, :], (-1, NR * L))
    x = (m[idx_in] @ w_down) * (sbf @ w_sbf)
    agg = _segment_sum(x, idx_out, E)
    return m + (agg @ w_up) * (rbf @ w_rbf)
```

```python
import sys, os
DBG = os.environ.get("DBG", "")

KA = "standalone__molecular_angular_gemnet__graph_part_kernel"
KB = "standalone__molecular_angular_gemnet__graph_kernel"

E = 400000
T = 6400000
NCH = 250
CH = 25600
NB = 250
BINE = 1600
KS = 8

WS_RECA = 0
WS_RECC = T * 4
WS_TT = T * 6
WS_STATS = WS_TT + NCH * 1024

A_HIST = 0
A_C = 8192
A_A = A_C + CH * 2
A_SCR = A_A + CH * 4
A_LDS = A_SCR + 128

ROWB = 68
B_DUMMY = BINE * ROWB
B_FLAG = B_DUMMY + 768
B_LDS = 114688

out = []
def e(s=""):
    out.append(s)
def lab(s):
    out.append(s + ":")

DPP = "row_mask:0xf bank_mask:0xf"

def srd(reg, lo, hi, size, stride=0):
    e(f"  s_mov_b32 s{reg}, s{lo}")
    e(f"  s_and_b32 s{reg+1}, s{hi}, 0xffff")
    if stride:
        e(f"  s_or_b32 s{reg+1}, s{reg+1}, {stride << 16:#x}")
    e(f"  s_mov_b32 s{reg+2}, {size}")
    e(f"  s_mov_b32 s{reg+3}, 0x20000")

def srd_off(reg, lo, hi, off_sreg, size, const=0, stride=0):
    e(f"  s_add_u32 s{reg}, s{lo}, s{off_sreg}")
    e(f"  s_addc_u32 s{reg+1}, s{hi}, 0")
    if const:
        e(f"  s_add_u32 s{reg}, s{reg}, {const}")
        e(f"  s_addc_u32 s{reg+1}, s{reg+1}, 0")
    e(f"  s_and_b32 s{reg+1}, s{reg+1}, 0xffff")
    if stride:
        e(f"  s_or_b32 s{reg+1}, s{reg+1}, {stride << 16:#x}")
    e(f"  s_mov_b32 s{reg+2}, {size}")
    e(f"  s_mov_b32 s{reg+3}, 0x20000")

def wave_scan_add(v):
    for sh in (1, 2, 4, 8):
        e("  s_nop 1")
        e(f"  v_add_u32_dpp v{v}, v{v}, v{v} row_shr:{sh} {DPP}")
    e("  s_nop 1")
    e(f"  v_add_u32_dpp v{v}, v{v}, v{v} row_bcast:15 row_mask:0xa bank_mask:0xf")
    e("  s_nop 1")
    e(f"  v_add_u32_dpp v{v}, v{v}, v{v} row_bcast:31 row_mask:0xc bank_mask:0xf")

def wave_max(vs):
    steps = [f"row_shr:{sh} {DPP}" for sh in (1, 2, 4, 8)] + \
            ["row_bcast:15 row_mask:0xa bank_mask:0xf", "row_bcast:31 row_mask:0xc bank_mask:0xf"]
    for st in steps:
        e("  s_nop 1")
        for v in vs:
            e(f"  v_max_u32_dpp v{v}, v{v}, v{v} {st}")

def kernel_a():
    I0, O0, AN0, RK0, TB0 = 8, 34, 60, 74, 100
    vOne, vF = 2, 3
    t0, t1, t2, t3, t4, t5 = 116, 117, 118, 119, 120, 121
    e(f".globl {KA}")
    e(".p2align 8")
    e(f".type {KA},@function")
    lab(KA)
    e(f"  s_cmp_ge_u32 s2, {NCH}")
    e("  s_cbranch_scc1 LA_end")
    e("  s_load_dwordx4 s[4:7], s[0:1], 0")
    e("  s_load_dwordx2 s[8:9], s[0:1], 16      ; idx_out")
    e("  s_load_dwordx2 s[10:11], s[0:1], 32    ; angle")
    e("  s_load_dwordx2 s[12:13], s[0:1], 48    ; ang_freq")
    e("  s_load_dwordx2 s[14:15], s[0:1], 104   ; ws")
    e("  v_lshrrev_b32 v1, 6, v0")
    e("  v_lshlrev_b32 v4, 4, v0                ; t*16")
    e("  v_readfirstlane_b32 s50, v1")
    e("  v_lshlrev_b32 v5, 3, v0                ; t*8")
    e("  v_lshlrev_b32 v6, 2, v0                ; t*4")
    e("  v_lshlrev_b32 v7, 1, v0                ; t*2")
    e(f"  v_mov_b32 v{vOne}, 1")
    e(f"  v_mov_b32 v{t0}, 0")
    e(f"  v_mov_b32 v{t1}, 0")
    e(f"  s_mul_i32 s48, s2, {CH*4}")
    e(f"  s_mul_i32 s49, s2, {CH*2}")
    e("  s_lshl_b32 s51, s2, 10")
    e("  s_lshl_b32 s52, s2, 3")
    e("  s_waitcnt lgkmcnt(0)")
    srd_off(16, 6, 7, 48, CH * 4)
    srd_off(20, 8, 9, 48, CH * 4)
    srd_off(24, 10, 11, 49, CH * 2)
    e(f"  global_load_ushort v{vF}, v{t0}, s[12:13]")
    for u in range(6):
        e(f"  s_mov_b32 s53, {u*16384}")
        e(f"  s_mov_b32 s54, {u*8192}")
        e(f"  buffer_load_dwordx4 v[{I0+4*u}:{I0+4*u+3}], v4, s[16:19], s53 offen")
        e(f"  buffer_load_dwordx4 v[{O0+4*u}:{O0+4*u+3}], v4, s[20:23], s53 offen")
        e(f"  buffer_load_dwordx2 v[{AN0+2*u}:{AN0+2*u+1}], v5, s[24:27], s54 offen")
    e(f"  s_mov_b32 s53, {6*16384}")
    e(f"  s_mov_b32 s54, {6*8192}")
    e(f"  buffer_load_dword v{I0+24}, v6, s[16:19], s53 offen")
    e(f"  buffer_load_dword v{O0+24}, v6, s[20:23], s53 offen")
    e(f"  buffer_load_ushort v{AN0+12}, v7, s[24:27], s54 offen")
    srd_off(28, 4, 5, 49, 51200)
    srd_off(32, 14, 15, 48, CH * 4, WS_RECA)
    srd_off(36, 14, 15, 49, CH * 2, WS_RECC)
    srd_off(40, 14, 15, 51, 1024, WS_TT)
    srd_off(44, 14, 15, 52, 8, WS_STATS)
    e(f"  ds_write_b64 v5, v[{t0}:{t1}] offset:{A_HIST}")
    e(f"  v_and_b32 v{t2}, 15, v0")
    e(f"  v_lshlrev_b32 v{t2}, 3, v{t2}")
    e(f"  v_add_u32 v{t2}, {A_SCR}, v{t2}")
    e(f"  ds_write_b64 v{t2}, v[{t0}:{t1}]")
    e(f"  s_mov_b32 s55, {(2**32 + BINE - 1)//BINE}      ; o/1600 magic")
    e(f"  s_mov_b32 s56, {(2**32 * KS)//E - 1}")
    e(f"  s_mov_b32 s57, {-BINE}")
    e("  s_waitcnt lgkmcnt(0)")
    e("  s_barrier")

    def rec(r):
        I, O, R = I0 + r, O0 + r, RK0 + r
        e(f"  v_mul_hi_u32_u24 v{t0}, s55, v{O}           ; bin")
        e(f"  v_mul_hi_u32_u24 v{t1}, s56, v{I}           ; i range")
        e(f"  v_mad_i32_i24 v{t2}, v{t0}, s57, v{O}       ; o local")
        e(f"  v_lshlrev_b32 v{t1}, 2, v{t1}")
        e(f"  v_lshl_add_u32 v{O}, v{t0}, 5, v{t1}        ; key*4")
        e(f"  v_lshl_or_b32 v{I}, v{t2}, 19, v{I}")
        e(f"  ds_add_rtn_u32 v{R}, v{O}, v{vOne} offset:{A_HIST}")

    def cospair(a):
        x, y = t3, t4
        e(f"  v_lshlrev_b32 v{x}, 16, v{a}")
        e(f"  v_and_b32 v{y}, 0xffff0000, v{a}")
        e(f"  v_mul_f32 v{x}, v{vF}, v{x}")
        e(f"  v_mul_f32 v{y}, v{vF}, v{y}")
        e(f"  v_cvt_pk_bf16_f32 v{t5}, v{x}, v{y}")
        e(f"  v_lshlrev_b32 v{x}, 16, v{t5}")
        e(f"  v_and_b32 v{y}, 0xffff0000, v{t5}")
        e(f"  v_mul_f32 v{x}, 0.15915494, v{x}")
        e(f"  v_mul_f32 v{y}, 0.15915494, v{y}")
        e(f"  v_fract_f32 v{x}, v{x}")
        e(f"  v_fract_f32 v{y}, v{y}")
        e(f"  v_cos_f32 v{x}, v{x}")
        e(f"  v_cos_f32 v{y}, v{y}")
        e("  s_nop 0")
        e(f"  v_cvt_pk_bf16_f32 v{a}, v{x}, v{y}")

    for u in range(6):
        e(f"  s_waitcnt vmcnt({18-3*u})")
        if u == 0:
            e(f"  v_lshlrev_b32 v{vF}, 16, v{vF}")
        for r in range(4):
            rec(4 * u + r)
        cospair(AN0 + 2 * u)
        cospair(AN0 + 2 * u + 1)
    e("  s_waitcnt vmcnt(0)")
    rec(24)
    cospair(AN0 + 12)
    for u in range(4):
        e(f"  s_mov_b32 s53, {u*16384}")
        e(f"  buffer_load_dwordx4 v[{TB0+4*u}:{TB0+4*u+3}], v4, s[28:31], s53 offen")
    e("  s_waitcnt lgkmcnt(0)")
    e("  s_barrier")
    e(f"  ds_read_b64 v[{t0}:{t1}], v5 offset:{A_HIST}")
    e("  s_waitcnt lgkmcnt(0)")
    e(f"  v_add_u32 v{t2}, v{t0}, v{t1}")
    e(f"  v_mov_b32 v{t3}, v{t2}")
    wave_scan_add(t3)
    e(f"  s_lshl_b32 s58, s50, 2")
    e(f"  s_add_u32 s58, s58, {A_SCR}")
    e(f"  v_mov_b32 v{t4}, s58")
    e("  s_mov_b32 exec_lo, 0")
    e("  s_mov_b32 exec_hi, 0x80000000")
    e(f"  ds_write_b32 v{t4}, v{t3}")
    e("  s_mov_b64 exec, -1")
    e("  s_waitcnt lgkmcnt(0)")
    e("  s_barrier")
    e(f"  v_and_b32 v{t4}, 15, v0")
    e(f"  v_lshlrev_b32 v{t4}, 2, v{t4}")
    e(f"  v_add_u32 v{t4}, {A_SCR}, v{t4}")
    e(f"  ds_read_b32 v{t4}, v{t4}")
    e("  s_waitcnt lgkmcnt(0)")
    e(f"  v_mov_b32 v{t5}, v{t4}")
    for sh in (1, 2, 4, 8):
        e("  s_nop 1")
        e(f"  v_add_u32_dpp v{t5}, v{t5}, v{t5} row_shr:{sh} {DPP}")
    e(f"  v_sub_u32 v{t5}, v{t5}, v{t4}")
    e("  s_nop 0")
    e(f"  v_readlane_b32 s58, v{t5}, s50")
    e(f"  v_sub_u32 v{t3}, v{t3}, v{t2}")
    e("  s_nop 0")
    e(f"  v_add_u32 v{t2}, s58, v{t3}         ; start0")
    e(f"  v_add_u32 v{t3}, v{t2}, v{t0}       ; start1")
    e(f"  ds_write_b64 v5, v[{t2}:{t3}] offset:{A_HIST}")
    e(f"  v_and_b32 v{t4}, 3, v0")
    e(f"  v_cmp_eq_u32 vcc, 0, v{t4}")
    e("  s_and_saveexec_b64 s[60:61], vcc")
    e(f"  buffer_store_dword v{t2}, v0, s[40:43], 0 offen")
    e("  s_mov_b64 exec, s[60:61]")
    e("  s_waitcnt lgkmcnt(0)")
    e("  s_barrier")
    groups = [range(0, 9), range(9, 17), range(17, 25)]
    for g in groups:
        for r in g:
            e(f"  ds_read_b32 v{O0+r}, v{O0+r} offset:{A_HIST}")
        e("  s_waitcnt lgkmcnt(0)")
        for r in g:
            e(f"  v_add_u32 v{O0+r}, v{O0+r}, v{RK0+r}")
            e(f"  v_lshlrev_b32 v{RK0+r}, 2, v{O0+r}")
            e(f"  v_lshlrev_b32 v{O0+r}, 1, v{O0+r}")
            e(f"  ds_write_b32 v{RK0+r}, v{I0+r} offset:{A_A}")
            op = "ds_write_b16" if r % 2 == 0 else "ds_write_b16_d16_hi"
            e(f"  {op} v{O0+r}, v{AN0+r//2} offset:{A_C}")
    gM, gR = 122, 123
    e(f"  v_mov_b32 v{gM}, 0")
    e(f"  v_mov_b32 v{gR}, 0")
    e("  s_mov_b32 s58, 0x7fff7fff")
    e("  s_waitcnt vmcnt(0)")
    for u in range(4):
        b = TB0 + 4 * u
        for k in range(4):
            e(f"  v_and_b32 v{b+k}, s58, v{b+k}")
        e(f"  v_pk_max_u16 v{b}, v{b}, v{b+1}")
        e(f"  v_pk_max_u16 v{b+2}, v{b+2}, v{b+3}")
        e(f"  v_pk_max_u16 v{b}, v{b}, v{b+2}")
        e(f"  v_lshrrev_b32 v{b+1}, 16, v{b}")
        e(f"  v_and_b32 v{b}, 0xffff, v{b}")
        e(f"  v_max_u32 v{b}, v{b}, v{b+1}")
        e("  s_nop 1")
        e(f"  v_max_u32_dpp v{b}, v{b}, v{b} quad_perm:[1,0,3,2] {DPP}")
        e(f"  v_max_u32 v{gM}, v{gM}, v{b}")
        e(f"  v_sub_u32 v{b}, 0x8000, v{b}")
        e(f"  v_and_b32 v{b}, 0x7fff, v{b}")
        e(f"  v_max_u32 v{gR}, v{gR}, v{b}")
    wave_max([gM, gR])
    e(f"  v_mov_b32 v{t4}, {A_SCR + 64}")
    e("  s_mov_b32 exec_lo, 0")
    e("  s_mov_b32 exec_hi, 0x80000000")
    e(f"  ds_max_u32 v{t4}, v{gM}")
    e(f"  ds_max_u32 v{t4}, v{gR} offset:4")
    e("  s_mov_b64 exec, -1")
    e("  s_waitcnt lgkmcnt(0)")
    e("  s_barrier")
    d = 8
    for u in range(6):
        e(f"  v_add_u32 v{t0}, {u*16384}, v4")
        e(f"  ds_read_b128 v[{d+4*u}:{d+4*u+3}], v{t0} offset:{A_A}")
    for u in range(3):
        e(f"  v_add_u32 v{t0}, {u*16384}, v4")
        e(f"  ds_read_b128 v[{d+24+4*u}:{d+24+4*u+3}], v{t0} offset:{A_C}")
    e(f"  v_mov_b32 v{t4}, {A_SCR + 64}")
    e(f"  ds_read_b64 v[{t2}:{t3}], v{t4}")
    for u in range(6):
        e(f"  s_mov_b32 s53, {u*16384}")
        e(f"  s_waitcnt lgkmcnt({9-u})")
        e(f"  buffer_store_dwordx4 v[{d+4*u}:{d+4*u+3}], v4, s[32:35], s53 offen")
    for u in range(3):
        e(f"  s_mov_b32 s53, {u*16384}")
        e(f"  s_waitcnt lgkmcnt({3-u})")
        e(f"  buffer_store_dwordx4 v[{d+24+4*u}:{d+24+4*u+3}], v4, s[36:39], s53 offen")
    e("  s_cmp_lt_u32 s50, 4")
    e("  s_cbranch_scc0 LA_t1")
    e(f"  v_add_u32 v{t0}, {6*16384}, v4")
    e(f"  ds_read_b128 v[60:63], v{t0} offset:{A_A}")
    e(f"  s_mov_b32 s53, {6*16384}")
    e("  s_waitcnt lgkmcnt(0)")
    e("  buffer_store_dwordx4 v[60:63], v4, s[32:35], s53 offen")
    lab("LA_t1")
    e("  s_cmp_lt_u32 s50, 2")
    e("  s_cbranch_scc0 LA_t2")
    e(f"  v_add_u32 v{t0}, {3*16384}, v4")
    e(f"  ds_read_b128 v[64:67], v{t0} offset:{A_C}")
    e(f"  s_mov_b32 s53, {3*16384}")
    e("  s_waitcnt lgkmcnt(0)")
    e("  buffer_store_dwordx4 v[64:67], v4, s[36:39], s53 offen")
    lab("LA_t2")
    e("  s_cmp_eq_u32 s50, 15")
    e("  s_cbranch_scc0 LA_end")
    e("  s_waitcnt lgkmcnt(0)")
    e(f"  v_mov_b32 v{t0}, 0")
    e("  s_mov_b32 exec_lo, 1")
    e("  s_mov_b32 exec_hi, 0")
    e(f"  buffer_store_dwordx2 v[{t2}:{t3}], v{t0}, s[44:47], 0 offen")
    lab("LA_end")
    e("  s_endpgm")

def kernel_b():
    vC128, vIA, vIB, vDum, vOne = 1, 2, 4, 6, 7
    G0 = 8
    OA, CH_, RA, RC, BS, LN, AC, CU = 40, 44, 48, 52, 56, 60, 64, 68
    P0 = 72
    t0, t1, t2, t3, t4, t5, t6, t7 = range(88, 96)
    MR, RBF = 96, 110
    vL16, vH32 = 117, 126
    WD, WU, WS, WR = 118, 120, 122, 124
    vZ = 127
    sW, sJ, sNP, sMag, sSc, sInv, sMode, sMin = 50, 51, 52, 53, 54, 55, 56, 57
    sV = [58, 60, 62, 64]
    sOv = 66
    e(f".globl {KB}")
    e(".p2align 8")
    e(f".type {KB},@function")
    lab(KB)
    e(f"  s_cmp_ge_u32 s2, {NB}")
    e("  s_cbranch_scc1 LB_end")
    e("  s_load_dwordx2 s[68:69], s[0:1], 0      ; m")
    e("  s_load_dwordx2 s[70:71], s[0:1], 24     ; dist")
    e("  s_load_dwordx2 s[40:41], s[0:1], 40     ; centers")
    e("  s_load_dwordx4 s[44:47], s[0:1], 56")
    e("  s_load_dwordx4 s[72:75], s[0:1], 72")
    e("  s_load_dwordx2 s[76:77], s[0:1], 88     ; out")
    e("  s_load_dwordx2 s[78:79], s[0:1], 104    ; ws")
    e("  v_lshrrev_b32 v8, 6, v0")
    e(f"  v_and_b32 v{vL16}, 15, v0")
    e(f"  v_readfirstlane_b32 s{sW}, v8")
    e(f"  v_and_b32 v9, 1, v0")
    e(f"  v_lshlrev_b32 v{vH32}, 5, v9")
    e(f"  v_lshlrev_b32 v{vIA+1}, 4, v9")
    e(f"  v_lshlrev_b32 v{vIB+1}, 4, v9")
    e(f"  v_and_b32 v9, 63, v0")
    e(f"  v_lshlrev_b32 v9, 2, v9")
    e(f"  v_add_u32 v{vDum}, {B_DUMMY}, v9")
    e(f"  v_mov_b32 v{vOne}, 1")
    e(f"  v_mov_b32 v{vC128}, 0x80")
    e(f"  v_mov_b32 v{vZ}, 0")
    e(f"  s_mul_i32 s80, s2, {BINE*32}")
    e(f"  s_mul_i32 s81, s2, {BINE*2}")
    e(f"  s_mov_b32 s{sMode}, 0")
    e("  s_waitcnt lgkmcnt(0)")
    e(f"  s_add_u32 s82, s78, {WS_RECA}")
    e("  s_addc_u32 s83, s79, 0")
    srd(4, 82, 83, T, 4)
    e(f"  s_add_u32 s82, s78, {WS_RECC}")
    e("  s_addc_u32 s83, s79, 0")
    srd(8, 82, 83, T, 2)
    srd(12, 68, 69, E, 32)
    e(f"  s_add_u32 s82, s78, {WS_TT}")
    e("  s_addc_u32 s83, s79, 0")
    srd(16, 82, 83, NCH * 1024)
    e(f"  s_add_u32 s82, s78, {WS_STATS}")
    e("  s_addc_u32 s83, s79, 0")
    srd(20, 82, 83, NCH * 8)
    srd_off(24, 68, 69, 80, BINE * 32)
    srd_off(28, 76, 77, 80, BINE * 32)
    srd_off(32, 70, 71, 81, BINE * 2)
    lab("LB_start")
    g, n = t0, vL16
    e(f"  v_and_b32 v{t1}, 63, v0")
    e(f"  v_lshrrev_b32 v{g}, 4, v{t1}            ; g = lane>>4")
    e(f"  s_lshl_b32 s80, s{sW}, 4")
    e(f"  v_add_u32 v{t1}, s80, v{g}              ; 16w+g")
    e(f"  s_lshl_b32 s81, s2, 2")
    e(f"  v_lshlrev_b32 v{t2}, 10, v{t1}")
    e(f"  v_add_u32 v{t2}, s81, v{t2}")
    for s in range(4):
        e(f"  v_add_u32 v{t3}, {s*4096}, v{t2}")
        e(f"  buffer_load_dwordx2 v[{G0+2*s}:{G0+2*s+1}], v{t3}, s[16:19], 0 offen")
    e(f"  v_and_b32 v{t3}, 63, v0")
    e(f"  v_lshlrev_b32 v{t3}, 3, v{t3}")
    for s in range(4):
        e(f"  buffer_load_dwordx2 v[{G0+8+2*s}:{G0+8+2*s+1}], v{t3}, s[20:23], 0 offen offset:{s*512}")
    e(f"  v_lshlrev_b32 v{t3}, 7, v{g}")
    e(f"  v_lshl_add_u32 v{t3}, v{n}, 1, v{t3}     ; (4g*16 + n)*2")
    WT = G0 + 19
    for q, sp in enumerate((72, 74)):
        for k in range(4):
            e(f"  global_load_ushort v{WT+4*q+k}, v{t3}, s[{sp}:{sp+1}] offset:{32*k}")
    e(f"  v_lshlrev_b32 v{t4}, 6, v{g}")
    e(f"  v_lshl_add_u32 v{t4}, v{n}, 1, v{t4}     ; (2g*16 + n)*2")
    for q, sp in enumerate((44, 46)):
        for k in range(2):
            e(f"  global_load_ushort v{WT+8+2*q+k}, v{t4}, s[{sp}:{sp+1}] offset:{32*k}")
    e(f"  v_lshlrev_b32 v{t5}, 2, v{g}")
    e(f"  global_load_dword v{G0+16}, v{t5}, s[40:41]")
    e(f"  s_lshl_b32 s80, s{sW}, 9")
    e(f"  v_lshlrev_b32 v{t6}, 5, v{n}")
    e(f"  v_lshl_add_u32 v{t6}, v{g}, 3, v{t6}")
    e(f"  v_add_u32 v{t6}, s80, v{t6}              ; w*512 + n*32 + g*8")
    for u in range(7):
        e(f"  s_mov_b32 s81, {u*8192}")
        e(f"  buffer_load_dwordx2 v[{MR+2*u}:{MR+2*u+1}], v{t6}, s[24:27], s81 offen")
    e(f"  s_lshl_b32 s80, s{sW}, 5")
    e(f"  v_lshl_add_u32 v{t7}, v{n}, 1, s80")
    for u in range(7):
        e(f"  buffer_load_ushort v{RBF+u}, v{t7}, s[32:35], 0 offen offset:{u*512}")
    for k in range(4):
        e(f"  v_mov_b32 v{P0+k}, 0")
    e(f"  v_lshlrev_b32 v{t3}, 4, v0")
    for u in range(7):
        if u < 4:
            e(f"  ds_write_b128 v{t3}, v[{P0}:{P0+3}] offset:{u*16384}")
        else:
            if u == 4:
                e(f"  v_add_u32 v{t3}, 0x10000, v{t3}")
            e(f"  ds_write_b128 v{t3}, v[{P0}:{P0+3}] offset:{(u-4)*16384}")
    e("  s_waitcnt vmcnt(31)")
    e(f"  s_mov_b32 s80, {CH}")
    for s in range(4):
        e(f"  v_add_u32 v{t3}, {4*s}, v{t1}")
        e(f"  v_mul_lo_u32 v{t3}, s80, v{t3}")
        e(f"  v_add_u32 v{BS+s}, v{t3}, v{G0+2*s}")
        e(f"  v_sub_u32 v{LN+s}, v{G0+2*s+1}, v{G0+2*s}")
        e(f"  v_mov_b32 v{AC+s}, 0")
        e(f"  v_mov_b32 v{CU+s}, 0")
    e(f"  v_max_u32 v{t3}, v{LN}, v{LN+1}")
    e(f"  v_max3_u32 v{t3}, v{t3}, v{LN+2}, v{LN+3}")
    e("  s_nop 0")
    e(f"  v_readlane_b32 s80, v{t3}, 0")
    e(f"  v_readlane_b32 s81, v{t3}, 16")
    e(f"  v_readlane_b32 s82, v{t3}, 32")
    e(f"  v_readlane_b32 s83, v{t3}, 48")
    e("  s_max_u32 s80, s80, s81")
    e("  s_max_u32 s82, s82, s83")
    e("  s_max_u32 s80, s80, s82")
    e("  s_max_u32 s80, s80, 0x80")
    e("  s_sub_u32 s80, s80, 0x71            ; maxlen - 128 + 15")
    e("  s_lshr_b32 s80, s80, 4")
    e(f"  s_add_u32 s{sNP}, s80, 8")
    e(f"  s_mov_b32 s{sMin}, 0")

    def recaddr(s):
        e(f"  v_med3_u32 v{t0}, v{LN+s}, s{sMin}, v{vC128}")
        e(f"  v_add_u32 v{t1}, v{CU+s}, v{vL16}")
        e(f"  v_add_u32 v{AC+s}, v{AC+s}, v{t0}")
        e(f"  v_add_u32 v{t2}, v{BS+s}, v{t1}")
        e(f"  v_lshrrev_b32 v{t0}, 3, v{AC+s}")
        e(f"  v_min_u32 v{CU+s}, v{LN+s}, v{t0}")
        e(f"  v_cmp_lt_u32 s[{sV[s]}:{sV[s]+1}], v{t1}, v{CU+s}")
        e("  s_nop 1")
        e(f"  v_cndmask_b32 v{t2}, -1, v{t2}, s[{sV[s]}:{sV[s]+1}]")
        e(f"  buffer_load_dword v{RA+s}, v{t2}, s[4:7], 0 idxen")
        e(f"  buffer_load_ushort v{RC+s}, v{t2}, s[8:11], 0 idxen")

    for s in range(4):
        recaddr(s)
    e("  s_waitcnt vmcnt(8)")
    for q, W in enumerate((WD, WU)):
        e(f"  v_lshl_or_b32 v{W}, v{WT+4*q+1}, 16, v{WT+4*q}")
        e(f"  v_lshl_or_b32 v{W+1}, v{WT+4*q+3}, 16, v{WT+4*q+2}")
    for q, W in enumerate((WR, WS)):
        e(f"  v_lshl_or_b32 v{W}, v{WT+8+2*q+1}, 16, v{WT+8+2*q}")
        e(f"  v_mov_b32 v{W+1}, 0")
    a, b = G0 + 8, G0 + 9
    e(f"  v_max3_u32 v{a}, v{G0+8}, v{G0+10}, v{G0+12}")
    e(f"  v_max3_u32 v{b}, v{G0+9}, v{G0+11}, v{G0+13}")
    e(f"  v_max_u32 v{a}, v{a}, v{G0+14}")
    e(f"  v_max_u32 v{b}, v{b}, v{G0+15}")
    wave_max([a, b])
    e("  s_nop 0")
    e(f"  v_readlane_b32 s80, v{a}, 63")
    e(f"  v_readlane_b32 s81, v{b}, 63")
    e("  s_lshr_b32 s82, s80, 7")
    e("  s_sub_u32 s81, 0x8000, s81")
    e("  s_lshr_b32 s81, s81, 7")
    e("  s_sub_u32 s83, s82, s81")
    e(f"  s_cmp_eq_u32 s{sMode}, 2")
    e("  s_cbranch_scc1 LB_float")
    e("  s_cmp_ge_u32 s80, 0x7f80")
    e("  s_cbranch_scc1 LB_float")
    e("  s_cmp_lt_u32 s82, 32")
    e("  s_cbranch_scc1 LB_float")
    e("  s_cmp_gt_u32 s82, 200")
    e("  s_cbranch_scc1 LB_float")
    e("  s_cmp_gt_i32 s83, 10")
    e("  s_cbranch_scc1 LB_float")
    e(f"  s_mov_b32 s{sMode}, 0")
    e(f"  s_mov_b32 s{sMag}, 0x4b400000")
    e("  s_sub_u32 s83, 275, s82")
    e(f"  s_lshl_b32 s{sSc}, s83, 23")
    e("  s_sub_u32 s83, s82, 21")
    e(f"  s_lshl_b32 s{sInv}, s83, 23")
    e("  s_branch LB_modeset")
    lab("LB_float")
    e(f"  s_mov_b32 s{sMode}, 2")
    e(f"  s_mov_b32 s{sMag}, 0")
    e(f"  s_mov_b32 s{sSc}, 1.0")
    e(f"  s_mov_b32 s{sInv}, 1.0")
    lab("LB_modeset")
    c0, c1 = G0 + 17, G0 + 18
    e(f"  v_lshlrev_b32 v{c0}, 16, v{G0+16}")
    e(f"  v_and_b32 v{c1}, 0xffff0000, v{G0+16}")
    e("  s_mov_b32 s80, 0xc1200000           ; -10.0")
    e("  s_mov_b32 s81, 0x3fb8aa3b           ; log2(e)")
    x, y, p = t0, t1, t2
    for u in range(7):
        r = RBF + u
        e(f"  v_lshlrev_b32 v{r}, 16, v{r}")
        e(f"  v_sub_f32 v{x}, v{r}, v{c0}")
        e(f"  v_sub_f32 v{y}, v{r}, v{c1}")
        e(f"  v_cvt_pk_bf16_f32 v{p}, v{x}, v{y}")
        e(f"  v_lshlrev_b32 v{x}, 16, v{p}")
        e(f"  v_and_b32 v{y}, 0xffff0000, v{p}")
        e(f"  v_mul_f32 v{x}, v{x}, v{x}")
        e(f"  v_mul_f32 v{y}, v{y}, v{y}")
        e(f"  v_cvt_pk_bf16_f32 v{p}, v{x}, v{y}")
        e(f"  v_lshlrev_b32 v{x}, 16, v{p}")
        e(f"  v_and_b32 v{y}, 0xffff0000, v{p}")
        e(f"  v_mul_f32 v{x}, s80, v{x}")
        e(f"  v_mul_f32 v{y}, s80, v{y}")
        e(f"  v_cvt_pk_bf16_f32 v{p}, v{x}, v{y}")
        e(f"  v_lshlrev_b32 v{x}, 16, v{p}")
        e(f"  v_and_b32 v{y}, 0xffff0000, v{p}")
        e(f"  v_mul_f32 v{x}, s81, v{x}")
        e(f"  v_mul_f32 v{y}, s81, v{y}")
        e(f"  v_exp_f32 v{x}, v{x}")
        e(f"  v_exp_f32 v{y}, v{y}")
        e("  s_nop 0")
        e(f"  v_cvt_pk_bf16_f32 v{r}, v{x}, v{y}")
    e("  s_waitcnt lgkmcnt(0)")
    e("  s_barrier")

    def decode_issue(s):
        g0 = G0 + 8 * s
        m = f"s[{sV[s]}:{sV[s]+1}]"
        e(f"  v_and_b32 v{t3}, 0x7ffff, v{RA+s}")
        e(f"  v_lshrrev_b32 v{t4}, 19, v{RA+s}")
        e(f"  v_cndmask_b32 v{t3}, -1, v{t3}, {m}")
        e(f"  v_mul_u32_u24 v{t4}, {ROWB}, v{t4}")
        e(f"  v_lshlrev_b32 v{t5}, 16, v{RC+s}")
        e(f"  v_cndmask_b32 v{OA+s}, v{vDum}, v{t4}, {m}")
        e(f"  v_mov_b32_dpp v{vIA}, v{t3} quad_perm:[0,0,2,2] {DPP}")
        e(f"  v_mul_f32 v{CH_+s}, s{sSc}, v{t5}")
        e(f"  buffer_load_dwordx4 v[{g0}:{g0+3}], v[{vIA}:{vIA+1}], s[12:15], 0 idxen offen")
        e(f"  v_mov_b32_dpp v{vIB}, v{t3} quad_perm:[1,1,3,3] {DPP}")
        e(f"  ds_add_u32 v{OA+s}, v{vOne} offset:64")
        e(f"  buffer_load_dwordx4 v[{g0+4}:{g0+7}], v[{vIB}:{vIB+1}], s[12:15], 0 idxen offen")

    def consume(s, atom):
        for h, qp in enumerate(("[0,0,2,2]", "[1,1,3,3]")):
            g0 = G0 + 8 * s + 4 * h
            p = P0 + 8 * h
            ad, ch, cl = t0 + 3 * h, t1 + 3 * h, t2 + 3 * h
            e(f"  v_mov_b32_dpp v{ch}, v{CH_+s} quad_perm:{qp} {DPP}")
            e(f"  v_add_u32_dpp v{ad}, v{OA+s}, v{vH32} quad_perm:{qp} {DPP}")
            e(f"  v_lshrrev_b32 v{cl}, 16, v{ch}")
            for k in range(4):
                e(f"  v_dot2_f32_bf16 v{p+2*k+1}, v{g0+k}, v{ch}, s{sMag}")
                e(f"  v_dot2_f32_bf16 v{p+2*k}, v{g0+k}, v{cl}, s{sMag}")
            for k in range(8):
                e(f"  {atom} v{ad}, v{p+k} offset:{4*k}")

    for s in range(4):
        e(f"  s_waitcnt vmcnt({6+2*s})")
        decode_issue(s)
        recaddr(s)
    e(f"  s_mov_b32 s{sJ}, 0")
    e(f"  s_cmp_eq_u32 s{sMode}, 2")
    e("  s_cbranch_scc1 LB_loop_f")
    for tag, atom in (("i", "ds_add_u32"), ("f", "ds_add_f32")):
        lab(f"LB_loop_{tag}")
        e(f"  s_cmp_ge_u32 s{sJ}, 6")
        e(f"  s_cselect_b32 s{sMin}, 0x80, 0")
        e(f"  s_cmp_ge_u32 s{sJ}, 8")
        e(f"  s_cbranch_scc1 LB_nobar_{tag}")
        e("  s_barrier")
        lab(f"LB_nobar_{tag}")
        for s in range(4):
            e("  s_waitcnt vmcnt(12)")
            consume(s, atom)
            decode_issue(s)
            recaddr(s)
        e(f"  s_add_u32 s{sJ}, s{sJ}, 1")
        e(f"  s_cmp_lt_u32 s{sJ}, s{sNP}")
        e(f"  s_cbranch_scc1 LB_loop_{tag}")
        if tag == "i":
            e("  s_branch LB_done")
    lab("LB_done")
    e("  s_waitcnt vmcnt(0) lgkmcnt(0)")
    e("  s_barrier")
    g = t0
    e(f"  v_and_b32 v{t1}, 63, v0")
    e(f"  v_lshrrev_b32 v{g}, 4, v{t1}")
    e(f"  s_lshl_b32 s80, s{sW}, 4")
    e(f"  v_add_u32 v{t1}, s80, v{vL16}")
    e(f"  v_mul_u32_u24 v{t1}, {ROWB}, v{t1}")
    e(f"  v_lshlrev_b32 v{t2}, 4, v{g}")
    e(f"  v_add_u32 v{t2}, v{t1}, v{t2}")
    e(f"  s_lshl_b32 s80, s{sW}, 9")
    e(f"  v_lshlrev_b32 v{t6}, 5, v{vL16}")
    e(f"  v_lshl_add_u32 v{t6}, v{g}, 3, v{t6}")
    e(f"  v_add_u32 v{t6}, s80, v{t6}")
    e(f"  s_mov_b64 s[{sOv}:{sOv+1}], 0")
    e(f"  v_lshlrev_b32 v{t3}, 16, v{WD}")
    e(f"  v_and_b32 v{t4}, 0xffff0000, v{WD}")
    e(f"  v_mul_f32 v{t3}, s{sInv}, v{t3}")
    e(f"  v_mul_f32 v{t4}, s{sInv}, v{t4}")
    e(f"  v_cvt_pk_bf16_f32 v{P0+14}, v{t3}, v{t4}")
    e(f"  v_lshlrev_b32 v{t3}, 16, v{WD+1}")
    e(f"  v_and_b32 v{t4}, 0xffff0000, v{WD+1}")
    e(f"  v_mul_f32 v{t3}, s{sInv}, v{t3}")
    e(f"  v_mul_f32 v{t4}, s{sInv}, v{t4}")
    e(f"  v_cvt_pk_bf16_f32 v{P0+15}, v{t3}, v{t4}")
    WDS = P0 + 14
    NT = 7
    def tb(u):
        return G0 + 9 * u
    def TA(u): return 8 + 12 * u
    def TG(u): return 8 + 12 * u + 4
    def TR(u): return 8 + 12 * u + 8
    def tile_reads(u):
        e(f"  v_add_u32 v{t3}, {u*256*ROWB}, v{t2}")
        e(f"  v_add_u32 v{t4}, {u*256*ROWB}, v{t1}")
        e(f"  ds_read2_b32 v[{A_(u)}:{A_(u)+1}], v{t3} offset0:0 offset1:1")
        e(f"  ds_read2_b32 v[{A_(u)+2}:{A_(u)+3}], v{t3} offset0:2 offset1:3")
        e(f"  ds_read_b32 v{G_(u)}, v{t4} offset:64")
    def tile_stage1(u):
        a, gg, rr = A_(u), G_(u), R_(u)
        e(f"  v_cmp_lt_u32 vcc, 0x1ff, v{gg}")
        e(f"  s_or_b64 s[{sOv}:{sOv+1}], s[{sOv}:{sOv+1}], vcc")
        e(f"  s_cmp_eq_u32 s{sMode}, 2")
        e(f"  s_cbranch_scc1 LB_e{u}_f")
        e(f"  v_mul_lo_u32 v{gg}, v{gg}, s{sMag}")
        for k in range(4):
            e(f"  v_sub_u32 v{a+k}, v{a+k}, v{gg}")
        for k in range(4):
            e(f"  v_cvt_f32_i32 v{a+k}, v{a+k}")
        lab(f"LB_e{u}_f")
        if DBG == "S":
            e(f"  s_mul_i32 s84, s2, {BINE*64}")
            e(f"  s_add_u32 s84, s84, {64<<20}")
            e(f"  s_add_u32 s84, s84, {u*256*64}")
            e(f"  s_add_u32 s86, s78, s84")
            e(f"  s_addc_u32 s87, s79, 0")
            e(f"  v_lshlrev_b32 v{t7}, 1, v{t6}")
            e(f"  global_store_dwordx4 v{t7}, v[{a}:{a+3}], s[86:87]")
            e("  s_nop 2")
        e(f"  v_cvt_pk_bf16_f32 v{t4}, v{a}, v{a+1}")
        e(f"  v_cvt_pk_bf16_f32 v{t5}, v{a+2}, v{a+3}")
        e(f"  v_mov_b32 v{t6b}, v{RBF+u}")
        e("  s_nop 1")
        e(f"  v_mfma_f32_16x16x16_bf16 v[{a}:{a+3}], v[{WDS}:{WDS+1}], v[{t4}:{t5}], 0")
        e(f"  v_mfma_f32_16x16x16_bf16 v[{gg}:{gg+3}], v[{WS}:{WS+1}], v[{t6b}:{t6b+1}], 0")
        e(f"  v_mfma_f32_16x16x16_bf16 v[{rr}:{rr+3}], v[{WR}:{WR+1}], v[{t6b}:{t6b+1}], 0")
    def tile_stage2(u):
        a, gg = A_(u), G_(u)
        for k in range(4):
            e(f"  v_mul_f32 v{a+k}, v{a+k}, v{gg+k}")
        e(f"  v_cvt_pk_bf16_f32 v{t4}, v{a}, v{a+1}")
        e(f"  v_cvt_pk_bf16_f32 v{t5}, v{a+2}, v{a+3}")
        e("  s_nop 1")
        e(f"  v_mfma_f32_16x16x16_bf16 v[{gg}:{gg+3}], v[{WU}:{WU+1}], v[{t4}:{t5}], 0")
    def tile_stage3(u):
        a, gg, rr = A_(u), G_(u), R_(u)
        m0, m1 = MR + 2 * u, MR + 2 * u + 1
        e(f"  v_lshlrev_b32 v{a}, 16, v{m0}")
        e(f"  v_and_b32 v{a+1}, 0xffff0000, v{m0}")
        e(f"  v_lshlrev_b32 v{a+2}, 16, v{m1}")
        e(f"  v_and_b32 v{a+3}, 0xffff0000, v{m1}")
        for k in range(4):
            e(f"  v_fmac_f32 v{a+k}, v{gg+k}, v{rr+k}")
        e(f"  v_cvt_pk_bf16_f32 v{m0}, v{a}, v{a+1}")
        e(f"  v_cvt_pk_bf16_f32 v{m1}, v{a+2}, v{a+3}")
        e(f"  s_mov_b32 s81, {u*8192}")
        e(f"  buffer_store_dwordx2 v[{m0}:{m1}], v{t6}, s[28:31], s81 offen")
    global A_, G_, R_, t6b
    A_ = lambda u: 8 + 12 * (u % 5)
    G_ = lambda u: 8 + 12 * (u % 5) + 4
    R_ = lambda u: 8 + 12 * (u % 5) + 8
    t6b = 70
    e(f"  v_mov_b32 v{t6b+1}, 0")
    for grp in ((0, 1, 2, 3, 4), (5, 6)):
        for u in grp:
            if u == 6:
                e(f"  s_cmp_ge_u32 s{sW}, 4")
                e("  s_cbranch_scc1 LB_skip6a")
            tile_reads(u)
            if u == 6:
                lab("LB_skip6a")
        e("  s_waitcnt lgkmcnt(0)")
        for u in grp:
            if u == 6:
                e(f"  s_cmp_ge_u32 s{sW}, 4")
                e("  s_cbranch_scc1 LB_skip6b")
            tile_stage1(u)
            if u == 6:
                lab("LB_skip6b")
        e("  s_nop 7")
        for u in grp:
            if u == 6:
                e(f"  s_cmp_ge_u32 s{sW}, 4")
                e("  s_cbranch_scc1 LB_skip6c")
            tile_stage2(u)
            if u == 6:
                lab("LB_skip6c")
        e("  s_nop 7")
        for u in grp:
            if u == 6:
                e(f"  s_cmp_ge_u32 s{sW}, 4")
                e("  s_cbranch_scc1 LB_skip6d")
            tile_stage3(u)
            if u == 6:
                lab("LB_skip6d")
    e(f"  s_cmp_eq_u32 s{sMode}, 2")
    e("  s_cbranch_scc1 LB_end")
    e(f"  s_cmp_eq_u64 s[{sOv}:{sOv+1}], 0")
    e("  s_cbranch_scc1 LB_noov")
    e(f"  v_mov_b32 v{t3}, {B_FLAG}")
    e(f"  ds_write_b32 v{t3}, v{vOne}")
    lab("LB_noov")
    e("  s_waitcnt lgkmcnt(0)")
    e("  s_barrier")
    e(f"  v_mov_b32 v{t3}, {B_FLAG}")
    e(f"  ds_read_b32 v{t3}, v{t3}")
    e("  s_waitcnt lgkmcnt(0)")
    e(f"  v_readfirstlane_b32 s80, v{t3}")
    e("  s_cmp_eq_u32 s80, 0")
    e("  s_cbranch_scc1 LB_end")
    e("  s_waitcnt vmcnt(0)")
    e("  s_barrier")
    e(f"  s_mov_b32 s{sMode}, 2")
    e("  s_branch LB_start")
    lab("LB_end")
    e("  s_endpgm")

def descriptor(name, vgpr, sgpr):
    e(".p2align 6")
    e(f".amdhsa_kernel {name}")
    e(f"  .amdhsa_next_free_vgpr {vgpr}")
    e(f"  .amdhsa_next_free_sgpr {sgpr}")
    e(f"  .amdhsa_accum_offset {vgpr}")
    e("  .amdhsa_group_segment_fixed_size 0")
    e("  .amdhsa_kernarg_size 112")
    e("  .amdhsa_user_sgpr_count 2")
    e("  .amdhsa_user_sgpr_kernarg_segment_ptr 1")
    e("  .amdhsa_system_sgpr_workgroup_id_x 1")
    e("  .amdhsa_float_denorm_mode_32 3")
    e(".end_amdhsa_kernel")

header = open("standalone__molecular_angular_gemnet__graph.s.ref").read().split("; Override launch")[0]
e(header.rstrip())
e(f"; @launch kernel={KA} grid=({NCH},1,1) block=(1024,1,1) lds={A_LDS}")
e(f"; @launch kernel={KB} grid=({NB},1,1) block=(1024,1,1) lds={B_LDS}")
e('.amdgcn_target "amdgcn-amd-amdhsa--gfx950"')
e(".text")
kernel_a()
kernel_b()
e('.section .rodata,"a"')
descriptor(KA, 128, 96)
descriptor(KB, 128, 96)
dst = sys.argv[1] if len(sys.argv) > 1 else "standalone__molecular_angular_gemnet__graph.s"
open(dst, "w").write("\n".join(out) + "\n")
print("wrote", dst, len(out), "lines")
```

```python
import sys, os
DBG = os.environ.get("DBG", "")
ABL = os.environ.get("ABL", "").split(",")
def pol(name, default=""):
    v = os.environ.get(name, default)
    return (" " + v.replace("+", " ")) if v else ""
AIN = pol("AIN"); ATAB = pol("ATAB"); AST = pol("AST"); BREC = pol("BREC"); BOUT = pol("BOUT"); BM = pol("BM")

KA = "standalone__molecular_angular_gemnet__graph_part_kernel"
KB = "standalone__molecular_angular_gemnet__graph_kernel"

E = 400000
T = 6400000
NCH = 250
CH = 25600
NB = 250
BINE = 1600
KS = 8

WS_RECA = 0
WS_RECC = T * 4
WS_TT = T * 6
WS_STATS = WS_TT + NCH * 1024

A_HIST = 0
A_C = 8192
A_A = A_C + CH * 2
A_SCR = A_A + CH * 4
A_LDS = A_SCR + 128

ROWB = 68
B_DUMMY = BINE * ROWB
B_FLAG = B_DUMMY + 768
B_LDS = 114688

out = []
def e(s=""):
    out.append(s)
def lab(s):
    out.append(s + ":")

DPP = "row_mask:0xf bank_mask:0xf"

def srd(reg, lo, hi, size, stride=0):
    e(f"  s_mov_b32 s{reg}, s{lo}")
    e(f"  s_and_b32 s{reg+1}, s{hi}, 0xffff")
    if stride:
        e(f"  s_or_b32 s{reg+1}, s{reg+1}, {stride << 16:#x}")
    e(f"  s_mov_b32 s{reg+2}, {size}")
    e(f"  s_mov_b32 s{reg+3}, 0x20000")

def srd_off(reg, lo, hi, off_sreg, size, const=0, stride=0):
    e(f"  s_add_u32 s{reg}, s{lo}, s{off_sreg}")
    e(f"  s_addc_u32 s{reg+1}, s{hi}, 0")
    if const:
        e(f"  s_add_u32 s{reg}, s{reg}, {const}")
        e(f"  s_addc_u32 s{reg+1}, s{reg+1}, 0")
    e(f"  s_and_b32 s{reg+1}, s{reg+1}, 0xffff")
    if stride:
        e(f"  s_or_b32 s{reg+1}, s{reg+1}, {stride << 16:#x}")
    e(f"  s_mov_b32 s{reg+2}, {size}")
    e(f"  s_mov_b32 s{reg+3}, 0x20000")

def wave_scan_add(v):
    for sh in (1, 2, 4, 8):
        e("  s_nop 1")
        e(f"  v_add_u32_dpp v{v}, v{v}, v{v} row_shr:{sh} {DPP}")
    e("  s_nop 1")
    e(f"  v_add_u32_dpp v{v}, v{v}, v{v} row_bcast:15 row_mask:0xa bank_mask:0xf")
    e("  s_nop 1")
    e(f"  v_add_u32_dpp v{v}, v{v}, v{v} row_bcast:31 row_mask:0xc bank_mask:0xf")

def wave_max(vs):
    steps = [f"row_shr:{sh} {DPP}" for sh in (1, 2, 4, 8)] + \
            ["row_bcast:15 row_mask:0xa bank_mask:0xf", "row_bcast:31 row_mask:0xc bank_mask:0xf"]
    for st in steps:
        e("  s_nop 1")
        for v in vs:
            e(f"  v_max_u32_dpp v{v}, v{v}, v{v} {st}")

def kernel_a():
    I0, O0, AN0, RK0, TB0 = 8, 34, 60, 74, 100
    vOne, vF = 2, 3
    t0, t1, t2, t3, t4, t5 = 116, 117, 118, 119, 120, 121
    e(f".globl {KA}")
    e(".p2align 8")
    e(f".type {KA},@function")
    lab(KA)
    e(f"  s_cmp_ge_u32 s2, {NCH}")
    e("  s_cbranch_scc1 LA_end")
    e("  s_load_dwordx4 s[4:7], s[0:1], 0")
    e("  s_load_dwordx2 s[8:9], s[0:1], 16      ; idx_out")
    e("  s_load_dwordx2 s[10:11], s[0:1], 32    ; angle")
    e("  s_load_dwordx2 s[12:13], s[0:1], 48    ; ang_freq")
    e("  s_load_dwordx2 s[14:15], s[0:1], 104   ; ws")
    e("  v_lshrrev_b32 v1, 6, v0")
    e("  v_lshlrev_b32 v4, 4, v0                ; t*16")
    e("  v_readfirstlane_b32 s50, v1")
    e("  v_lshlrev_b32 v5, 3, v0                ; t*8")
    e("  v_lshlrev_b32 v6, 2, v0                ; t*4")
    e("  v_lshlrev_b32 v7, 1, v0                ; t*2")
    e(f"  v_mov_b32 v{vOne}, 1")
    e(f"  v_mov_b32 v{t0}, 0")
    e(f"  v_mov_b32 v{t1}, 0")
    e(f"  s_mul_i32 s48, s2, {CH*4}")
    e(f"  s_mul_i32 s49, s2, {CH*2}")
    e("  s_lshl_b32 s51, s2, 10")
    e("  s_lshl_b32 s52, s2, 3")
    e("  s_waitcnt lgkmcnt(0)")
    srd_off(16, 6, 7, 48, CH * 4)
    srd_off(20, 8, 9, 48, CH * 4)
    srd_off(24, 10, 11, 49, CH * 2)
    e(f"  global_load_ushort v{vF}, v{t0}, s[12:13]")
    for u in range(6):
        e(f"  s_mov_b32 s53, {u*16384}")
        e(f"  s_mov_b32 s54, {u*8192}")
        e(f"  buffer_load_dwordx4 v[{I0+4*u}:{I0+4*u+3}], v4, s[16:19], s53 offen{AIN}")
        e(f"  buffer_load_dwordx4 v[{O0+4*u}:{O0+4*u+3}], v4, s[20:23], s53 offen{AIN}")
        e(f"  buffer_load_dwordx2 v[{AN0+2*u}:{AN0+2*u+1}], v5, s[24:27], s54 offen{AIN}")
    e(f"  s_mov_b32 s53, {6*16384}")
    e(f"  s_mov_b32 s54, {6*8192}")
    e(f"  buffer_load_dword v{I0+24}, v6, s[16:19], s53 offen{AIN}")
    e(f"  buffer_load_dword v{O0+24}, v6, s[20:23], s53 offen{AIN}")
    e(f"  buffer_load_ushort v{AN0+12}, v7, s[24:27], s54 offen{AIN}")
    srd_off(28, 4, 5, 49, 51200)
    srd_off(32, 14, 15, 48, CH * 4, WS_RECA)
    srd_off(36, 14, 15, 49, CH * 2, WS_RECC)
    srd_off(40, 14, 15, 51, 1024, WS_TT)
    srd_off(44, 14, 15, 52, 8, WS_STATS)
    e(f"  ds_write_b64 v5, v[{t0}:{t1}] offset:{A_HIST}")
    e(f"  v_and_b32 v{t2}, 15, v0")
    e(f"  v_lshlrev_b32 v{t2}, 3, v{t2}")
    e(f"  v_add_u32 v{t2}, {A_SCR}, v{t2}")
    e(f"  ds_write_b64 v{t2}, v[{t0}:{t1}]")
    e(f"  s_mov_b32 s55, {(2**32 + BINE - 1)//BINE}      ; o/1600 magic")
    e(f"  s_mov_b32 s56, {(2**32 * KS)//E - 1}")
    e(f"  s_mov_b32 s57, {-BINE}")
    e("  s_waitcnt lgkmcnt(0)")
    e("  s_barrier")

    def rec(r):
        I, O, R = I0 + r, O0 + r, RK0 + r
        e(f"  v_mul_hi_u32_u24 v{t0}, s55, v{O}           ; bin")
        e(f"  v_mul_hi_u32_u24 v{t1}, s56, v{I}           ; i range")
        e(f"  v_mad_i32_i24 v{t2}, v{t0}, s57, v{O}       ; o local")
        e(f"  v_lshlrev_b32 v{t1}, 2, v{t1}")
        e(f"  v_lshl_add_u32 v{O}, v{t0}, 5, v{t1}        ; key*4")
        e(f"  v_lshl_or_b32 v{I}, v{t2}, 19, v{I}")
        e(f"  ds_add_rtn_u32 v{R}, v{O}, v{vOne} offset:{A_HIST}")

    def cospair(a):
        x, y = t3, t4
        e(f"  v_lshlrev_b32 v{x}, 16, v{a}")
        e(f"  v_and_b32 v{y}, 0xffff0000, v{a}")
        e(f"  v_mul_f32 v{x}, v{vF}, v{x}")
        e(f"  v_mul_f32 v{y}, v{vF}, v{y}")
        e(f"  v_cvt_pk_bf16_f32 v{t5}, v{x}, v{y}")
        e(f"  v_lshlrev_b32 v{x}, 16, v{t5}")
        e(f"  v_and_b32 v{y}, 0xffff0000, v{t5}")
        e(f"  v_mul_f32 v{x}, 0.15915494, v{x}")
        e(f"  v_mul_f32 v{y}, 0.15915494, v{y}")
        e(f"  v_fract_f32 v{x}, v{x}")
        e(f"  v_fract_f32 v{y}, v{y}")
        e(f"  v_cos_f32 v{x}, v{x}")
        e(f"  v_cos_f32 v{y}, v{y}")
        e("  s_nop 0")
        e(f"  v_cvt_pk_bf16_f32 v{a}, v{x}, v{y}")

    for u in range(6):
        e(f"  s_waitcnt vmcnt({18-3*u})")
        if u == 0:
            e(f"  v_lshlrev_b32 v{vF}, 16, v{vF}")
        for r in range(4):
            rec(4 * u + r)
        cospair(AN0 + 2 * u)
        cospair(AN0 + 2 * u + 1)
    e("  s_waitcnt vmcnt(0)")
    rec(24)
    cospair(AN0 + 12)
    for u in range(4):
        e(f"  s_mov_b32 s53, {u*16384}")
        e(f"  buffer_load_dwordx4 v[{TB0+4*u}:{TB0+4*u+3}], v4, s[28:31], s53 offen{ATAB}")
    e("  s_waitcnt lgkmcnt(0)")
    e("  s_barrier")
    e(f"  ds_read_b64 v[{t0}:{t1}], v5 offset:{A_HIST}")
    e("  s_waitcnt lgkmcnt(0)")
    e(f"  v_add_u32 v{t2}, v{t0}, v{t1}")
    e(f"  v_mov_b32 v{t3}, v{t2}")
    wave_scan_add(t3)
    e(f"  s_lshl_b32 s58, s50, 2")
    e(f"  s_add_u32 s58, s58, {A_SCR}")
    e(f"  v_mov_b32 v{t4}, s58")
    e("  s_mov_b32 exec_lo, 0")
    e("  s_mov_b32 exec_hi, 0x80000000")
    e(f"  ds_write_b32 v{t4}, v{t3}")
    e("  s_mov_b64 exec, -1")
    e("  s_waitcnt lgkmcnt(0)")
    e("  s_barrier")
    e(f"  v_and_b32 v{t4}, 15, v0")
    e(f"  v_lshlrev_b32 v{t4}, 2, v{t4}")
    e(f"  v_add_u32 v{t4}, {A_SCR}, v{t4}")
    e(f"  ds_read_b32 v{t4}, v{t4}")
    e("  s_waitcnt lgkmcnt(0)")
    e(f"  v_mov_b32 v{t5}, v{t4}")
    for sh in (1, 2, 4, 8):
        e("  s_nop 1")
        e(f"  v_add_u32_dpp v{t5}, v{t5}, v{t5} row_shr:{sh} {DPP}")
    e(f"  v_sub_u32 v{t5}, v{t5}, v{t4}")
    e("  s_nop 0")
    e(f"  v_readlane_b32 s58, v{t5}, s50")
    e(f"  v_sub_u32 v{t3}, v{t3}, v{t2}")
    e("  s_nop 0")
    e(f"  v_add_u32 v{t2}, s58, v{t3}         ; start0")
    e(f"  v_add_u32 v{t3}, v{t2}, v{t0}       ; start1")
    e(f"  ds_write_b64 v5, v[{t2}:{t3}] offset:{A_HIST}")
    e(f"  v_and_b32 v{t4}, 3, v0")
    e(f"  v_cmp_eq_u32 vcc, 0, v{t4}")
    e("  s_and_saveexec_b64 s[60:61], vcc")
    e(f"  buffer_store_dword v{t2}, v0, s[40:43], 0 offen")
    e("  s_mov_b64 exec, s[60:61]")
    e("  s_waitcnt lgkmcnt(0)")
    e("  s_barrier")
    groups = [range(0, 9), range(9, 17), range(17, 25)]
    for g in groups:
        for r in g:
            e(f"  ds_read_b32 v{O0+r}, v{O0+r} offset:{A_HIST}")
        e("  s_waitcnt lgkmcnt(0)")
        for r in g:
            e(f"  v_add_u32 v{O0+r}, v{O0+r}, v{RK0+r}")
            e(f"  v_lshlrev_b32 v{RK0+r}, 2, v{O0+r}")
            e(f"  v_lshlrev_b32 v{O0+r}, 1, v{O0+r}")
            e(f"  ds_write_b32 v{RK0+r}, v{I0+r} offset:{A_A}")
            op = "ds_write_b16" if r % 2 == 0 else "ds_write_b16_d16_hi"
            e(f"  {op} v{O0+r}, v{AN0+r//2} offset:{A_C}")
    gM, gR = 122, 123
    e(f"  v_mov_b32 v{gM}, 0")
    e(f"  v_mov_b32 v{gR}, 0")
    e("  s_mov_b32 s58, 0x7fff7fff")
    e("  s_waitcnt vmcnt(0)")
    for u in range(4):
        b = TB0 + 4 * u
        for k in range(4):
            e(f"  v_and_b32 v{b+k}, s58, v{b+k}")
        e(f"  v_pk_max_u16 v{b}, v{b}, v{b+1}")
        e(f"  v_pk_max_u16 v{b+2}, v{b+2}, v{b+3}")
        e(f"  v_pk_max_u16 v{b}, v{b}, v{b+2}")
        e(f"  v_lshrrev_b32 v{b+1}, 16, v{b}")
        e(f"  v_and_b32 v{b}, 0xffff, v{b}")
        e(f"  v_max_u32 v{b}, v{b}, v{b+1}")
        e("  s_nop 1")
        e(f"  v_max_u32_dpp v{b}, v{b}, v{b} quad_perm:[1,0,3,2] {DPP}")
        e(f"  v_max_u32 v{gM}, v{gM}, v{b}")
        e(f"  v_sub_u32 v{b}, 0x8000, v{b}")
        e(f"  v_and_b32 v{b}, 0x7fff, v{b}")
        e(f"  v_max_u32 v{gR}, v{gR}, v{b}")
    wave_max([gM, gR])
    e(f"  v_mov_b32 v{t4}, {A_SCR + 64}")
    e("  s_mov_b32 exec_lo, 0")
    e("  s_mov_b32 exec_hi, 0x80000000")
    e(f"  ds_max_u32 v{t4}, v{gM}")
    e(f"  ds_max_u32 v{t4}, v{gR} offset:4")
    e("  s_mov_b64 exec, -1")
    e("  s_waitcnt lgkmcnt(0)")
    e("  s_barrier")
    d = 8
    for u in range(6):
        e(f"  v_add_u32 v{t0}, {u*16384}, v4")
        e(f"  ds_read_b128 v[{d+4*u}:{d+4*u+3}], v{t0} offset:{A_A}")
    for u in range(3):
        e(f"  v_add_u32 v{t0}, {u*16384}, v4")
        e(f"  ds_read_b128 v[{d+24+4*u}:{d+24+4*u+3}], v{t0} offset:{A_C}")
    e(f"  v_mov_b32 v{t4}, {A_SCR + 64}")
    e(f"  ds_read_b64 v[{t2}:{t3}], v{t4}")
    for u in range(6):
        e(f"  s_mov_b32 s53, {u*16384}")
        e(f"  s_waitcnt lgkmcnt({9-u})")
        e(f"  buffer_store_dwordx4 v[{d+4*u}:{d+4*u+3}], v4, s[32:35], s53 offen{AST}")
    for u in range(3):
        e(f"  s_mov_b32 s53, {u*16384}")
        e(f"  s_waitcnt lgkmcnt({3-u})")
        e(f"  buffer_store_dwordx4 v[{d+24+4*u}:{d+24+4*u+3}], v4, s[36:39], s53 offen{AST}")
    e("  s_cmp_lt_u32 s50, 4")
    e("  s_cbranch_scc0 LA_t1")
    e(f"  v_add_u32 v{t0}, {6*16384}, v4")
    e(f"  ds_read_b128 v[60:63], v{t0} offset:{A_A}")
    e(f"  s_mov_b32 s53, {6*16384}")
    e("  s_waitcnt lgkmcnt(0)")
    e(f"  buffer_store_dwordx4 v[60:63], v4, s[32:35], s53 offen{AST}")
    lab("LA_t1")
    e("  s_cmp_lt_u32 s50, 2")
    e("  s_cbranch_scc0 LA_t2")
    e(f"  v_add_u32 v{t0}, {3*16384}, v4")
    e(f"  ds_read_b128 v[64:67], v{t0} offset:{A_C}")
    e(f"  s_mov_b32 s53, {3*16384}")
    e("  s_waitcnt lgkmcnt(0)")
    e(f"  buffer_store_dwordx4 v[64:67], v4, s[36:39], s53 offen{AST}")
    lab("LA_t2")
    e("  s_cmp_eq_u32 s50, 15")
    e("  s_cbranch_scc0 LA_end")
    e("  s_waitcnt lgkmcnt(0)")
    e(f"  v_mov_b32 v{t0}, 0")
    e("  s_mov_b32 exec_lo, 1")
    e("  s_mov_b32 exec_hi, 0")
    e(f"  buffer_store_dwordx2 v[{t2}:{t3}], v{t0}, s[44:47], 0 offen")
    lab("LA_end")
    e("  s_endpgm")

def kernel_b():
    vC128, vIA, vIB, vDum, vOne = 1, 2, 4, 6, 7
    G0 = 8
    OA, CH_, RA, RC, BS, LN, AC, CU = 40, 44, 48, 52, 56, 60, 64, 68
    P0 = 72
    t0, t1, t2, t3, t4, t5, t6, t7 = range(88, 96)
    MR, RBF = 96, 110
    vL16, vH32 = 117, 126
    WD, WU, WS, WR = 118, 120, 122, 124
    vZ = 127
    sW, sJ, sNP, sMag, sSc, sInv, sMode, sMin = 50, 51, 52, 53, 54, 55, 56, 57
    sV = [58, 60, 62, 64]
    sOv = 66
    e(f".globl {KB}")
    e(".p2align 8")
    e(f".type {KB},@function")
    lab(KB)
    e(f"  s_cmp_ge_u32 s2, {NB}")
    e("  s_cbranch_scc1 LB_end")
    e("  s_load_dwordx2 s[68:69], s[0:1], 0      ; m")
    e("  s_load_dwordx2 s[70:71], s[0:1], 24     ; dist")
    e("  s_load_dwordx2 s[40:41], s[0:1], 40     ; centers")
    e("  s_load_dwordx4 s[44:47], s[0:1], 56")
    e("  s_load_dwordx4 s[72:75], s[0:1], 72")
    e("  s_load_dwordx2 s[76:77], s[0:1], 88     ; out")
    e("  s_load_dwordx2 s[78:79], s[0:1], 104    ; ws")
    e("  v_lshrrev_b32 v8, 6, v0")
    e(f"  v_and_b32 v{vL16}, 15, v0")
    e(f"  v_readfirstlane_b32 s{sW}, v8")
    e(f"  v_and_b32 v9, 1, v0")
    e(f"  v_lshlrev_b32 v{vH32}, 5, v9")
    e(f"  v_lshlrev_b32 v{vIA+1}, 4, v9")
    e(f"  v_lshlrev_b32 v{vIB+1}, 4, v9")
    e(f"  v_and_b32 v9, 63, v0")
    e(f"  v_lshlrev_b32 v9, 2, v9")
    e(f"  v_add_u32 v{vDum}, {B_DUMMY}, v9")
    e(f"  v_mov_b32 v{vOne}, 1")
    e(f"  v_mov_b32 v{vC128}, 0x80")
    e(f"  v_mov_b32 v{vZ}, 0")
    e(f"  s_mul_i32 s80, s2, {BINE*32}")
    e(f"  s_mul_i32 s81, s2, {BINE*2}")
    e(f"  s_mov_b32 s{sMode}, 0")
    e("  s_waitcnt lgkmcnt(0)")
    e(f"  s_add_u32 s82, s78, {WS_RECA}")
    e("  s_addc_u32 s83, s79, 0")
    srd(4, 82, 83, T, 4)
    e(f"  s_add_u32 s82, s78, {WS_RECC}")
    e("  s_addc_u32 s83, s79, 0")
    srd(8, 82, 83, T, 2)
    srd(12, 68, 69, E, 32)
    e(f"  s_add_u32 s82, s78, {WS_TT}")
    e("  s_addc_u32 s83, s79, 0")
    srd(16, 82, 83, NCH * 1024)
    e(f"  s_add_u32 s82, s78, {WS_STATS}")
    e("  s_addc_u32 s83, s79, 0")
    srd(20, 82, 83, NCH * 8)
    srd_off(24, 68, 69, 80, BINE * 32)
    srd_off(28, 76, 77, 80, BINE * 32)
    srd_off(32, 70, 71, 81, BINE * 2)
    lab("LB_start")
    g, n = t0, vL16
    e(f"  v_and_b32 v{t1}, 63, v0")
    e(f"  v_lshrrev_b32 v{g}, 4, v{t1}            ; g = lane>>4")
    e(f"  s_lshl_b32 s80, s{sW}, 4")
    e(f"  v_add_u32 v{t1}, s80, v{g}              ; 16w+g")
    e(f"  s_lshl_b32 s81, s2, 2")
    e(f"  v_lshlrev_b32 v{t2}, 10, v{t1}")
    e(f"  v_add_u32 v{t2}, s81, v{t2}")
    for s in range(4):
        e(f"  v_add_u32 v{t3}, {s*4096}, v{t2}")
        e(f"  buffer_load_dwordx2 v[{G0+2*s}:{G0+2*s+1}], v{t3}, s[16:19], 0 offen")
    e(f"  v_and_b32 v{t3}, 63, v0")
    e(f"  v_lshlrev_b32 v{t3}, 3, v{t3}")
    for s in range(4):
        e(f"  buffer_load_dwordx2 v[{G0+8+2*s}:{G0+8+2*s+1}], v{t3}, s[20:23], 0 offen offset:{s*512}")
    e(f"  v_lshlrev_b32 v{t3}, 7, v{g}")
    e(f"  v_lshl_add_u32 v{t3}, v{n}, 1, v{t3}     ; (4g*16 + n)*2")
    WT = G0 + 19
    for q, sp in enumerate((72, 74)):
        for k in range(4):
            e(f"  global_load_ushort v{WT+4*q+k}, v{t3}, s[{sp}:{sp+1}] offset:{32*k}")
    e(f"  v_lshlrev_b32 v{t4}, 6, v{g}")
    e(f"  v_lshl_add_u32 v{t4}, v{n}, 1, v{t4}     ; (2g*16 + n)*2")
    for q, sp in enumerate((44, 46)):
        for k in range(2):
            e(f"  global_load_ushort v{WT+8+2*q+k}, v{t4}, s[{sp}:{sp+1}] offset:{32*k}")
    e(f"  v_lshlrev_b32 v{t5}, 2, v{g}")
    e(f"  global_load_dword v{G0+16}, v{t5}, s[40:41]")
    e(f"  s_lshl_b32 s80, s{sW}, 9")
    e(f"  v_lshlrev_b32 v{t6}, 5, v{n}")
    e(f"  v_lshl_add_u32 v{t6}, v{g}, 3, v{t6}")
    e(f"  v_add_u32 v{t6}, s80, v{t6}              ; w*512 + n*32 + g*8")
    for u in range(7):
        e(f"  s_mov_b32 s81, {u*8192}")
        e(f"  buffer_load_dwordx2 v[{MR+2*u}:{MR+2*u+1}], v{t6}, s[24:27], s81 offen{BM}")
    e(f"  s_lshl_b32 s80, s{sW}, 5")
    e(f"  v_lshl_add_u32 v{t7}, v{n}, 1, s80")
    for u in range(7):
        e(f"  buffer_load_ushort v{RBF+u}, v{t7}, s[32:35], 0 offen offset:{u*512}")
    for k in range(4):
        e(f"  v_mov_b32 v{P0+k}, 0")
    e(f"  v_lshlrev_b32 v{t3}, 4, v0")
    for u in range(7):
        if u < 4:
            e(f"  ds_write_b128 v{t3}, v[{P0}:{P0+3}] offset:{u*16384}")
        else:
            if u == 4:
                e(f"  v_add_u32 v{t3}, 0x10000, v{t3}")
            e(f"  ds_write_b128 v{t3}, v[{P0}:{P0+3}] offset:{(u-4)*16384}")
    e("  s_waitcnt vmcnt(31)")
    e(f"  s_mov_b32 s80, {CH}")
    for s in range(4):
        e(f"  v_add_u32 v{t3}, {4*s}, v{t1}")
        e(f"  v_mul_lo_u32 v{t3}, s80, v{t3}")
        e(f"  v_add_u32 v{BS+s}, v{t3}, v{G0+2*s}")
        e(f"  v_sub_u32 v{LN+s}, v{G0+2*s+1}, v{G0+2*s}")
        e(f"  v_mov_b32 v{AC+s}, 0")
        e(f"  v_mov_b32 v{CU+s}, 0")
    e(f"  v_max_u32 v{t3}, v{LN}, v{LN+1}")
    e(f"  v_max3_u32 v{t3}, v{t3}, v{LN+2}, v{LN+3}")
    e("  s_nop 0")
    e(f"  v_readlane_b32 s80, v{t3}, 0")
    e(f"  v_readlane_b32 s81, v{t3}, 16")
    e(f"  v_readlane_b32 s82, v{t3}, 32")
    e(f"  v_readlane_b32 s83, v{t3}, 48")
    e("  s_max_u32 s80, s80, s81")
    e("  s_max_u32 s82, s82, s83")
    e("  s_max_u32 s80, s80, s82")
    e("  s_max_u32 s80, s80, 0x80")
    e("  s_sub_u32 s80, s80, 0x71            ; maxlen - 128 + 15")
    e("  s_lshr_b32 s80, s80, 4")
    e(f"  s_add_u32 s{sNP}, s80, 8")
    e(f"  s_mov_b32 s{sMin}, 0")

    def recaddr(s):
        e(f"  v_med3_u32 v{t0}, v{LN+s}, s{sMin}, v{vC128}")
        e(f"  v_add_u32 v{t1}, v{CU+s}, v{vL16}")
        e(f"  v_add_u32 v{AC+s}, v{AC+s}, v{t0}")
        e(f"  v_add_u32 v{t2}, v{BS+s}, v{t1}")
        e(f"  v_lshrrev_b32 v{t0}, 3, v{AC+s}")
        e(f"  v_min_u32 v{CU+s}, v{LN+s}, v{t0}")
        e(f"  v_cmp_lt_u32 s[{sV[s]}:{sV[s]+1}], v{t1}, v{CU+s}")
        e("  s_nop 1")
        e(f"  v_cndmask_b32 v{t2}, -1, v{t2}, s[{sV[s]}:{sV[s]+1}]")
        e(f"  buffer_load_dword v{RA+s}, v{t2}, s[4:7], 0 idxen{BREC}")
        e(f"  buffer_load_ushort v{RC+s}, v{t2}, s[8:11], 0 idxen{BREC}")

    for s in range(4):
        recaddr(s)
    e("  s_waitcnt vmcnt(8)")
    for q, W in enumerate((WD, WU)):
        e(f"  v_lshl_or_b32 v{W}, v{WT+4*q+1}, 16, v{WT+4*q}")
        e(f"  v_lshl_or_b32 v{W+1}, v{WT+4*q+3}, 16, v{WT+4*q+2}")
    for q, W in enumerate((WR, WS)):
        e(f"  v_lshl_or_b32 v{W}, v{WT+8+2*q+1}, 16, v{WT+8+2*q}")
        e(f"  v_mov_b32 v{W+1}, 0")
    a, b = G0 + 8, G0 + 9
    e(f"  v_max3_u32 v{a}, v{G0+8}, v{G0+10}, v{G0+12}")
    e(f"  v_max3_u32 v{b}, v{G0+9}, v{G0+11}, v{G0+13}")
    e(f"  v_max_u32 v{a}, v{a}, v{G0+14}")
    e(f"  v_max_u32 v{b}, v{b}, v{G0+15}")
    wave_max([a, b])
    e("  s_nop 0")
    e(f"  v_readlane_b32 s80, v{a}, 63")
    e(f"  v_readlane_b32 s81, v{b}, 63")
    e("  s_lshr_b32 s82, s80, 7")
    e("  s_sub_u32 s81, 0x8000, s81")
    e("  s_lshr_b32 s81, s81, 7")
    e("  s_sub_u32 s83, s82, s81")
    e(f"  s_cmp_eq_u32 s{sMode}, 2")
    e("  s_cbranch_scc1 LB_float")
    e("  s_cmp_ge_u32 s80, 0x7f80")
    e("  s_cbranch_scc1 LB_float")
    e("  s_cmp_lt_u32 s82, 32")
    e("  s_cbranch_scc1 LB_float")
    e("  s_cmp_gt_u32 s82, 200")
    e("  s_cbranch_scc1 LB_float")
    e("  s_cmp_gt_i32 s83, 10")
    e("  s_cbranch_scc1 LB_float")
    e(f"  s_mov_b32 s{sMode}, 0")
    e(f"  s_mov_b32 s{sMag}, 0x4b400000")
    e("  s_sub_u32 s83, 275, s82")
    e(f"  s_lshl_b32 s{sSc}, s83, 23")
    e("  s_sub_u32 s83, s82, 21")
    e(f"  s_lshl_b32 s{sInv}, s83, 23")
    e("  s_branch LB_modeset")
    lab("LB_float")
    e(f"  s_mov_b32 s{sMode}, 2")
    e(f"  s_mov_b32 s{sMag}, 0")
    e(f"  s_mov_b32 s{sSc}, 1.0")
    e(f"  s_mov_b32 s{sInv}, 1.0")
    lab("LB_modeset")
    c0, c1 = G0 + 17, G0 + 18
    e(f"  v_lshlrev_b32 v{c0}, 16, v{G0+16}")
    e(f"  v_and_b32 v{c1}, 0xffff0000, v{G0+16}")
    e("  s_mov_b32 s80, 0xc1200000           ; -10.0")
    e("  s_mov_b32 s81, 0x3fb8aa3b           ; log2(e)")
    x, y, p = t0, t1, t2
    for u in range(7):
        r = RBF + u
        e(f"  v_lshlrev_b32 v{r}, 16, v{r}")
        e(f"  v_sub_f32 v{x}, v{r}, v{c0}")
        e(f"  v_sub_f32 v{y}, v{r}, v{c1}")
        e(f"  v_cvt_pk_bf16_f32 v{p}, v{x}, v{y}")
        e(f"  v_lshlrev_b32 v{x}, 16, v{p}")
        e(f"  v_and_b32 v{y}, 0xffff0000, v{p}")
        e(f"  v_mul_f32 v{x}, v{x}, v{x}")
        e(f"  v_mul_f32 v{y}, v{y}, v{y}")
        e(f"  v_cvt_pk_bf16_f32 v{p}, v{x}, v{y}")
        e(f"  v_lshlrev_b32 v{x}, 16, v{p}")
        e(f"  v_and_b32 v{y}, 0xffff0000, v{p}")
        e(f"  v_mul_f32 v{x}, s80, v{x}")
        e(f"  v_mul_f32 v{y}, s80, v{y}")
        e(f"  v_cvt_pk_bf16_f32 v{p}, v{x}, v{y}")
        e(f"  v_lshlrev_b32 v{x}, 16, v{p}")
        e(f"  v_and_b32 v{y}, 0xffff0000, v{p}")
        e(f"  v_mul_f32 v{x}, s81, v{x}")
        e(f"  v_mul_f32 v{y}, s81, v{y}")
        e(f"  v_exp_f32 v{x}, v{x}")
        e(f"  v_exp_f32 v{y}, v{y}")
        e("  s_nop 0")
        e(f"  v_cvt_pk_bf16_f32 v{r}, v{x}, v{y}")
    e("  s_waitcnt lgkmcnt(0)")
    e("  s_barrier")

    def decode_issue(s):
        g0 = G0 + 8 * s
        m = f"s[{sV[s]}:{sV[s]+1}]"
        e(f"  v_and_b32 v{t3}, 0x7ffff, v{RA+s}")
        e(f"  v_lshrrev_b32 v{t4}, 19, v{RA+s}")
        e(f"  v_cndmask_b32 v{t3}, -1, v{t3}, {m}")
        e(f"  v_mul_u32_u24 v{t4}, {ROWB}, v{t4}")
        e(f"  v_lshlrev_b32 v{t5}, 16, v{RC+s}")
        e(f"  v_cndmask_b32 v{OA+s}, v{vDum}, v{t4}, {m}")
        e(f"  v_mov_b32_dpp v{vIA}, v{t3} quad_perm:[0,0,2,2] {DPP}")
        e(f"  v_mul_f32 v{CH_+s}, s{sSc}, v{t5}")
        if "nogather" in ABL:
            e(f"  v_mov_b32 v{vIA}, -1")
        e(f"  buffer_load_dwordx4 v[{g0}:{g0+3}], v[{vIA}:{vIA+1}], s[12:15], 0 idxen offen")
        e(f"  v_mov_b32_dpp v{vIB}, v{t3} quad_perm:[1,1,3,3] {DPP}")
        e(f"  ds_add_u32 v{OA+s}, v{vOne} offset:64")
        if "nogather" in ABL:
            e(f"  v_mov_b32 v{vIB}, -1")
        e(f"  buffer_load_dwordx4 v[{g0+4}:{g0+7}], v[{vIB}:{vIB+1}], s[12:15], 0 idxen offen")

    def consume(s, atom):
        for h, qp in enumerate(("[0,0,2,2]", "[1,1,3,3]")):
            g0 = G0 + 8 * s + 4 * h
            p = P0 + 8 * h
            ad, ch, cl = t0 + 3 * h, t1 + 3 * h, t2 + 3 * h
            e(f"  v_mov_b32_dpp v{ch}, v{CH_+s} quad_perm:{qp} {DPP}")
            e(f"  v_add_u32_dpp v{ad}, v{OA+s}, v{vH32} quad_perm:{qp} {DPP}")
            e(f"  v_lshrrev_b32 v{cl}, 16, v{ch}")
            for k in range(4):
                if "nodot" in ABL:
                    e(f"  v_add_u32 v{p+2*k+1}, v{g0+k}, v{ch}")
                    e(f"  v_add_u32 v{p+2*k}, v{g0+k}, v{cl}")
                    continue
                e(f"  v_dot2_f32_bf16 v{p+2*k+1}, v{g0+k}, v{ch}, s{sMag}")
                e(f"  v_dot2_f32_bf16 v{p+2*k}, v{g0+k}, v{cl}, s{sMag}")
            for k in range(8):
                if "noatom" in ABL:
                    continue
                e(f"  {atom} v{ad}, v{p+k} offset:{4*k}")

    for s in range(4):
        e(f"  s_waitcnt vmcnt({6+2*s})")
        decode_issue(s)
        recaddr(s)
    e(f"  s_mov_b32 s{sJ}, 0")
    e(f"  s_cmp_eq_u32 s{sMode}, 2")
    e("  s_cbranch_scc1 LB_loop_f")
    for tag, atom in (("i", "ds_add_u32"), ("f", "ds_add_f32")):
        lab(f"LB_loop_{tag}")
        e(f"  s_cmp_ge_u32 s{sJ}, 6")
        e(f"  s_cselect_b32 s{sMin}, 0x80, 0")
        e(f"  s_cmp_ge_u32 s{sJ}, 8")
        e(f"  s_cbranch_scc1 LB_nobar_{tag}")
        if "nobar" not in ABL:
            e("  s_barrier")
        lab(f"LB_nobar_{tag}")
        for s in range(4):
            e("  s_waitcnt vmcnt(12)")
            consume(s, atom)
            decode_issue(s)
            recaddr(s)
        e(f"  s_add_u32 s{sJ}, s{sJ}, 1")
        e(f"  s_cmp_lt_u32 s{sJ}, s{sNP}")
        e(f"  s_cbranch_scc1 LB_loop_{tag}")
        if tag == "i":
            e("  s_branch LB_done")
    lab("LB_done")
    e("  s_waitcnt vmcnt(0) lgkmcnt(0)")
    e("  s_barrier")
    g = t0
    e(f"  v_and_b32 v{t1}, 63, v0")
    e(f"  v_lshrrev_b32 v{g}, 4, v{t1}")
    e(f"  s_lshl_b32 s80, s{sW}, 4")
    e(f"  v_add_u32 v{t1}, s80, v{vL16}")
    e(f"  v_mul_u32_u24 v{t1}, {ROWB}, v{t1}")
    e(f"  v_lshlrev_b32 v{t2}, 4, v{g}")
    e(f"  v_add_u32 v{t2}, v{t1}, v{t2}")
    e(f"  s_lshl_b32 s80, s{sW}, 9")
    e(f"  v_lshlrev_b32 v{t6}, 5, v{vL16}")
    e(f"  v_lshl_add_u32 v{t6}, v{g}, 3, v{t6}")
    e(f"  v_add_u32 v{t6}, s80, v{t6}")
    e(f"  s_mov_b64 s[{sOv}:{sOv+1}], 0")
    e(f"  v_lshlrev_b32 v{t3}, 16, v{WD}")
    e(f"  v_and_b32 v{t4}, 0xffff0000, v{WD}")
    e(f"  v_mul_f32 v{t3}, s{sInv}, v{t3}")
    e(f"  v_mul_f32 v{t4}, s{sInv}, v{t4}")
    e(f"  v_cvt_pk_bf16_f32 v{P0+14}, v{t3}, v{t4}")
    e(f"  v_lshlrev_b32 v{t3}, 16, v{WD+1}")
    e(f"  v_and_b32 v{t4}, 0xffff0000, v{WD+1}")
    e(f"  v_mul_f32 v{t3}, s{sInv}, v{t3}")
    e(f"  v_mul_f32 v{t4}, s{sInv}, v{t4}")
    e(f"  v_cvt_pk_bf16_f32 v{P0+15}, v{t3}, v{t4}")
    WDS = P0 + 14
    NT = 7
    def tb(u):
        return G0 + 9 * u
    def TA(u): return 8 + 12 * u
    def TG(u): return 8 + 12 * u + 4
    def TR(u): return 8 + 12 * u + 8
    def tile_reads(u):
        e(f"  v_add_u32 v{t3}, {u*256*ROWB}, v{t2}")
        e(f"  v_add_u32 v{t4}, {u*256*ROWB}, v{t1}")
        e(f"  ds_read2_b32 v[{A_(u)}:{A_(u)+1}], v{t3} offset0:0 offset1:1")
        e(f"  ds_read2_b32 v[{A_(u)+2}:{A_(u)+3}], v{t3} offset0:2 offset1:3")
        e(f"  ds_read_b32 v{G_(u)}, v{t4} offset:64")
    def tile_stage1(u):
        a, gg, rr = A_(u), G_(u), R_(u)
        e(f"  v_cmp_lt_u32 vcc, 0x1ff, v{gg}")
        e(f"  s_or_b64 s[{sOv}:{sOv+1}], s[{sOv}:{sOv+1}], vcc")
        e(f"  s_cmp_eq_u32 s{sMode}, 2")
        e(f"  s_cbranch_scc1 LB_e{u}_f")
        e(f"  v_mul_lo_u32 v{gg}, v{gg}, s{sMag}")
        for k in range(4):
            e(f"  v_sub_u32 v{a+k}, v{a+k}, v{gg}")
        for k in range(4):
            e(f"  v_cvt_f32_i32 v{a+k}, v{a+k}")
        lab(f"LB_e{u}_f")
        if DBG == "S":
            e(f"  s_mul_i32 s84, s2, {BINE*64}")
            e(f"  s_add_u32 s84, s84, {64<<20}")
            e(f"  s_add_u32 s84, s84, {u*256*64}")
            e(f"  s_add_u32 s86, s78, s84")
            e(f"  s_addc_u32 s87, s79, 0")
            e(f"  v_lshlrev_b32 v{t7}, 1, v{t6}")
            e(f"  global_store_dwordx4 v{t7}, v[{a}:{a+3}], s[86:87]")
            e("  s_nop 2")
        e(f"  v_cvt_pk_bf16_f32 v{t4}, v{a}, v{a+1}")
        e(f"  v_cvt_pk_bf16_f32 v{t5}, v{a+2}, v{a+3}")
        e(f"  v_mov_b32 v{t6b}, v{RBF+u}")
        e("  s_nop 1")
        e(f"  v_mfma_f32_16x16x16_bf16 v[{a}:{a+3}], v[{WDS}:{WDS+1}], v[{t4}:{t5}], 0")
        e(f"  v_mfma_f32_16x16x16_bf16 v[{gg}:{gg+3}], v[{WS}:{WS+1}], v[{t6b}:{t6b+1}], 0")
        e(f"  v_mfma_f32_16x16x16_bf16 v[{rr}:{rr+3}], v[{WR}:{WR+1}], v[{t6b}:{t6b+1}], 0")
    def tile_stage2(u):
        a, gg = A_(u), G_(u)
        for k in range(4):
            e(f"  v_mul_f32 v{a+k}, v{a+k}, v{gg+k}")
        e(f"  v_cvt_pk_bf16_f32 v{t4}, v{a}, v{a+1}")
        e(f"  v_cvt_pk_bf16_f32 v{t5}, v{a+2}, v{a+3}")
        e("  s_nop 1")
        e(f"  v_mfma_f32_16x16x16_bf16 v[{gg}:{gg+3}], v[{WU}:{WU+1}], v[{t4}:{t5}], 0")
    def tile_stage3(u):
        a, gg, rr = A_(u), G_(u), R_(u)
        m0, m1 = MR + 2 * u, MR + 2 * u + 1
        e(f"  v_lshlrev_b32 v{a}, 16, v{m0}")
        e(f"  v_and_b32 v{a+1}, 0xffff0000, v{m0}")
        e(f"  v_lshlrev_b32 v{a+2}, 16, v{m1}")
        e(f"  v_and_b32 v{a+3}, 0xffff0000, v{m1}")
        for k in range(4):
            e(f"  v_fmac_f32 v{a+k}, v{gg+k}, v{rr+k}")
        e(f"  v_cvt_pk_bf16_f32 v{m0}, v{a}, v{a+1}")
        e(f"  v_cvt_pk_bf16_f32 v{m1}, v{a+2}, v{a+3}")
        e(f"  s_mov_b32 s81, {u*8192}")
        e(f"  buffer_store_dwordx2 v[{m0}:{m1}], v{t6}, s[28:31], s81 offen{BOUT}")
    global A_, G_, R_, t6b
    A_ = lambda u: 8 + 12 * (u % 5)
    G_ = lambda u: 8 + 12 * (u % 5) + 4
    R_ = lambda u: 8 + 12 * (u % 5) + 8
    t6b = 70
    e(f"  v_mov_b32 v{t6b+1}, 0")
    for grp in ((0, 1, 2, 3, 4), (5, 6)):
        for u in grp:
            if u == 6:
                e(f"  s_cmp_ge_u32 s{sW}, 4")
                e("  s_cbranch_scc1 LB_skip6a")
            tile_reads(u)
            if u == 6:
                lab("LB_skip6a")
        e("  s_waitcnt lgkmcnt(0)")
        for u in grp:
            if u == 6:
                e(f"  s_cmp_ge_u32 s{sW}, 4")
                e("  s_cbranch_scc1 LB_skip6b")
            tile_stage1(u)
            if u == 6:
                lab("LB_skip6b")
        e("  s_nop 7")
        for u in grp:
            if u == 6:
                e(f"  s_cmp_ge_u32 s{sW}, 4")
                e("  s_cbranch_scc1 LB_skip6c")
            tile_stage2(u)
            if u == 6:
                lab("LB_skip6c")
        e("  s_nop 7")
        for u in grp:
            if u == 6:
                e(f"  s_cmp_ge_u32 s{sW}, 4")
                e("  s_cbranch_scc1 LB_skip6d")
            tile_stage3(u)
            if u == 6:
                lab("LB_skip6d")
    e(f"  s_cmp_eq_u32 s{sMode}, 2")
    e("  s_cbranch_scc1 LB_end")
    e(f"  s_cmp_eq_u64 s[{sOv}:{sOv+1}], 0")
    e("  s_cbranch_scc1 LB_noov")
    e(f"  v_mov_b32 v{t3}, {B_FLAG}")
    e(f"  ds_write_b32 v{t3}, v{vOne}")
    lab("LB_noov")
    e("  s_waitcnt lgkmcnt(0)")
    e("  s_barrier")
    e(f"  v_mov_b32 v{t3}, {B_FLAG}")
    e(f"  ds_read_b32 v{t3}, v{t3}")
    e("  s_waitcnt lgkmcnt(0)")
    e(f"  v_readfirstlane_b32 s80, v{t3}")
    e("  s_cmp_eq_u32 s80, 0")
    e("  s_cbranch_scc1 LB_end")
    e("  s_waitcnt vmcnt(0)")
    e("  s_barrier")
    e(f"  s_mov_b32 s{sMode}, 2")
    e("  s_branch LB_start")
    lab("LB_end")
    e("  s_endpgm")

def descriptor(name, vgpr, sgpr):
    e(".p2align 6")
    e(f".amdhsa_kernel {name}")
    e(f"  .amdhsa_next_free_vgpr {vgpr}")
    e(f"  .amdhsa_next_free_sgpr {sgpr}")
    e(f"  .amdhsa_accum_offset {vgpr}")
    e("  .amdhsa_group_segment_fixed_size 0")
    e("  .amdhsa_kernarg_size 112")
    e("  .amdhsa_user_sgpr_count 2")
    e("  .amdhsa_user_sgpr_kernarg_segment_ptr 1")
    e("  .amdhsa_system_sgpr_workgroup_id_x 1")
    e("  .amdhsa_float_denorm_mode_32 3")
    e(".end_amdhsa_kernel")

header = open("standalone__molecular_angular_gemnet__graph.s.ref").read().split("; Override launch")[0]
e(header.rstrip())
e(f"; @launch kernel={KA} grid=({NCH},1,1) block=(1024,1,1) lds={A_LDS}")
e(f"; @launch kernel={KB} grid=({NB},1,1) block=(1024,1,1) lds={B_LDS}")
e('.amdgcn_target "amdgcn-amd-amdhsa--gfx950"')
e(".text")
kernel_a()
kernel_b()
e('.section .rodata,"a"')
descriptor(KA, 128, 96)
descriptor(KB, 128, 96)
dst = sys.argv[1] if len(sys.argv) > 1 else "standalone__molecular_angular_gemnet__graph.s"
open(dst, "w").write("\n".join(out) + "\n")
print("wrote", dst, len(out), "lines")
```

```python
import sys, os
DBG = os.environ.get("DBG", "")
ABL = os.environ.get("ABL", "").split(",")
def pol(name, default=""):
    v = os.environ.get(name, default)
    return (" " + v.replace("+", " ")) if v else ""
AIN = pol("AIN"); ATAB = pol("ATAB"); AST = pol("AST"); BREC = pol("BREC"); BOUT = pol("BOUT"); BM = pol("BM")

KA = "standalone__molecular_angular_gemnet__graph_part_kernel"
KB = "standalone__molecular_angular_gemnet__graph_kernel"

E = 400000
T = 6400000
NCH = 250
CH = 25600
NB = 250
BINE = 1600
KS = 8

WS_RECA = 0
WS_RECC = T * 4
WS_TT = T * 6
WS_STATS = WS_TT + NCH * 1024

A_HIST = 0
A_C = 8192
A_A = A_C + CH * 2
A_SCR = A_A + CH * 4
A_LDS = A_SCR + 128

ROWB = 80
B_FLAG = BINE * ROWB
B_LDS = 131072

out = []
def e(s=""):
    out.append(s)
def lab(s):
    out.append(s + ":")

DPP = "row_mask:0xf bank_mask:0xf"

def srd(reg, lo, hi, size, stride=0):
    e(f"  s_mov_b32 s{reg}, s{lo}")
    e(f"  s_and_b32 s{reg+1}, s{hi}, 0xffff")
    if stride:
        e(f"  s_or_b32 s{reg+1}, s{reg+1}, {stride << 16:#x}")
    e(f"  s_mov_b32 s{reg+2}, {size}")
    e(f"  s_mov_b32 s{reg+3}, 0x20000")

def srd_off(reg, lo, hi, off_sreg, size, const=0, stride=0):
    e(f"  s_add_u32 s{reg}, s{lo}, s{off_sreg}")
    e(f"  s_addc_u32 s{reg+1}, s{hi}, 0")
    if const:
        e(f"  s_add_u32 s{reg}, s{reg}, {const}")
        e(f"  s_addc_u32 s{reg+1}, s{reg+1}, 0")
    e(f"  s_and_b32 s{reg+1}, s{reg+1}, 0xffff")
    if stride:
        e(f"  s_or_b32 s{reg+1}, s{reg+1}, {stride << 16:#x}")
    e(f"  s_mov_b32 s{reg+2}, {size}")
    e(f"  s_mov_b32 s{reg+3}, 0x20000")

STAMP = os.environ.get("STAMP", "")
stamp_n = [0]
def stamp(kern, name):
    if STAMP != kern:
        return
    k = stamp_n[0]; stamp_n[0] += 1
    assert k < 16
    e(f"  s_memrealtime s[84:85]")
    e("  s_waitcnt lgkmcnt(0)")
    e(f"  s_mov_b32 s{86+k}, s84")
    if k == 0:
        e("  s_memtime s[84:85]")
        e("  s_waitcnt lgkmcnt(0)")
        e("  s_mov_b32 s101, s84")
    print("stamp", k, name)
def stamp_dump(kern, wsreg, wavereg):
    if STAMP != kern:
        return
    e("  s_memtime s[84:85]")
    e("  s_waitcnt lgkmcnt(0)")
    e("  s_sub_u32 s101, s84, s101")
    e(f"  s_cmp_eq_u32 s{wavereg}, 0")
    e(f"  s_cbranch_scc0 L{kern}_nodump")
    e(f"  s_lshl_b32 s84, s2, 6")
    e(f"  s_add_u32 s84, s84, {128<<20}")
    e(f"  s_add_u32 s102-18, s{wsreg}, s84".replace("s102-18", "s84"))
    e(f"  s_addc_u32 s85, s{wsreg+1}, 0")
    e("  v_mov_b32 v60, 0")
    for k in range(16):
        e(f"  v_mov_b32 v61, s{86+k}")
        e(f"  global_store_dword v60, v61, s[84:85] offset:{4*k}")
    lab(f"L{kern}_nodump")

def wave_scan_add(v):
    for sh in (1, 2, 4, 8):
        e("  s_nop 1")
        e(f"  v_add_u32_dpp v{v}, v{v}, v{v} row_shr:{sh} {DPP}")
    e("  s_nop 1")
    e(f"  v_add_u32_dpp v{v}, v{v}, v{v} row_bcast:15 row_mask:0xa bank_mask:0xf")
    e("  s_nop 1")
    e(f"  v_add_u32_dpp v{v}, v{v}, v{v} row_bcast:31 row_mask:0xc bank_mask:0xf")

def wave_max(vs):
    steps = [f"row_shr:{sh} {DPP}" for sh in (1, 2, 4, 8)] + \
            ["row_bcast:15 row_mask:0xa bank_mask:0xf", "row_bcast:31 row_mask:0xc bank_mask:0xf"]
    for st in steps:
        e("  s_nop 1")
        for v in vs:
            e(f"  v_max_u32_dpp v{v}, v{v}, v{v} {st}")

def kernel_a():
    I0, O0, AN0, RK0, TB0 = 8, 34, 60, 74, 100
    vOne, vF = 2, 3
    t0, t1, t2, t3, t4, t5 = 116, 117, 118, 119, 120, 121
    e(f".globl {KA}")
    e(".p2align 8")
    e(f".type {KA},@function")
    lab(KA)
    e(f"  s_cmp_ge_u32 s2, {NCH}")
    e("  s_cbranch_scc1 LA_end")
    e("  s_load_dwordx4 s[4:7], s[0:1], 0")
    e("  s_load_dwordx2 s[8:9], s[0:1], 16      ; idx_out")
    e("  s_load_dwordx2 s[10:11], s[0:1], 32    ; angle")
    e("  s_load_dwordx2 s[12:13], s[0:1], 48    ; ang_freq")
    e("  s_load_dwordx2 s[14:15], s[0:1], 104   ; ws")
    e("  v_lshrrev_b32 v1, 6, v0")
    e("  v_lshlrev_b32 v4, 4, v0                ; t*16")
    e("  v_readfirstlane_b32 s50, v1")
    e("  v_lshlrev_b32 v5, 3, v0                ; t*8")
    e("  v_lshlrev_b32 v6, 2, v0                ; t*4")
    e("  v_lshlrev_b32 v7, 1, v0                ; t*2")
    e(f"  v_mov_b32 v{vOne}, 1")
    e(f"  v_mov_b32 v{t0}, 0")
    e(f"  v_mov_b32 v{t1}, 0")
    e(f"  s_mul_i32 s48, s2, {CH*4}")
    e(f"  s_mul_i32 s49, s2, {CH*2}")
    e("  s_lshl_b32 s51, s2, 10")
    e("  s_lshl_b32 s52, s2, 3")
    e("  s_waitcnt lgkmcnt(0)")
    srd_off(16, 6, 7, 48, CH * 4)
    srd_off(20, 8, 9, 48, CH * 4)
    srd_off(24, 10, 11, 49, CH * 2)
    e(f"  global_load_ushort v{vF}, v{t0}, s[12:13]")
    stamp("A", "start")
    for u in range(6):
        e(f"  s_mov_b32 s53, {u*16384}")
        e(f"  s_mov_b32 s54, {u*8192}")
        e(f"  buffer_load_dwordx4 v[{I0+4*u}:{I0+4*u+3}], v4, s[16:19], s53 offen{AIN}")
        e(f"  buffer_load_dwordx4 v[{O0+4*u}:{O0+4*u+3}], v4, s[20:23], s53 offen{AIN}")
        e(f"  buffer_load_dwordx2 v[{AN0+2*u}:{AN0+2*u+1}], v5, s[24:27], s54 offen{AIN}")
    e(f"  s_mov_b32 s53, {6*16384}")
    e(f"  s_mov_b32 s54, {6*8192}")
    e(f"  buffer_load_dword v{I0+24}, v6, s[16:19], s53 offen{AIN}")
    e(f"  buffer_load_dword v{O0+24}, v6, s[20:23], s53 offen{AIN}")
    e(f"  buffer_load_ushort v{AN0+12}, v7, s[24:27], s54 offen{AIN}")
    srd_off(28, 4, 5, 49, 51200)
    srd_off(32, 14, 15, 48, CH * 4, WS_RECA)
    srd_off(36, 14, 15, 49, CH * 2, WS_RECC)
    srd_off(40, 14, 15, 51, 1024, WS_TT)
    srd_off(44, 14, 15, 52, 8, WS_STATS)
    e(f"  ds_write_b64 v5, v[{t0}:{t1}] offset:{A_HIST}")
    e(f"  v_and_b32 v{t2}, 15, v0")
    e(f"  v_lshlrev_b32 v{t2}, 3, v{t2}")
    e(f"  v_add_u32 v{t2}, {A_SCR}, v{t2}")
    e(f"  ds_write_b64 v{t2}, v[{t0}:{t1}]")
    e(f"  s_mov_b32 s55, {(2**32 + BINE - 1)//BINE}      ; o/1600 magic")
    e(f"  s_mov_b32 s56, {(2**32 * KS)//E - 1}")
    e(f"  s_mov_b32 s57, {-BINE}")
    e("  s_waitcnt lgkmcnt(0)")
    e("  s_barrier")

    def rec(r):
        I, O, R = I0 + r, O0 + r, RK0 + r
        e(f"  v_mul_hi_u32_u24 v{t0}, s55, v{O}           ; bin")
        e(f"  v_mul_hi_u32_u24 v{t1}, s56, v{I}           ; i range")
        e(f"  v_mad_i32_i24 v{t2}, v{t0}, s57, v{O}       ; o local")
        e(f"  v_lshlrev_b32 v{t1}, 2, v{t1}")
        e(f"  v_lshl_add_u32 v{O}, v{t0}, 5, v{t1}        ; key*4")
        e(f"  v_lshl_or_b32 v{I}, v{t2}, 19, v{I}")
        e(f"  ds_add_rtn_u32 v{R}, v{O}, v{vOne} offset:{A_HIST}")
        e(f"  v_not_b32 v{I}, v{I}")

    def cospair(a):
        x, y = t3, t4
        e(f"  v_lshlrev_b32 v{x}, 16, v{a}")
        e(f"  v_and_b32 v{y}, 0xffff0000, v{a}")
        e(f"  v_mul_f32 v{x}, v{vF}, v{x}")
        e(f"  v_mul_f32 v{y}, v{vF}, v{y}")
        e(f"  v_cvt_pk_bf16_f32 v{t5}, v{x}, v{y}")
        e(f"  v_lshlrev_b32 v{x}, 16, v{t5}")
        e(f"  v_and_b32 v{y}, 0xffff0000, v{t5}")
        e(f"  v_mul_f32 v{x}, 0.15915494, v{x}")
        e(f"  v_mul_f32 v{y}, 0.15915494, v{y}")
        e(f"  v_fract_f32 v{x}, v{x}")
        e(f"  v_fract_f32 v{y}, v{y}")
        e(f"  v_cos_f32 v{x}, v{x}")
        e(f"  v_cos_f32 v{y}, v{y}")
        e("  s_nop 0")
        e(f"  v_cvt_pk_bf16_f32 v{a}, v{x}, v{y}")

    stamp("A", "hist zeroed barrier")
    for u in range(6):
        e(f"  s_waitcnt vmcnt({18-3*u})")
        if u in (0, 3):
            stamp("A", f"quad {u} arrived")
        if u == 0:
            e(f"  v_lshlrev_b32 v{vF}, 16, v{vF}")
        for r in range(4):
            rec(4 * u + r)
        cospair(AN0 + 2 * u)
        cospair(AN0 + 2 * u + 1)
    e("  s_waitcnt vmcnt(0)")
    stamp("A", "all arrived")
    rec(24)
    cospair(AN0 + 12)
    for u in range(4):
        e(f"  s_mov_b32 s53, {u*16384}")
        e(f"  buffer_load_dwordx4 v[{TB0+4*u}:{TB0+4*u+3}], v4, s[28:31], s53 offen{ATAB}")
    e("  s_waitcnt lgkmcnt(0)")
    e("  s_barrier")
    stamp("A", "hist barrier")
    e(f"  ds_read_b64 v[{t0}:{t1}], v5 offset:{A_HIST}")
    e("  s_waitcnt lgkmcnt(0)")
    e(f"  v_add_u32 v{t2}, v{t0}, v{t1}")
    e(f"  v_mov_b32 v{t3}, v{t2}")
    wave_scan_add(t3)
    e(f"  s_lshl_b32 s58, s50, 2")
    e(f"  s_add_u32 s58, s58, {A_SCR}")
    e(f"  v_mov_b32 v{t4}, s58")
    e("  s_mov_b32 exec_lo, 0")
    e("  s_mov_b32 exec_hi, 0x80000000")
    e(f"  ds_write_b32 v{t4}, v{t3}")
    e("  s_mov_b64 exec, -1")
    e("  s_waitcnt lgkmcnt(0)")
    e("  s_barrier")
    e(f"  v_and_b32 v{t4}, 15, v0")
    e(f"  v_lshlrev_b32 v{t4}, 2, v{t4}")
    e(f"  v_add_u32 v{t4}, {A_SCR}, v{t4}")
    e(f"  ds_read_b32 v{t4}, v{t4}")
    e("  s_waitcnt lgkmcnt(0)")
    e(f"  v_mov_b32 v{t5}, v{t4}")
    for sh in (1, 2, 4, 8):
        e("  s_nop 1")
        e(f"  v_add_u32_dpp v{t5}, v{t5}, v{t5} row_shr:{sh} {DPP}")
    e(f"  v_sub_u32 v{t5}, v{t5}, v{t4}")
    e("  s_nop 0")
    e(f"  v_readlane_b32 s58, v{t5}, s50")
    e(f"  v_sub_u32 v{t3}, v{t3}, v{t2}")
    e("  s_nop 0")
    e(f"  v_add_u32 v{t2}, s58, v{t3}         ; start0")
    e(f"  v_add_u32 v{t3}, v{t2}, v{t0}       ; start1")
    e(f"  ds_write_b64 v5, v[{t2}:{t3}] offset:{A_HIST}")
    e(f"  v_and_b32 v{t4}, 3, v0")
    e(f"  v_cmp_eq_u32 vcc, 0, v{t4}")
    e("  s_and_saveexec_b64 s[60:61], vcc")
    e(f"  buffer_store_dword v{t2}, v0, s[40:43], 0 offen")
    e("  s_mov_b64 exec, s[60:61]")
    e("  s_waitcnt lgkmcnt(0)")
    e("  s_barrier")
    stamp("A", "scan done")
    groups = [range(0, 9), range(9, 17), range(17, 25)]
    for g in groups:
        for r in g:
            e(f"  ds_read_b32 v{O0+r}, v{O0+r} offset:{A_HIST}")
        e("  s_waitcnt lgkmcnt(0)")
        for r in g:
            e(f"  v_add_u32 v{O0+r}, v{O0+r}, v{RK0+r}")
            e(f"  v_lshlrev_b32 v{RK0+r}, 2, v{O0+r}")
            e(f"  v_lshlrev_b32 v{O0+r}, 1, v{O0+r}")
            e(f"  ds_write_b32 v{RK0+r}, v{I0+r} offset:{A_A}")
            op = "ds_write_b16" if r % 2 == 0 else "ds_write_b16_d16_hi"
            e(f"  {op} v{O0+r}, v{AN0+r//2} offset:{A_C}")
    stamp("A", "scatter issued")
    gM, gR = 122, 123
    e(f"  v_mov_b32 v{gM}, 0")
    e(f"  v_mov_b32 v{gR}, 0")
    e("  s_mov_b32 s58, 0x7fff7fff")
    e("  s_waitcnt vmcnt(0)")
    for u in range(4):
        b = TB0 + 4 * u
        for k in range(4):
            e(f"  v_and_b32 v{b+k}, s58, v{b+k}")
        e(f"  v_pk_max_u16 v{b}, v{b}, v{b+1}")
        e(f"  v_pk_max_u16 v{b+2}, v{b+2}, v{b+3}")
        e(f"  v_pk_max_u16 v{b}, v{b}, v{b+2}")
        e(f"  v_lshrrev_b32 v{b+1}, 16, v{b}")
        e(f"  v_and_b32 v{b}, 0xffff, v{b}")
        e(f"  v_max_u32 v{b}, v{b}, v{b+1}")
        e("  s_nop 1")
        e(f"  v_max_u32_dpp v{b}, v{b}, v{b} quad_perm:[1,0,3,2] {DPP}")
        e(f"  v_max_u32 v{gM}, v{gM}, v{b}")
        e(f"  v_sub_u32 v{b}, 0x8000, v{b}")
        e(f"  v_and_b32 v{b}, 0x7fff, v{b}")
        e(f"  v_max_u32 v{gR}, v{gR}, v{b}")
    wave_max([gM, gR])
    e(f"  v_mov_b32 v{t4}, {A_SCR + 64}")
    e("  s_mov_b32 exec_lo, 0")
    e("  s_mov_b32 exec_hi, 0x80000000")
    e(f"  ds_max_u32 v{t4}, v{gM}")
    e(f"  ds_max_u32 v{t4}, v{gR} offset:4")
    e("  s_mov_b64 exec, -1")
    e("  s_waitcnt lgkmcnt(0)")
    e("  s_barrier")
    stamp("A", "scatter barrier")
    d = 8
    for u in range(6):
        e(f"  v_add_u32 v{t0}, {u*16384}, v4")
        e(f"  ds_read_b128 v[{d+4*u}:{d+4*u+3}], v{t0} offset:{A_A}")
    for u in range(3):
        e(f"  v_add_u32 v{t0}, {u*16384}, v4")
        e(f"  ds_read_b128 v[{d+24+4*u}:{d+24+4*u+3}], v{t0} offset:{A_C}")
    e(f"  v_mov_b32 v{t4}, {A_SCR + 64}")
    e(f"  ds_read_b64 v[{t2}:{t3}], v{t4}")
    for u in range(6):
        e(f"  s_mov_b32 s53, {u*16384}")
        e(f"  s_waitcnt lgkmcnt({9-u})")
        e(f"  buffer_store_dwordx4 v[{d+4*u}:{d+4*u+3}], v4, s[32:35], s53 offen{AST}")
    for u in range(3):
        e(f"  s_mov_b32 s53, {u*16384}")
        e(f"  s_waitcnt lgkmcnt({3-u})")
        e(f"  buffer_store_dwordx4 v[{d+24+4*u}:{d+24+4*u+3}], v4, s[36:39], s53 offen{AST}")
    stamp("A", "stores issued")
    if STAMP == "A":
        e("  s_waitcnt vmcnt(0)")
    stamp("A", "stores done")
    stamp_dump("A", 14, 50)
    e("  s_cmp_lt_u32 s50, 4")
    e("  s_cbranch_scc0 LA_t1")
    e(f"  v_add_u32 v{t0}, {6*16384}, v4")
    e(f"  ds_read_b128 v[60:63], v{t0} offset:{A_A}")
    e(f"  s_mov_b32 s53, {6*16384}")
    e("  s_waitcnt lgkmcnt(0)")
    e(f"  buffer_store_dwordx4 v[60:63], v4, s[32:35], s53 offen{AST}")
    lab("LA_t1")
    e("  s_cmp_lt_u32 s50, 2")
    e("  s_cbranch_scc0 LA_t2")
    e(f"  v_add_u32 v{t0}, {3*16384}, v4")
    e(f"  ds_read_b128 v[64:67], v{t0} offset:{A_C}")
    e(f"  s_mov_b32 s53, {3*16384}")
    e("  s_waitcnt lgkmcnt(0)")
    e(f"  buffer_store_dwordx4 v[64:67], v4, s[36:39], s53 offen{AST}")
    lab("LA_t2")
    e("  s_cmp_eq_u32 s50, 15")
    e("  s_cbranch_scc0 LA_end")
    e("  s_waitcnt lgkmcnt(0)")
    e(f"  v_mov_b32 v{t0}, 0")
    e("  s_mov_b32 exec_lo, 1")
    e("  s_mov_b32 exec_hi, 0")
    e(f"  buffer_store_dwordx2 v[{t2}:{t3}], v{t0}, s[44:47], 0 offen")
    lab("LA_end")
    e("  s_endpgm")

class VmQ:
    def __init__(self):
        self.q = []
    def issue(self, tag):
        self.q.append(tag)
    def wait(self, tag):
        if tag not in self.q:
            return
        idx = max(i for i, t in enumerate(self.q) if t == tag)
        n = len(self.q) - 1 - idx
        assert n <= 63
        e(f"  s_waitcnt vmcnt({n})")
        self.q = self.q[idx + 1:]
    def drain(self):
        e("  s_waitcnt vmcnt(0)")
        self.q = []

def kernel_b():
    vH8, vIA, vIB, vCB, vOne = 1, 2, 4, 6, 7
    G0 = 8
    OA, CH_ = 40, 44
    P0 = 48
    t0, t1, t2, t3, t4, t5, t6, t7, t8 = range(56, 65)
    BS, LN, CU = 65, 69, 73
    vL16 = 77
    RCP, RA0 = 80, 96
    def RA(s, j): return RA0 + 4 * j + s
    def RCp(s, j): return RCP + 4 * (j // 2) + s
    MR, RBF, CEN = 96, 110, 117
    WT = 80
    WD, WU, WS, WR = 118, 120, 122, 124
    sW, sMag, sSc, sInv, sMode, sMsk, sN80 = 50, 53, 54, 55, 56, 57, 58
    sOv = 66
    vm = VmQ()
    e(f".globl {KB}")
    e(".p2align 8")
    e(f".type {KB},@function")
    lab(KB)
    e(f"  s_cmp_ge_u32 s2, {NB}")
    e("  s_cbranch_scc1 LB_end")
    e("  s_load_dwordx2 s[68:69], s[0:1], 0      ; m")
    e("  s_load_dwordx2 s[70:71], s[0:1], 24     ; dist")
    e("  s_load_dwordx2 s[40:41], s[0:1], 40     ; centers")
    e("  s_load_dwordx4 s[44:47], s[0:1], 56")
    e("  s_load_dwordx4 s[72:75], s[0:1], 72")
    e("  s_load_dwordx2 s[76:77], s[0:1], 88     ; out")
    e("  s_load_dwordx2 s[78:79], s[0:1], 104    ; ws")
    e("  v_lshrrev_b32 v8, 6, v0")
    e(f"  v_and_b32 v{vL16}, 15, v0")
    e(f"  v_readfirstlane_b32 s{sW}, v8")
    e(f"  v_and_b32 v9, 1, v0")
    e(f"  v_lshlrev_b32 v{vH8}, 3, v9")
    e(f"  v_lshlrev_b32 v{vIA+1}, 4, v9")
    e(f"  v_lshlrev_b32 v{vIB+1}, 4, v9")
    e(f"  v_mov_b32 v{vCB}, {2047*ROWB}")
    e(f"  v_mov_b32 v{vOne}, 1")
    e(f"  s_mul_i32 s80, s2, {BINE*32}")
    e(f"  s_mul_i32 s81, s2, {BINE*2}")
    e(f"  s_mov_b32 s{sMode}, 0")
    e(f"  s_mov_b32 s{sMsk}, 0x7ffff")
    e(f"  s_mov_b32 s{sN80}, {-ROWB}")
    e("  s_waitcnt lgkmcnt(0)")
    e(f"  s_add_u32 s82, s78, {WS_RECA}")
    e("  s_addc_u32 s83, s79, 0")
    srd(4, 82, 83, T, 4)
    e(f"  s_add_u32 s82, s78, {WS_RECC}")
    e("  s_addc_u32 s83, s79, 0")
    srd(8, 82, 83, T, 2)
    srd(12, 68, 69, E, 32)
    e(f"  s_add_u32 s82, s78, {WS_TT}")
    e("  s_addc_u32 s83, s79, 0")
    srd(16, 82, 83, NCH * 1024)
    e(f"  s_add_u32 s82, s78, {WS_STATS}")
    e("  s_addc_u32 s83, s79, 0")
    srd(20, 82, 83, NCH * 8)
    srd_off(24, 68, 69, 80, BINE * 32)
    srd_off(28, 76, 77, 80, BINE * 32)
    srd_off(32, 70, 71, 81, BINE * 2)
    lab("LB_start")
    stamp("B", "start")
    g = t0
    e(f"  v_and_b32 v{t1}, 63, v0")
    e(f"  v_lshrrev_b32 v{g}, 4, v{t1}            ; g = lane>>4")
    e(f"  s_lshl_b32 s80, s{sW}, 4")
    e(f"  v_add_u32 v{t1}, s80, v{g}              ; 16w+g")
    e(f"  s_lshl_b32 s81, s2, 2")
    e(f"  v_lshlrev_b32 v{t2}, 10, v{t1}")
    e(f"  v_add_u32 v{t2}, s81, v{t2}")
    TT0, ST0 = RA0, RA0 + 8
    for s in range(4):
        e(f"  v_add_u32 v{t3}, {s*4096}, v{t2}")
        e(f"  buffer_load_dwordx2 v[{TT0+2*s}:{TT0+2*s+1}], v{t3}, s[16:19], 0 offen")
        vm.issue("T")
    e(f"  v_and_b32 v{t3}, 63, v0")
    e(f"  v_lshlrev_b32 v{t3}, 3, v{t3}")
    for s in range(4):
        e(f"  buffer_load_dwordx2 v[{ST0+2*s}:{ST0+2*s+1}], v{t3}, s[20:23], 0 offen offset:{s*512}")
        vm.issue("ST")
    for k in range(4):
        e(f"  v_mov_b32 v{P0+k}, 0")
    e(f"  v_lshlrev_b32 v{t3}, 4, v0")
    for u in range(8):
        if u == 4:
            e(f"  v_add_u32 v{t3}, 0x10000, v{t3}")
        e(f"  ds_write_b128 v{t3}, v[{P0}:{P0+3}] offset:{(u%4)*16384}")
    vm.wait("T")
    stamp("B", "T arrived")
    e(f"  s_mov_b32 s80, {CH}")
    for s in range(4):
        e(f"  v_add_u32 v{t3}, {4*s}, v{t1}")
        e(f"  v_mul_lo_u32 v{t3}, s80, v{t3}")
        e(f"  v_add_u32 v{BS+s}, v{t3}, v{TT0+2*s}")
        e(f"  v_sub_u32 v{LN+s}, v{TT0+2*s+1}, v{TT0+2*s}")
    vm.wait("ST")
    a, b = ST0, ST0 + 1
    e(f"  v_max3_u32 v{a}, v{ST0}, v{ST0+2}, v{ST0+4}")
    e(f"  v_max3_u32 v{b}, v{ST0+1}, v{ST0+3}, v{ST0+5}")
    e(f"  v_max_u32 v{a}, v{a}, v{ST0+6}")
    e(f"  v_max_u32 v{b}, v{b}, v{ST0+7}")
    wave_max([a, b])
    e("  s_nop 0")
    e(f"  v_readlane_b32 s80, v{a}, 63")
    e(f"  v_readlane_b32 s81, v{b}, 63")
    e("  s_nop 0")
    e("  s_lshr_b32 s82, s80, 7")
    e("  s_sub_u32 s81, 0x8000, s81")
    e("  s_lshr_b32 s81, s81, 7")
    e("  s_sub_u32 s83, s82, s81")
    e(f"  s_cmp_eq_u32 s{sMode}, 2")
    e("  s_cbranch_scc1 LB_float")
    e("  s_cmp_ge_u32 s80, 0x7f80")
    e("  s_cbranch_scc1 LB_float")
    e("  s_cmp_lt_u32 s82, 32")
    e("  s_cbranch_scc1 LB_float")
    e("  s_cmp_gt_u32 s82, 200")
    e("  s_cbranch_scc1 LB_float")
    e("  s_cmp_gt_i32 s83, 10")
    e("  s_cbranch_scc1 LB_float")
    e(f"  s_mov_b32 s{sMag}, 0x4b400000")
    e("  s_sub_u32 s83, 275, s82")
    e(f"  s_lshl_b32 s{sSc}, s83, 23")
    e("  s_sub_u32 s83, s82, 21")
    e(f"  s_lshl_b32 s{sInv}, s83, 23")
    e("  s_branch LB_fast")
    lab("LB_float")
    e(f"  s_mov_b32 s{sMode}, 2")
    e(f"  s_mov_b32 s{sMag}, 0")
    e(f"  s_mov_b32 s{sSc}, 1.0")
    e(f"  s_mov_b32 s{sInv}, 1.0")
    for s in range(4):
        e(f"  v_mov_b32 v{CU+s}, 0")
    e("  s_waitcnt lgkmcnt(0)")
    e("  s_barrier")
    e("  s_branch LB_generic")

    lab("LB_fast")
    LZ = G0
    for s in range(4):
        lp, acc, lo = t2, t3, t4
        e(f"  v_min_u32 v{lp}, 0x80, v{LN+s}")
        e(f"  v_mov_b32 v{acc}, v{lp}")
        e(f"  v_mov_b32 v{CU+s}, v{lp}")
        e(f"  v_mov_b32 v{lo}, v{vL16}")
        for j in range(8):
            hi = t6
            e(f"  v_lshrrev_b32 v{hi}, 3, v{acc}")
            e(f"  v_add_u32 v{acc}, v{acc}, v{lp}")
            e(f"  v_cmp_lt_u32 vcc, v{lo}, v{hi}")
            e(f"  v_add_u32 v{t7}, v{BS+s}, v{lo}")
            e(f"  v_add_u32 v{lo}, v{hi}, v{vL16}")
            e(f"  v_cndmask_b32 v{RA(s,j)}, 0, v{t7}, vcc")
            e("  s_mov_b64 exec, vcc")
            e(f"  buffer_load_ushort v{LZ+8*s+j}, v{RA(s,j)}, s[8:11], 0 idxen{BREC}")
            vm.issue(f"C{s}")
            e(f"  buffer_load_dword v{RA(s,j)}, v{RA(s,j)}, s[4:7], 0 idxen{BREC}")
            vm.issue(f"A{s}")
            e("  s_mov_b64 exec, -1")
        if s == 1:
            vm.wait("A0")
    stamp("B", "rec loads issued")
    e("  s_mov_b32 s80, 0x05040100")
    for s in range(4):
        vm.wait(f"C{s}")
        for jj in range(4):
            e(f"  v_perm_b32 v{RCp(s,2*jj)}, v{LZ+8*s+2*jj+1}, v{LZ+8*s+2*jj}, s80")
    e("  s_waitcnt vmcnt(0) lgkmcnt(0)")
    vm.q = []
    stamp("B", "rec arrived")
    e("  s_barrier")
    stamp("B", "after barrier")

    def dec_idx(ra, dst):
        e(f"  v_bfi_b32 v{dst}, v{ra}, 0, s{sMsk}")
    def dec_rest(ra, rc, hi_half, s):
        e(f"  v_bfe_u32 v{t7}, v{ra}, 19, 11")
        if hi_half:
            e(f"  v_and_b32 v{t8}, 0xffff0000, v{rc}")
        else:
            e(f"  v_lshlrev_b32 v{t8}, 16, v{rc}")
        e(f"  v_mad_i32_i24 v{OA+s}, v{t7}, s{sN80}, v{vCB}")
        e(f"  v_mul_f32 v{CH_+s}, s{sSc}, v{t8}")
        e(f"  ds_add_u32 v{OA+s}, v{vOne} offset:64")
    def gather(s, h, src, tag):
        g0 = G0 + 8 * s + 4 * h
        vi = vIA if h == 0 else vIB
        qp = "[0,0,2,2]" if h == 0 else "[1,1,3,3]"
        e(f"  v_mov_b32_dpp v{vi}, v{src} quad_perm:{qp} {DPP}")
        if "nogather" in ABL:
            e(f"  v_mov_b32 v{vi}, -1")
        e(f"  buffer_load_dwordx4 v[{g0}:{g0+3}], v[{vi}:{vi+1}], s[12:15], 0 idxen offen")
        vm.issue(tag)
    def consume(s, h, isfloat):
        qp = "[0,0,2,2]" if h == 0 else "[1,1,3,3]"
        g0 = G0 + 8 * s + 4 * h
        ad, ch, cl = t0 + 3 * h, t1 + 3 * h, t2 + 3 * h
        e(f"  v_mov_b32_dpp v{ch}, v{CH_+s} quad_perm:{qp} {DPP}")
        e(f"  v_add_u32_dpp v{ad}, v{OA+s}, v{vH8} quad_perm:{qp} {DPP}")
        e(f"  v_lshrrev_b32 v{cl}, 16, v{ch}")
        for k in range(4):
            e(f"  v_dot2_f32_bf16 v{P0+2*k+1}, v{g0+k}, v{ch}, s{sMag}")
            e(f"  v_dot2_f32_bf16 v{P0+2*k}, v{g0+k}, v{cl}, s{sMag}")
            if "noatom" in ABL:
                continue
            if isfloat:
                e(f"  ds_add_f32 v{ad}, v{P0+2*k} offset:{16*k}")
                e(f"  ds_add_f32 v{ad}, v{P0+2*k+1} offset:{16*k+4}")
            else:
                e(f"  ds_add_u64 v{ad}, v[{P0+2*k}:{P0+2*k+1}] offset:{16*k}")

    tI = t6
    for s in range(4):
        dec_idx(RA(s, 0), tI)
        dec_rest(RA(s, 0), RCp(s, 0), False, s)
        gather(s, 0, tI, f"g0_{s}_0")
        gather(s, 1, tI, f"g0_{s}_1")
    def epi_loads():
        gg, nn = t7, vL16
        e(f"  v_and_b32 v{t8}, 63, v0")
        e(f"  v_lshrrev_b32 v{gg}, 4, v{t8}")
        e(f"  v_lshlrev_b32 v{t8}, 6, v{gg}")
        e(f"  v_lshl_add_u32 v{t8}, v{nn}, 1, v{t8}     ; 64g + 2n")
        for k, off in enumerate((0, 32, 256, 288)):
            e(f"  global_load_ushort v{WT+k}, v{t8}, s[72:73] offset:{off}"); vm.issue("E")
        for k in range(2):
            e(f"  global_load_ushort v{WT+8+k}, v{t8}, s[44:45] offset:{32*k}"); vm.issue("E")
            e(f"  global_load_ushort v{WT+10+k}, v{t8}, s[46:47] offset:{32*k}"); vm.issue("E")
        e(f"  v_lshlrev_b32 v{t8}, 7, v{gg}")
        e(f"  v_lshl_add_u32 v{t8}, v{nn}, 1, v{t8}     ; 128g + 2n")
        for k in range(4):
            e(f"  global_load_ushort v{WT+4+k}, v{t8}, s[74:75] offset:{32*k}"); vm.issue("E")
        e(f"  v_lshlrev_b32 v{t8}, 2, v{gg}")
        e(f"  global_load_dword v{CEN}, v{t8}, s[40:41]"); vm.issue("E")
        e(f"  s_lshl_b32 s80, s{sW}, 9")
        e(f"  v_lshlrev_b32 v{t8}, 5, v{nn}")
        e(f"  v_lshl_add_u32 v{t8}, v{gg}, 3, v{t8}")
        e(f"  v_add_u32 v{t8}, s80, v{t8}")
        for u in range(7):
            e(f"  s_mov_b32 s81, {u*8192}")
            e(f"  buffer_load_dwordx2 v[{MR+2*u}:{MR+2*u+1}], v{t8}, s[24:27], s81 offen{BM}"); vm.issue("E")
        e(f"  s_lshl_b32 s80, s{sW}, 5")
        e(f"  v_lshl_add_u32 v{t8}, v{nn}, 1, s80")
        for u in range(7):
            e(f"  buffer_load_ushort v{RBF+u}, v{t8}, s[32:35], 0 offen offset:{u*512}"); vm.issue("E")

    def epi_prep():
        e(f"  v_lshl_or_b32 v{WD}, v{WT+1}, 16, v{WT}")
        e(f"  v_lshl_or_b32 v{WD+1}, v{WT+3}, 16, v{WT+2}")
        e(f"  v_lshl_or_b32 v{WU}, v{WT+5}, 16, v{WT+4}")
        e(f"  v_lshl_or_b32 v{WU+1}, v{WT+7}, 16, v{WT+6}")
        e(f"  v_lshl_or_b32 v{WR}, v{WT+9}, 16, v{WT+8}")
        e(f"  v_lshl_or_b32 v{WS}, v{WT+11}, 16, v{WT+10}")
        e(f"  v_mov_b32 v{WR+1}, 0")
        e(f"  v_mov_b32 v{WS+1}, 0")
        c0, c1 = WT, WT + 1
        e(f"  v_lshlrev_b32 v{c0}, 16, v{CEN}")
        e(f"  v_and_b32 v{c1}, 0xffff0000, v{CEN}")
        e("  s_mov_b32 s80, 0xc1200000           ; -10.0")
        e("  s_mov_b32 s81, 0x3fb8aa3b           ; log2(e)")
        x, y, p = WT + 2, WT + 3, WT + 4
        for u in range(7):
            r = RBF + u
            e(f"  v_lshlrev_b32 v{r}, 16, v{r}")
            e(f"  v_sub_f32 v{x}, v{r}, v{c0}")
            e(f"  v_sub_f32 v{y}, v{r}, v{c1}")
            for op in ("sq", "m10", "exp"):
                e(f"  v_cvt_pk_bf16_f32 v{p}, v{x}, v{y}")
                e(f"  v_lshlrev_b32 v{x}, 16, v{p}")
                e(f"  v_and_b32 v{y}, 0xffff0000, v{p}")
                if op == "sq":
                    e(f"  v_mul_f32 v{x}, v{x}, v{x}")
                    e(f"  v_mul_f32 v{y}, v{y}, v{y}")
                elif op == "m10":
                    e(f"  v_mul_f32 v{x}, s80, v{x}")
                    e(f"  v_mul_f32 v{y}, s80, v{y}")
                else:
                    e(f"  v_mul_f32 v{x}, s81, v{x}")
                    e(f"  v_mul_f32 v{y}, s81, v{y}")
                    e(f"  v_exp_f32 v{x}, v{x}")
                    e(f"  v_exp_f32 v{y}, v{y}")
                    e("  s_nop 0")
            e(f"  v_cvt_pk_bf16_f32 v{r}, v{x}, v{y}")

    for j in range(8):
        if "nobar" not in ABL:
            e("  s_barrier")
        if j in (0, 1, 2, 4, 6, 7):
            stamp("B", f"phase {j} begin")
        for s in range(4):
            last = (j == 7)
            if not last:
                dec_idx(RA(s, j + 1), tI)
            vm.wait(f"g{j}_{s}_0")
            consume(s, 0, False)
            if not last:
                gather(s, 0, tI, f"g{j+1}_{s}_0")
            vm.wait(f"g{j}_{s}_1")
            consume(s, 1, False)
            if not last:
                gather(s, 1, tI, f"g{j+1}_{s}_1")
                dec_rest(RA(s, j + 1), RCp(s, j + 1), (j + 1) % 2 == 1, s)
            if j == 6 and s == 3:
                epi_loads()
    lab("LB_generic")
    stamp("B", "main done")
    gRA, gRC = t7, t8
    for s in range(4):
        lab(f"LB_gen{s}")
        e(f"  v_add_u32 v{t0}, v{CU+s}, v{vL16}")
        e(f"  v_cmp_lt_u32 vcc, v{t0}, v{LN+s}")
        e(f"  s_cbranch_vccz LB_gen{s}_done")
        e(f"  v_add_u32 v{t0}, v{BS+s}, v{t0}")
        e(f"  v_add_u32 v{CU+s}, 16, v{CU+s}")
        e(f"  v_cndmask_b32 v{t0}, -1, v{t0}, vcc")
        e(f"  buffer_load_dword v{G0+8}, v{t0}, s[4:7], 0 idxen")
        e(f"  buffer_load_ushort v{G0+9}, v{t0}, s[8:11], 0 idxen")
        e("  s_waitcnt vmcnt(0)")
        q0 = list(vm.q)
        dec_idx(G0 + 8, tI)
        dec_rest(G0 + 8, G0 + 9, False, 0)
        gather(0, 0, tI, "x")
        gather(0, 1, tI, "x")
        e("  s_waitcnt vmcnt(0)")
        vm.q = q0
        e(f"  s_cmp_eq_u32 s{sMode}, 2")
        e(f"  s_cbranch_scc1 LB_gen{s}_f")
        consume(0, 0, False)
        consume(0, 1, False)
        e(f"  s_branch LB_gen{s}")
        lab(f"LB_gen{s}_f")
        consume(0, 0, True)
        consume(0, 1, True)
        e(f"  s_branch LB_gen{s}")
        lab(f"LB_gen{s}_done")
    e(f"  s_cmp_eq_u32 s{sMode}, 2")
    e("  s_cbranch_scc0 LB_epi")
    epi_loads()
    lab("LB_epi")
    e("  s_waitcnt vmcnt(0)")
    vm.q = []
    stamp("B", "epi loads arrived")
    epi_prep()
    e("  s_waitcnt lgkmcnt(0)")
    e("  s_barrier")
    stamp("B", "final barrier")
    g = t0
    e(f"  v_and_b32 v{t1}, 63, v0")
    e(f"  v_lshrrev_b32 v{g}, 4, v{t1}")
    e(f"  s_lshl_b32 s80, s{sW}, 4")
    e(f"  v_add_u32 v{t1}, s80, v{vL16}")
    e(f"  v_mul_u32_u24 v{t1}, {ROWB}, v{t1}")
    e(f"  v_lshl_add_u32 v{t2}, v{g}, 4, v{t1}")
    e(f"  s_lshl_b32 s80, s{sW}, 9")
    e(f"  v_lshlrev_b32 v{t6}, 5, v{vL16}")
    e(f"  v_lshl_add_u32 v{t6}, v{g}, 3, v{t6}")
    e(f"  v_add_u32 v{t6}, s80, v{t6}")
    e(f"  s_mov_b64 s[{sOv}:{sOv+1}], 0")
    WDS = 78
    for k in range(2):
        e(f"  v_lshlrev_b32 v{t3}, 16, v{WD+k}")
        e(f"  v_and_b32 v{t4}, 0xffff0000, v{WD+k}")
        e(f"  v_mul_f32 v{t3}, s{sInv}, v{t3}")
        e(f"  v_mul_f32 v{t4}, s{sInv}, v{t4}")
        e(f"  v_cvt_pk_bf16_f32 v{WDS+k}, v{t3}, v{t4}")
    A_ = lambda u: 8 + 12 * (u % 4)
    G_ = lambda u: 8 + 12 * (u % 4) + 4
    R_ = lambda u: 8 + 12 * (u % 4) + 8
    PK, RP = 80, 82
    X0, X1 = 84, 85
    e(f"  v_mov_b32 v{RP+1}, 0")
    def tile_reads(u):
        e(f"  v_add_u32 v{t3}, {u*256*ROWB}, v{t2}")
        e(f"  v_add_u32 v{t4}, {u*256*ROWB}, v{t1}")
        e(f"  ds_read_b128 v[{A_(u)}:{A_(u)+3}], v{t3}")
        e(f"  ds_read_b32 v{G_(u)}, v{t4} offset:64")
    def tile_stage1(u):
        a, gg, rr = A_(u), G_(u), R_(u)
        e(f"  v_cmp_lt_u32 vcc, 0x1ff, v{gg}")
        e(f"  s_or_b64 s[{sOv}:{sOv+1}], s[{sOv}:{sOv+1}], vcc")
        e(f"  s_cmp_eq_u32 s{sMode}, 2")
        e(f"  s_cbranch_scc1 LB_e{u}_f")
        e(f"  v_mul_u32_u24 v{gg}, 0x12d, v{gg}")
        e(f"  v_lshlrev_b32 v{gg+1}, 22, v{gg}")
        for k in (0, 2):
            e(f"  v_sub_u32 v{a+k}, v{a+k}, v{gg+1}")
            e(f"  v_sub_u32 v{a+k+1}, v{a+k+1}, v{gg+1}")
            e(f"  v_ashrrev_i32 v{X0}, 22, v{a+k}")
            e(f"  v_add_u32 v{X0}, v{X0}, v{gg}")
            e(f"  v_ashrrev_i32 v{X0}, 10, v{X0}")
            e(f"  v_sub_u32 v{a+k+1}, v{a+k+1}, v{X0}")
        for k in range(4):
            e(f"  v_cvt_f32_i32 v{a+k}, v{a+k}")
        lab(f"LB_e{u}_f")
        if DBG == "S":
            e(f"  s_mul_i32 s84, s2, {BINE*64}")
            e(f"  s_add_u32 s84, s84, {64<<20}")
            e(f"  s_add_u32 s84, s84, {u*256*64}")
            e(f"  s_add_u32 s86, s78, s84")
            e(f"  s_addc_u32 s87, s79, 0")
            e(f"  v_lshlrev_b32 v{t7}, 1, v{t6}")
            e(f"  global_store_dwordx4 v{t7}, v[{a}:{a+3}], s[86:87]")
            e("  s_nop 2")
        e(f"  v_cvt_pk_bf16_f32 v{PK}, v{a}, v{a+1}")
        e(f"  v_cvt_pk_bf16_f32 v{PK+1}, v{a+2}, v{a+3}")
        e(f"  v_mov_b32 v{RP}, v{RBF+u}")
        e("  s_nop 1")
        e(f"  v_mfma_f32_16x16x16_bf16 v[{a}:{a+3}], v[{WDS}:{WDS+1}], v[{PK}:{PK+1}], 0")
        e(f"  v_mfma_f32_16x16x16_bf16 v[{gg}:{gg+3}], v[{WS}:{WS+1}], v[{RP}:{RP+1}], 0")
        e(f"  v_mfma_f32_16x16x16_bf16 v[{rr}:{rr+3}], v[{WR}:{WR+1}], v[{RP}:{RP+1}], 0")
    def tile_stage2(u):
        a, gg = A_(u), G_(u)
        for k in range(4):
            e(f"  v_mul_f32 v{a+k}, v{a+k}, v{gg+k}")
        e(f"  v_cvt_pk_bf16_f32 v{PK}, v{a}, v{a+1}")
        e(f"  v_cvt_pk_bf16_f32 v{PK+1}, v{a+2}, v{a+3}")
        e("  s_nop 1")
        e(f"  v_mfma_f32_16x16x16_bf16 v[{gg}:{gg+3}], v[{WU}:{WU+1}], v[{PK}:{PK+1}], 0")
    def tile_stage3(u):
        a, gg, rr = A_(u), G_(u), R_(u)
        m0, m1 = MR + 2 * u, MR + 2 * u + 1
        e(f"  v_lshlrev_b32 v{a}, 16, v{m0}")
        e(f"  v_and_b32 v{a+1}, 0xffff0000, v{m0}")
        e(f"  v_lshlrev_b32 v{a+2}, 16, v{m1}")
        e(f"  v_and_b32 v{a+3}, 0xffff0000, v{m1}")
        for k in range(4):
            e(f"  v_fmac_f32 v{a+k}, v{gg+k}, v{rr+k}")
        e(f"  v_cvt_pk_bf16_f32 v{m0}, v{a}, v{a+1}")
        e(f"  v_cvt_pk_bf16_f32 v{m1}, v{a+2}, v{a+3}")
        e(f"  s_mov_b32 s81, {u*8192}")
        e(f"  buffer_store_dwordx2 v[{m0}:{m1}], v{t6}, s[28:31], s81 offen{BOUT}")
    def guarded(u, fn, tag):
        if u == 6:
            e(f"  s_cmp_ge_u32 s{sW}, 4")
            e(f"  s_cbranch_scc1 LB_skip6{tag}")
        fn(u)
        if u == 6:
            lab(f"LB_skip6{tag}")
    for grp in ((0, 1, 2, 3), (4, 5, 6)):
        for u in grp:
            guarded(u, tile_reads, "a")
        e("  s_waitcnt lgkmcnt(0)")
        for u in grp:
            guarded(u, tile_stage1, "b")
        e("  s_nop 7")
        for u in grp:
            guarded(u, tile_stage2, "c")
        e("  s_nop 7")
        for u in grp:
            guarded(u, tile_stage3, "d")
    stamp("B", "epilogue done")
    stamp_dump("B", 78, sW)
    e(f"  s_cmp_eq_u32 s{sMode}, 2")
    e("  s_cbranch_scc1 LB_end")
    e(f"  s_cmp_eq_u64 s[{sOv}:{sOv+1}], 0")
    e("  s_cbranch_scc1 LB_noov")
    e(f"  v_mov_b32 v{t3}, {B_FLAG}")
    e(f"  ds_write_b32 v{t3}, v{vOne}")
    lab("LB_noov")
    e("  s_waitcnt lgkmcnt(0)")
    e("  s_barrier")
    e(f"  v_mov_b32 v{t3}, {B_FLAG}")
    e(f"  ds_read_b32 v{t3}, v{t3}")
    e("  s_waitcnt lgkmcnt(0)")
    e(f"  v_readfirstlane_b32 s80, v{t3}")
    e("  s_cmp_eq_u32 s80, 0")
    e("  s_cbranch_scc1 LB_end")
    e("  s_waitcnt vmcnt(0)")
    e("  s_barrier")
    e(f"  s_mov_b32 s{sMode}, 2")
    e("  s_branch LB_start")
    lab("LB_end")
    e("  s_endpgm")

def descriptor(name, vgpr, sgpr):
    e(".p2align 6")
    e(f".amdhsa_kernel {name}")
    e(f"  .amdhsa_next_free_vgpr {vgpr}")
    e(f"  .amdhsa_next_free_sgpr {sgpr}")
    e(f"  .amdhsa_accum_offset {vgpr}")
    e("  .amdhsa_group_segment_fixed_size 0")
    e("  .amdhsa_kernarg_size 112")
    e("  .amdhsa_user_sgpr_count 2")
    e("  .amdhsa_user_sgpr_kernarg_segment_ptr 1")
    e("  .amdhsa_system_sgpr_workgroup_id_x 1")
    e("  .amdhsa_float_denorm_mode_32 3")
    e(".end_amdhsa_kernel")

header = open("standalone__molecular_angular_gemnet__graph.s.ref").read().split("; Override launch")[0]
e(header.rstrip())
for _k in os.environ.get("LIST", "AB"):
    if _k == "A":
        e(f"; @launch kernel={KA} grid=({NCH},1,1) block=(1024,1,1) lds={A_LDS}")
    else:
        e(f"; @launch kernel={KB} grid=({NB},1,1) block=(1024,1,1) lds={B_LDS}")
e('.amdgcn_target "amdgcn-amd-amdhsa--gfx950"')
e(".text")
kernel_a()
kernel_b()
e('.section .rodata,"a"')
descriptor(KA, 128, 102)
descriptor(KB, 128, 102)
dst = sys.argv[1] if len(sys.argv) > 1 else "standalone__molecular_angular_gemnet__graph.s"
open(dst, "w").write("\n".join(out) + "\n")
print("wrote", dst, len(out), "lines")
```

```python
import sys, os
DBG = os.environ.get("DBG", "")
ABL = os.environ.get("ABL", "").split(",")
def pol(name, default=""):
    v = os.environ.get(name, default)
    return (" " + v.replace("+", " ")) if v else ""
PF = int(os.environ.get("PF", "0"))
PFLEAD = int(os.environ.get("PFLEAD", "8"))
XMAP = int(os.environ.get("XMAP", "0"))
AIN = pol("AIN"); ATAB = pol("ATAB"); AST = pol("AST"); BREC = pol("BREC"); BOUT = pol("BOUT"); BM = pol("BM")

KA = "standalone__molecular_angular_gemnet__graph_part_kernel"
KB = "standalone__molecular_angular_gemnet__graph_kernel"

E = 400000
T = 6400000
NCH = 250
CH = 25600
NB = 250
BINE = 1600
KS = 8

WS_RECA = 256
WS_RECC = WS_RECA + T * 4
WS_TT = WS_RECA + T * 6
WS_STATS = WS_TT + NCH * 1024

A_HIST = 0
A_C = 8192
A_A = A_C + CH * 2
A_SCR = A_A + CH * 4
A_LDS = A_SCR + 128

ROWB = 80
B_FLAG = BINE * ROWB
B_LDS = 131072

out = []
def e(s=""):
    out.append(s)
def lab(s):
    out.append(s + ":")

DPP = "row_mask:0xf bank_mask:0xf"

def srd(reg, lo, hi, size, stride=0):
    e(f"  s_mov_b32 s{reg}, s{lo}")
    e(f"  s_and_b32 s{reg+1}, s{hi}, 0xffff")
    if stride:
        e(f"  s_or_b32 s{reg+1}, s{reg+1}, {stride << 16:#x}")
    e(f"  s_mov_b32 s{reg+2}, {size}")
    e(f"  s_mov_b32 s{reg+3}, 0x20000")

def srd_off(reg, lo, hi, off_sreg, size, const=0, stride=0):
    e(f"  s_add_u32 s{reg}, s{lo}, s{off_sreg}")
    e(f"  s_addc_u32 s{reg+1}, s{hi}, 0")
    if const:
        e(f"  s_add_u32 s{reg}, s{reg}, {const}")
        e(f"  s_addc_u32 s{reg+1}, s{reg+1}, 0")
    e(f"  s_and_b32 s{reg+1}, s{reg+1}, 0xffff")
    if stride:
        e(f"  s_or_b32 s{reg+1}, s{reg+1}, {stride << 16:#x}")
    e(f"  s_mov_b32 s{reg+2}, {size}")
    e(f"  s_mov_b32 s{reg+3}, 0x20000")

STAMP = os.environ.get("STAMP", "")
stamp_n = [0]
def stamp(kern, name):
    if STAMP != kern:
        return
    k = stamp_n[0]; stamp_n[0] += 1
    assert k < 16
    e(f"  s_memrealtime s[84:85]")
    e("  s_waitcnt lgkmcnt(0)")
    e(f"  s_mov_b32 s{86+k}, s84")
    if k == 0:
        e("  s_memtime s[84:85]")
        e("  s_waitcnt lgkmcnt(0)")
        e("  s_mov_b32 s101, s84")
    print("stamp", k, name)
def stamp_dump(kern, wsreg, wavereg):
    if STAMP != kern:
        return
    e("  s_memtime s[84:85]")
    e("  s_waitcnt lgkmcnt(0)")
    e("  s_sub_u32 s101, s84, s101")
    e(f"  s_cmp_eq_u32 s{wavereg}, 0")
    e(f"  s_cbranch_scc0 L{kern}_nodump")
    e(f"  s_lshl_b32 s84, s2, 6")
    e(f"  s_add_u32 s84, s84, {128<<20}")
    e(f"  s_add_u32 s102-18, s{wsreg}, s84".replace("s102-18", "s84"))
    e(f"  s_addc_u32 s85, s{wsreg+1}, 0")
    e("  v_mov_b32 v60, 0")
    for k in range(16):
        e(f"  v_mov_b32 v61, s{86+k}")
        e(f"  global_store_dword v60, v61, s[84:85] offset:{4*k}")
    lab(f"L{kern}_nodump")

def wave_scan_add(v):
    for sh in (1, 2, 4, 8):
        e("  s_nop 1")
        e(f"  v_add_u32_dpp v{v}, v{v}, v{v} row_shr:{sh} {DPP}")
    e("  s_nop 1")
    e(f"  v_add_u32_dpp v{v}, v{v}, v{v} row_bcast:15 row_mask:0xa bank_mask:0xf")
    e("  s_nop 1")
    e(f"  v_add_u32_dpp v{v}, v{v}, v{v} row_bcast:31 row_mask:0xc bank_mask:0xf")

def wave_max(vs):
    steps = [f"row_shr:{sh} {DPP}" for sh in (1, 2, 4, 8)] + \
            ["row_bcast:15 row_mask:0xa bank_mask:0xf", "row_bcast:31 row_mask:0xc bank_mask:0xf"]
    for st in steps:
        e("  s_nop 1")
        for v in vs:
            e(f"  v_max_u32_dpp v{v}, v{v}, v{v} {st}")

def kernel_a():
    I0, O0, AN0, RK0, TB0 = 8, 34, 60, 74, 100
    vOne, vF = 2, 3
    t0, t1, t2, t3, t4, t5 = 116, 117, 118, 119, 120, 121
    e(f".globl {KA}")
    e(".p2align 8")
    e(f".type {KA},@function")
    lab(KA)
    e(f"  s_cmp_ge_u32 s2, {NCH}")
    e("  s_cbranch_scc1 LA_end")
    e("  s_load_dwordx4 s[4:7], s[0:1], 0")
    e("  s_load_dwordx2 s[8:9], s[0:1], 16      ; idx_out")
    e("  s_load_dwordx2 s[10:11], s[0:1], 32    ; angle")
    e("  s_load_dwordx2 s[12:13], s[0:1], 48    ; ang_freq")
    e("  s_load_dwordx2 s[14:15], s[0:1], 104   ; ws")
    e("  v_lshrrev_b32 v1, 6, v0")
    e("  v_lshlrev_b32 v4, 4, v0                ; t*16")
    e("  v_readfirstlane_b32 s50, v1")
    e("  v_lshlrev_b32 v5, 3, v0                ; t*8")
    e("  v_lshlrev_b32 v6, 2, v0                ; t*4")
    e("  v_lshlrev_b32 v7, 1, v0                ; t*2")
    e(f"  v_mov_b32 v{vOne}, 1")
    e(f"  v_mov_b32 v{t0}, 0")
    e(f"  v_mov_b32 v{t1}, 0")
    e(f"  s_mul_i32 s48, s2, {CH*4}")
    e(f"  s_mul_i32 s49, s2, {CH*2}")
    e("  s_lshl_b32 s51, s2, 10")
    e("  s_lshl_b32 s52, s2, 3")
    e("  s_waitcnt lgkmcnt(0)")
    srd_off(16, 6, 7, 48, CH * 4)
    srd_off(20, 8, 9, 48, CH * 4)
    srd_off(24, 10, 11, 49, CH * 2)
    e(f"  global_load_ushort v{vF}, v{t0}, s[12:13]")
    stamp("A", "start")
    for u in range(6):
        e(f"  s_mov_b32 s53, {u*16384}")
        e(f"  s_mov_b32 s54, {u*8192}")
        e(f"  buffer_load_dwordx4 v[{I0+4*u}:{I0+4*u+3}], v4, s[16:19], s53 offen{AIN}")
        e(f"  buffer_load_dwordx4 v[{O0+4*u}:{O0+4*u+3}], v4, s[20:23], s53 offen{AIN}")
        e(f"  buffer_load_dwordx2 v[{AN0+2*u}:{AN0+2*u+1}], v5, s[24:27], s54 offen{AIN}")
    e(f"  s_mov_b32 s53, {6*16384}")
    e(f"  s_mov_b32 s54, {6*8192}")
    e(f"  buffer_load_dword v{I0+24}, v6, s[16:19], s53 offen{AIN}")
    e(f"  buffer_load_dword v{O0+24}, v6, s[20:23], s53 offen{AIN}")
    e(f"  buffer_load_ushort v{AN0+12}, v7, s[24:27], s54 offen{AIN}")
    srd_off(28, 4, 5, 49, 51200)
    srd_off(32, 14, 15, 48, CH * 4, WS_RECA)
    srd_off(36, 14, 15, 49, CH * 2, WS_RECC)
    srd_off(40, 14, 15, 51, 1024, WS_TT)
    srd_off(44, 14, 15, 52, 8, WS_STATS)
    e(f"  ds_write_b64 v5, v[{t0}:{t1}] offset:{A_HIST}")
    e(f"  v_and_b32 v{t2}, 15, v0")
    e(f"  v_lshlrev_b32 v{t2}, 3, v{t2}")
    e(f"  v_add_u32 v{t2}, {A_SCR}, v{t2}")
    e(f"  ds_write_b64 v{t2}, v[{t0}:{t1}]")
    e(f"  s_mov_b32 s55, {(2**32 + BINE - 1)//BINE}      ; o/1600 magic")
    e(f"  s_mov_b32 s56, {(2**32 * KS)//E - 1}")
    e(f"  s_mov_b32 s57, {-BINE}")
    e("  s_waitcnt lgkmcnt(0)")
    e("  s_barrier")

    def rec(r):
        I, O, R = I0 + r, O0 + r, RK0 + r
        e(f"  v_mul_hi_u32_u24 v{t0}, s55, v{O}           ; bin")
        e(f"  v_mul_hi_u32_u24 v{t1}, s56, v{I}           ; i range")
        e(f"  v_mad_i32_i24 v{t2}, v{t0}, s57, v{O}       ; o local")
        e(f"  v_lshlrev_b32 v{t1}, 2, v{t1}")
        e(f"  v_lshl_add_u32 v{O}, v{t0}, 5, v{t1}        ; key*4")
        e(f"  v_lshl_or_b32 v{I}, v{t2}, 19, v{I}")
        e(f"  ds_add_rtn_u32 v{R}, v{O}, v{vOne} offset:{A_HIST}")
        e(f"  v_not_b32 v{I}, v{I}")

    def cospair(a):
        x, y = t3, t4
        e(f"  v_lshlrev_b32 v{x}, 16, v{a}")
        e(f"  v_and_b32 v{y}, 0xffff0000, v{a}")
        e(f"  v_mul_f32 v{x}, v{vF}, v{x}")
        e(f"  v_mul_f32 v{y}, v{vF}, v{y}")
        e(f"  v_cvt_pk_bf16_f32 v{t5}, v{x}, v{y}")
        e(f"  v_lshlrev_b32 v{x}, 16, v{t5}")
        e(f"  v_and_b32 v{y}, 0xffff0000, v{t5}")
        e(f"  v_mul_f32 v{x}, 0.15915494, v{x}")
        e(f"  v_mul_f32 v{y}, 0.15915494, v{y}")
        e(f"  v_fract_f32 v{x}, v{x}")
        e(f"  v_fract_f32 v{y}, v{y}")
        e(f"  v_cos_f32 v{x}, v{x}")
        e(f"  v_cos_f32 v{y}, v{y}")
        e("  s_nop 0")
        e(f"  v_cvt_pk_bf16_f32 v{a}, v{x}, v{y}")

    stamp("A", "hist zeroed barrier")
    for u in range(6):
        e(f"  s_waitcnt vmcnt({18-3*u})")
        if u in (0, 3):
            stamp("A", f"quad {u} arrived")
        if u == 0:
            e(f"  v_lshlrev_b32 v{vF}, 16, v{vF}")
        for r in range(4):
            rec(4 * u + r)
        cospair(AN0 + 2 * u)
        cospair(AN0 + 2 * u + 1)
    e("  s_waitcnt vmcnt(0)")
    stamp("A", "all arrived")
    rec(24)
    cospair(AN0 + 12)
    for u in range(4):
        e(f"  s_mov_b32 s53, {u*16384}")
        e(f"  buffer_load_dwordx4 v[{TB0+4*u}:{TB0+4*u+3}], v4, s[28:31], s53 offen{ATAB}")
    e("  s_waitcnt lgkmcnt(0)")
    e("  s_barrier")
    stamp("A", "hist barrier")
    e(f"  ds_read_b64 v[{t0}:{t1}], v5 offset:{A_HIST}")
    e("  s_waitcnt lgkmcnt(0)")
    e(f"  v_add_u32 v{t2}, v{t0}, v{t1}")
    e(f"  v_mov_b32 v{t3}, v{t2}")
    wave_scan_add(t3)
    e(f"  s_lshl_b32 s58, s50, 2")
    e(f"  s_add_u32 s58, s58, {A_SCR}")
    e(f"  v_mov_b32 v{t4}, s58")
    e("  s_mov_b32 exec_lo, 0")
    e("  s_mov_b32 exec_hi, 0x80000000")
    e(f"  ds_write_b32 v{t4}, v{t3}")
    e("  s_mov_b64 exec, -1")
    e("  s_waitcnt lgkmcnt(0)")
    e("  s_barrier")
    e(f"  v_and_b32 v{t4}, 15, v0")
    e(f"  v_lshlrev_b32 v{t4}, 2, v{t4}")
    e(f"  v_add_u32 v{t4}, {A_SCR}, v{t4}")
    e(f"  ds_read_b32 v{t4}, v{t4}")
    e("  s_waitcnt lgkmcnt(0)")
    e(f"  v_mov_b32 v{t5}, v{t4}")
    for sh in (1, 2, 4, 8):
        e("  s_nop 1")
        e(f"  v_add_u32_dpp v{t5}, v{t5}, v{t5} row_shr:{sh} {DPP}")
    e(f"  v_sub_u32 v{t5}, v{t5}, v{t4}")
    e("  s_nop 0")
    e(f"  v_readlane_b32 s58, v{t5}, s50")
    e(f"  v_sub_u32 v{t3}, v{t3}, v{t2}")
    e("  s_nop 0")
    e(f"  v_add_u32 v{t2}, s58, v{t3}         ; start0")
    e(f"  v_add_u32 v{t3}, v{t2}, v{t0}       ; start1")
    e(f"  ds_write_b64 v5, v[{t2}:{t3}] offset:{A_HIST}")
    e(f"  v_and_b32 v{t4}, 3, v0")
    e(f"  v_cmp_eq_u32 vcc, 0, v{t4}")
    e("  s_and_saveexec_b64 s[60:61], vcc")
    e(f"  buffer_store_dword v{t2}, v0, s[40:43], 0 offen")
    e("  s_mov_b64 exec, s[60:61]")
    e("  s_waitcnt lgkmcnt(0)")
    e("  s_barrier")
    stamp("A", "scan done")
    groups = [range(0, 9), range(9, 17), range(17, 25)]
    for g in groups:
        for r in g:
            e(f"  ds_read_b32 v{O0+r}, v{O0+r} offset:{A_HIST}")
        e("  s_waitcnt lgkmcnt(0)")
        for r in g:
            e(f"  v_add_u32 v{O0+r}, v{O0+r}, v{RK0+r}")
            e(f"  v_lshlrev_b32 v{RK0+r}, 2, v{O0+r}")
            e(f"  v_lshlrev_b32 v{O0+r}, 1, v{O0+r}")
            e(f"  ds_write_b32 v{RK0+r}, v{I0+r} offset:{A_A}")
            op = "ds_write_b16" if r % 2 == 0 else "ds_write_b16_d16_hi"
            e(f"  {op} v{O0+r}, v{AN0+r//2} offset:{A_C}")
    stamp("A", "scatter issued")
    gM, gR = 122, 123
    e(f"  v_mov_b32 v{gM}, 0")
    e(f"  v_mov_b32 v{gR}, 0")
    e("  s_mov_b32 s58, 0x7fff7fff")
    e("  s_waitcnt vmcnt(0)")
    for u in range(4):
        b = TB0 + 4 * u
        for k in range(4):
            e(f"  v_and_b32 v{b+k}, s58, v{b+k}")
        e(f"  v_pk_max_u16 v{b}, v{b}, v{b+1}")
        e(f"  v_pk_max_u16 v{b+2}, v{b+2}, v{b+3}")
        e(f"  v_pk_max_u16 v{b}, v{b}, v{b+2}")
        e(f"  v_lshrrev_b32 v{b+1}, 16, v{b}")
        e(f"  v_and_b32 v{b}, 0xffff, v{b}")
        e(f"  v_max_u32 v{b}, v{b}, v{b+1}")
        e("  s_nop 1")
        e(f"  v_max_u32_dpp v{b}, v{b}, v{b} quad_perm:[1,0,3,2] {DPP}")
        e(f"  v_max_u32 v{gM}, v{gM}, v{b}")
        e(f"  v_sub_u32 v{b}, 0x8000, v{b}")
        e(f"  v_and_b32 v{b}, 0x7fff, v{b}")
        e(f"  v_max_u32 v{gR}, v{gR}, v{b}")
    wave_max([gM, gR])
    e(f"  v_mov_b32 v{t4}, {A_SCR + 64}")
    e("  s_mov_b32 exec_lo, 0")
    e("  s_mov_b32 exec_hi, 0x80000000")
    e(f"  ds_max_u32 v{t4}, v{gM}")
    e(f"  ds_max_u32 v{t4}, v{gR} offset:4")
    e("  s_mov_b64 exec, -1")
    e("  s_waitcnt lgkmcnt(0)")
    e("  s_barrier")
    stamp("A", "scatter barrier")
    d = 8
    for u in range(6):
        e(f"  v_add_u32 v{t0}, {u*16384}, v4")
        e(f"  ds_read_b128 v[{d+4*u}:{d+4*u+3}], v{t0} offset:{A_A}")
    for u in range(3):
        e(f"  v_add_u32 v{t0}, {u*16384}, v4")
        e(f"  ds_read_b128 v[{d+24+4*u}:{d+24+4*u+3}], v{t0} offset:{A_C}")
    e(f"  v_mov_b32 v{t4}, {A_SCR + 64}")
    e(f"  ds_read_b64 v[{t2}:{t3}], v{t4}")
    for u in range(6):
        e(f"  s_mov_b32 s53, {u*16384}")
        e(f"  s_waitcnt lgkmcnt({9-u})")
        e(f"  buffer_store_dwordx4 v[{d+4*u}:{d+4*u+3}], v4, s[32:35], s53 offen{AST}")
    for u in range(3):
        e(f"  s_mov_b32 s53, {u*16384}")
        e(f"  s_waitcnt lgkmcnt({3-u})")
        e(f"  buffer_store_dwordx4 v[{d+24+4*u}:{d+24+4*u+3}], v4, s[36:39], s53 offen{AST}")
    stamp("A", "stores issued")
    if STAMP == "A":
        e("  s_waitcnt vmcnt(0)")
    stamp("A", "stores done")
    stamp_dump("A", 14, 50)
    e("  s_cmp_lt_u32 s50, 4")
    e("  s_cbranch_scc0 LA_t1")
    e(f"  v_add_u32 v{t0}, {6*16384}, v4")
    e(f"  ds_read_b128 v[60:63], v{t0} offset:{A_A}")
    e(f"  s_mov_b32 s53, {6*16384}")
    e("  s_waitcnt lgkmcnt(0)")
    e(f"  buffer_store_dwordx4 v[60:63], v4, s[32:35], s53 offen{AST}")
    lab("LA_t1")
    e("  s_cmp_lt_u32 s50, 2")
    e("  s_cbranch_scc0 LA_t2")
    e(f"  v_add_u32 v{t0}, {3*16384}, v4")
    e(f"  ds_read_b128 v[64:67], v{t0} offset:{A_C}")
    e(f"  s_mov_b32 s53, {3*16384}")
    e("  s_waitcnt lgkmcnt(0)")
    e(f"  buffer_store_dwordx4 v[64:67], v4, s[36:39], s53 offen{AST}")
    lab("LA_t2")
    e("  s_cmp_eq_u32 s50, 15")
    e("  s_cbranch_scc0 LA_end")
    e("  s_waitcnt lgkmcnt(0)")
    e(f"  v_mov_b32 v{t0}, 0")
    e("  s_mov_b32 exec_lo, 1")
    e("  s_mov_b32 exec_hi, 0")
    e(f"  buffer_store_dwordx2 v[{t2}:{t3}], v{t0}, s[44:47], 0 offen")
    lab("LA_end")
    e("  s_endpgm")

class VmQ:
    def __init__(self):
        self.q = []
    def issue(self, tag):
        self.q.append(tag)
        assert len(self.q) <= 63, "vmcnt overflow"
    def wait(self, tag):
        if tag not in self.q:
            return
        idx = max(i for i, t in enumerate(self.q) if t == tag)
        n = len(self.q) - 1 - idx
        assert n <= 63
        e(f"  s_waitcnt vmcnt({n})")
        self.q = self.q[idx + 1:]
    def drain(self):
        e("  s_waitcnt vmcnt(0)")
        self.q = []

def kernel_b():
    vH8, vIA, vIB, vCB, vOne = 1, 2, 4, 6, 7
    G0 = 8
    OA, CH_ = 40, 44
    P0 = 48
    t0, t1, t2, t3, t4, t5, t6, t7, t8 = range(56, 65)
    BS, LN = 65, 69
    XZ = 65
    CU = 73
    vL16 = 77
    WDS = 78
    RCP, RA0 = 80, 96
    def RA(s, j): return RA0 + 4 * j + s
    def RCp(s, j): return RCP + 4 * (j // 2) + s
    def LZ(s, j): return RCp(s, j) if j % 2 == 0 else XZ + 4 * ((j // 2) % 2) + s
    RBF, CEN, WT, MR = 96, 103, 104, 104
    WD, WU, WS, WR = 80, 82, 84, 86
    sW, sMag, sSc, sInv, sMode, sMsk, sN80, sTail, sPerm = 50, 53, 54, 55, 56, 57, 58, 59, 60
    sOv = 66
    vm = VmQ()
    e(f".globl {KB}")
    e(".p2align 8")
    e(f".type {KB},@function")
    lab(KB)
    e(f"  s_cmp_ge_u32 s2, {NB}")
    e("  s_cbranch_scc1 LB_end")
    e("  s_load_dwordx2 s[78:79], s[0:1], 104    ; ws")
    e("  s_load_dwordx2 s[68:69], s[0:1], 0      ; m")
    e("  s_load_dwordx2 s[70:71], s[0:1], 24     ; dist")
    e("  s_load_dwordx2 s[40:41], s[0:1], 40     ; centers")
    e("  s_load_dwordx4 s[44:47], s[0:1], 56")
    e("  s_load_dwordx4 s[72:75], s[0:1], 72")
    e("  s_load_dwordx2 s[76:77], s[0:1], 88     ; out")
    e("  v_lshrrev_b32 v8, 6, v0")
    e(f"  v_and_b32 v{vL16}, 15, v0")
    e(f"  v_readfirstlane_b32 s{sW}, v8")
    e(f"  v_and_b32 v9, 1, v0")
    e(f"  v_lshlrev_b32 v{vH8}, 3, v9")
    e(f"  v_lshlrev_b32 v{vIA+1}, 4, v9")
    e(f"  v_lshlrev_b32 v{vIB+1}, 4, v9")
    e(f"  v_mov_b32 v{vCB}, {2047*ROWB}")
    e(f"  v_mov_b32 v{vOne}, 1")
    e(f"  s_mul_i32 s80, s2, {BINE*32}")
    e(f"  s_mul_i32 s81, s2, {BINE*2}")
    e(f"  s_mov_b32 s{sMode}, 0")
    e(f"  s_mov_b32 s{sMsk}, 0x7ffff")
    e(f"  s_mov_b32 s{sN80}, {-ROWB}")
    e(f"  s_mov_b32 s{sPerm}, 0x05040100")
    e("  s_waitcnt lgkmcnt(0)")
    e(f"  s_add_u32 s82, s78, {WS_TT}")
    e("  s_addc_u32 s83, s79, 0")
    srd(16, 82, 83, NCH * 1024)
    e(f"  s_add_u32 s82, s78, {WS_STATS}")
    e("  s_addc_u32 s83, s79, 0")
    srd(20, 82, 83, NCH * 8)
    e(f"  s_add_u32 s82, s78, {WS_RECA - 4}")
    e("  s_addc_u32 s83, s79, 0")
    srd(4, 82, 83, T + 1, 4)
    e(f"  s_add_u32 s82, s78, {WS_RECC - 2}")
    e("  s_addc_u32 s83, s79, 0")
    srd(8, 82, 83, T + 1, 2)
    srd(12, 68, 69, E, 32)
    srd_off(24, 68, 69, 80, BINE * 32)
    srd_off(28, 76, 77, 80, BINE * 32)
    srd_off(32, 70, 71, 81, BINE * 2)
    lab("LB_start")
    stamp("B", "start")
    TT0, ST0 = RA0, RA0 + 8
    def run_table_loads():
        g = t0
        e(f"  v_and_b32 v{t1}, 63, v0")
        e(f"  v_lshrrev_b32 v{g}, 4, v{t1}            ; g = lane>>4")
        e(f"  s_lshl_b32 s80, s{sW}, 4")
        e(f"  v_add_u32 v{t1}, s80, v{g}              ; 16w+g")
        e(f"  s_lshl_b32 s81, s2, 2")
        e(f"  v_lshlrev_b32 v{t2}, 10, v{t1}")
        e(f"  v_add_u32 v{t2}, s81, v{t2}")
        for s in range(4):
            e(f"  v_add_u32 v{t3}, {s*4096}, v{t2}")
            e(f"  buffer_load_dwordx2 v[{G0+2*s}:{G0+2*s+1}], v{t3}, s[16:19], 0 offen")
            vm.issue("T")
    def run_params():
        e(f"  s_mov_b32 s80, {CH}")
        for s in range(4):
            e(f"  v_add_u32 v{t3}, {4*s}, v{t1}")
            e(f"  v_mad_u32_u24 v{t3}, v{t3}, s80, 1")
            e(f"  v_add_u32 v{BS+s}, v{t3}, v{G0+2*s}")
            e(f"  v_sub_u32 v{LN+s}, v{G0+2*s+1}, v{G0+2*s}")
    run_table_loads()
    e(f"  v_and_b32 v{t3}, 63, v0")
    e(f"  v_lshlrev_b32 v{t3}, 3, v{t3}")
    for s in range(4):
        e(f"  buffer_load_dwordx2 v[{ST0+2*s}:{ST0+2*s+1}], v{t3}, s[20:23], 0 offen offset:{s*512}")
        vm.issue("ST")
    for k in range(4):
        e(f"  v_mov_b32 v{P0+k}, 0")
    e(f"  v_lshlrev_b32 v{t3}, 4, v0")
    for u in range(8):
        if u == 4:
            e(f"  v_add_u32 v{t3}, 0x10000, v{t3}")
        e(f"  ds_write_b128 v{t3}, v[{P0}:{P0+3}] offset:{(u%4)*16384}")
    vm.wait("T")
    stamp("B", "T arrived")
    run_params()
    e(f"  v_max_u32 v{t3}, v{LN}, v{LN+1}")
    e(f"  v_max3_u32 v{t3}, v{t3}, v{LN+2}, v{LN+3}")
    e(f"  v_cmp_lt_u32 vcc, 0x80, v{t3}")
    e(f"  s_cmp_lg_u64 vcc, 0")
    e(f"  s_cselect_b32 s{sTail}, 1, 0")
    vm.wait("ST")
    a, b = ST0, ST0 + 1
    e(f"  v_max3_u32 v{a}, v{ST0}, v{ST0+2}, v{ST0+4}")
    e(f"  v_max3_u32 v{b}, v{ST0+1}, v{ST0+3}, v{ST0+5}")
    e(f"  v_max_u32 v{a}, v{a}, v{ST0+6}")
    e(f"  v_max_u32 v{b}, v{b}, v{ST0+7}")
    wave_max([a, b])
    e("  s_nop 0")
    e(f"  v_readlane_b32 s80, v{a}, 63")
    e(f"  v_readlane_b32 s81, v{b}, 63")
    e("  s_nop 0")
    e("  s_lshr_b32 s82, s80, 7")
    e("  s_sub_u32 s81, 0x8000, s81")
    e("  s_lshr_b32 s81, s81, 7")
    e("  s_sub_u32 s83, s82, s81")
    e(f"  s_cmp_eq_u32 s{sMode}, 2")
    e("  s_cbranch_scc1 LB_float")
    e("  s_cmp_ge_u32 s80, 0x7f80")
    e("  s_cbranch_scc1 LB_float")
    e("  s_cmp_lt_u32 s82, 32")
    e("  s_cbranch_scc1 LB_float")
    e("  s_cmp_gt_u32 s82, 200")
    e("  s_cbranch_scc1 LB_float")
    e("  s_cmp_gt_i32 s83, 10")
    e("  s_cbranch_scc1 LB_float")
    e(f"  s_mov_b32 s{sMag}, 0x4b400000")
    e("  s_sub_u32 s83, 275, s82")
    e(f"  s_lshl_b32 s{sSc}, s83, 23")
    e("  s_sub_u32 s83, s82, 21")
    e(f"  s_lshl_b32 s{sInv}, s83, 23")
    e("  s_branch LB_fast")
    lab("LB_float")
    e(f"  s_mov_b32 s{sMode}, 2")
    e(f"  s_mov_b32 s{sMag}, 0")
    e(f"  s_mov_b32 s{sSc}, 1.0")
    e(f"  s_mov_b32 s{sInv}, 1.0")
    e(f"  s_mov_b32 s{sTail}, 1")
    e("  s_waitcnt lgkmcnt(0)")
    e("  s_barrier")
    e("  s_branch LB_generic")

    lab("LB_fast")
    def rec_loads(s, j):
        e("  s_mov_b64 exec, vcc")
        e(f"  buffer_load_ushort v{LZ(s,j)}, v{RA(s,j)}, s[8:11], 0 idxen{BREC}")
        vm.issue(f"C{s}_{j}")
        e(f"  buffer_load_dword v{RA(s,j)}, v{RA(s,j)}, s[4:7], 0 idxen{BREC}")
        vm.issue(f"A{s}_{j}")
        e("  s_mov_b64 exec, -1")
    for s in range(4):
        e(f"  v_min_u32 v{OA+s}, 0x80, v{LN+s}          ; len'")
        e(f"  v_lshrrev_b32 v{CH_+s}, 3, v{OA+s}")
        e(f"  v_add_u32 v{t7}, v{BS+s}, v{vL16}")
        e(f"  v_cmp_lt_u32 vcc, v{vL16}, v{CH_+s}")
        e("  s_nop 1")
        e(f"  v_cndmask_b32 v{RA(s,0)}, 0, v{t7}, vcc")
        rec_loads(s, 0)
    for s in range(4):
        lp, acc, lo, hi = OA + s, t3, t4, t6
        e(f"  v_lshlrev_b32 v{acc}, 1, v{lp}")
        e(f"  v_add_u32 v{lo}, v{CH_+s}, v{vL16}")
        for j in range(1, 8):
            e(f"  v_lshrrev_b32 v{hi}, 3, v{acc}")
            e(f"  v_add_u32 v{acc}, v{acc}, v{lp}")
            e(f"  v_cmp_lt_u32 vcc, v{lo}, v{hi}")
            e(f"  v_add_u32 v{t7}, v{BS+s}, v{lo}")
            e(f"  v_add_u32 v{lo}, v{hi}, v{vL16}")
            e(f"  v_cndmask_b32 v{RA(s,j)}, 0, v{t7}, vcc")
    def rec_loads_idx(s, j):
        e(f"  v_cmp_ne_u32 vcc, 0, v{RA(s,j)}")
        rec_loads(s, j)
    for s in range(4):
        for j in (1, 2, 3):
            rec_loads_idx(s, j)
    stamp("B", "rec loads issued")

    def dec_idx(ra, dst):
        e(f"  v_bfi_b32 v{dst}, v{ra}, 0, s{sMsk}")
    def dec_rest(ra, rc, hi_half, s):
        e(f"  v_bfe_u32 v{t7}, v{ra}, 19, 11")
        if hi_half:
            e(f"  v_and_b32 v{t8}, 0xffff0000, v{rc}")
        else:
            e(f"  v_lshlrev_b32 v{t8}, 16, v{rc}")
        e(f"  v_mad_i32_i24 v{OA+s}, v{t7}, s{sN80}, v{vCB}")
        e(f"  v_mul_f32 v{CH_+s}, s{sSc}, v{t8}")
        e(f"  ds_add_u32 v{OA+s}, v{vOne} offset:64")
    def gather(s, h, src, tag):
        g0 = G0 + 8 * s + 4 * h
        vi = vIA if h == 0 else vIB
        qp = "[0,0,2,2]" if h == 0 else "[1,1,3,3]"
        e(f"  v_mov_b32_dpp v{vi}, v{src} quad_perm:{qp} {DPP}")
        if "nogather" in ABL:
            e(f"  v_mov_b32 v{vi}, -1")
        e(f"  buffer_load_dwordx4 v[{g0}:{g0+3}], v[{vi}:{vi+1}], s[12:15], 0 idxen offen")
        vm.issue(tag)
    def consume(s, h, isfloat):
        qp = "[0,0,2,2]" if h == 0 else "[1,1,3,3]"
        g0 = G0 + 8 * s + 4 * h
        ad, ch, cl = t0 + 3 * h, t1 + 3 * h, t2 + 3 * h
        e(f"  v_mov_b32_dpp v{ch}, v{CH_+s} quad_perm:{qp} {DPP}")
        e(f"  v_add_u32_dpp v{ad}, v{OA+s}, v{vH8} quad_perm:{qp} {DPP}")
        e(f"  v_lshrrev_b32 v{cl}, 16, v{ch}")
        for k in range(4):
            e(f"  v_dot2_f32_bf16 v{P0+2*k+1}, v{g0+k}, v{ch}, s{sMag}")
            e(f"  v_dot2_f32_bf16 v{P0+2*k}, v{g0+k}, v{cl}, s{sMag}")
            if "noatom" in ABL:
                continue
            if isfloat:
                e(f"  ds_add_f32 v{ad}, v{P0+2*k} offset:{16*k}")
                e(f"  ds_add_f32 v{ad}, v{P0+2*k+1} offset:{16*k+4}")
            else:
                e(f"  ds_add_u64 v{ad}, v[{P0+2*k}:{P0+2*k+1}] offset:{16*k}")
    packed = set()
    def pack(s, j):
        if (s, j) in packed:
            return
        packed.add((s, j))
        vm.wait(f"C{s}_{j+1}")
        e(f"  v_perm_b32 v{RCp(s,j)}, v{LZ(s,j+1)}, v{RCp(s,j)}, s{sPerm}")

    vm.wait("A3_0")
    stamp("B", "phase-0 records arrived")
    e("  s_waitcnt lgkmcnt(0)")
    e("  s_barrier")
    stamp("B", "after barrier")
    PFN = 7
    if PF:
        e("  s_lshr_b32 s61, s2, 3")
        e("  s_lshl_b32 s61, s61, 4")
        e(f"  s_add_u32 s61, s61, s{sW}")
        e(f"  s_mul_i32 s61, s61, {PFN*128}")
    def prefetch(tau):
        if not PF:
            return
        first = (tau + PFLEAD) * 3125
        if first >= 100000:
            return
        e(f"  s_add_u32 s64, s61, {first*128}")
        e(f"  s_min_u32 s64, s64, {(100000 - PFN)*128}")
        e("  s_add_u32 s62, s68, s64")
        e("  s_addc_u32 s63, s69, 0")
        for q in range(PFN):
            e(f"  s_load_dword s65, s[62:63], {q*128}")
            if PF == 2:
                e(f"  s_load_dword s65, s[62:63], {q*128+64}")
    tI = t6
    for s in range(4):
        dec_idx(RA(s, 0), tI)
        dec_rest(RA(s, 0), RCp(s, 0), False, s)
        gather(s, 0, tI, f"g0_{s}_0")
        gather(s, 1, tI, f"g0_{s}_1")

    def epi_loads1():
        gg, nn = t7, vL16
        e(f"  v_and_b32 v{t8}, 63, v0")
        e(f"  v_lshrrev_b32 v{gg}, 4, v{t8}")
        e(f"  v_lshlrev_b32 v{t8}, 6, v{gg}")
        e(f"  v_lshl_add_u32 v{t8}, v{nn}, 1, v{t8}     ; 64g + 2n")
        for k, off in enumerate((0, 32, 256, 288)):
            e(f"  global_load_ushort v{WT+k}, v{t8}, s[72:73] offset:{off}"); vm.issue("E1")
        for k in range(2):
            e(f"  global_load_ushort v{WT+8+k}, v{t8}, s[44:45] offset:{32*k}"); vm.issue("E1")
            e(f"  global_load_ushort v{WT+10+k}, v{t8}, s[46:47] offset:{32*k}"); vm.issue("E1")
        e(f"  v_lshlrev_b32 v{t8}, 7, v{gg}")
        e(f"  v_lshl_add_u32 v{t8}, v{nn}, 1, v{t8}     ; 128g + 2n")
        for k in range(4):
            e(f"  global_load_ushort v{WT+4+k}, v{t8}, s[74:75] offset:{32*k}"); vm.issue("E1")
        e(f"  v_lshlrev_b32 v{t8}, 2, v{gg}")
        e(f"  global_load_dword v{CEN}, v{t8}, s[40:41]"); vm.issue("E1")
        e(f"  s_lshl_b32 s80, s{sW}, 5")
        e(f"  v_lshl_add_u32 v{t8}, v{nn}, 1, s80")
        for u in range(7):
            e(f"  buffer_load_ushort v{RBF+u}, v{t8}, s[32:35], 0 offen offset:{u*512}"); vm.issue("E1")
    def epi_loads2():
        gg, nn = t7, vL16
        e(f"  v_and_b32 v{t8}, 63, v0")
        e(f"  v_lshrrev_b32 v{gg}, 4, v{t8}")
        e(f"  s_lshl_b32 s80, s{sW}, 9")
        e(f"  v_lshlrev_b32 v{t8}, 5, v{nn}")
        e(f"  v_lshl_add_u32 v{t8}, v{gg}, 3, v{t8}")
        e(f"  v_add_u32 v{t8}, s80, v{t8}")
        for u in range(7):
            e(f"  s_mov_b32 s81, {u*8192}")
            e(f"  buffer_load_dwordx2 v[{MR+2*u}:{MR+2*u+1}], v{t8}, s[24:27], s81 offen{BM}"); vm.issue("E2")
    def epi_prep():
        e(f"  v_lshl_or_b32 v{WD}, v{WT+1}, 16, v{WT}")
        e(f"  v_lshl_or_b32 v{WD+1}, v{WT+3}, 16, v{WT+2}")
        e(f"  v_lshl_or_b32 v{WU}, v{WT+5}, 16, v{WT+4}")
        e(f"  v_lshl_or_b32 v{WU+1}, v{WT+7}, 16, v{WT+6}")
        e(f"  v_lshl_or_b32 v{WR}, v{WT+9}, 16, v{WT+8}")
        e(f"  v_lshl_or_b32 v{WS}, v{WT+11}, 16, v{WT+10}")
        e(f"  v_mov_b32 v{WR+1}, 0")
        e(f"  v_mov_b32 v{WS+1}, 0")
        c0, c1, x, y, p = XZ, XZ + 1, XZ + 2, XZ + 3, XZ + 4
        for k in range(2):
            e(f"  v_lshlrev_b32 v{x}, 16, v{WD+k}")
            e(f"  v_and_b32 v{y}, 0xffff0000, v{WD+k}")
            e(f"  v_mul_f32 v{x}, s{sInv}, v{x}")
            e(f"  v_mul_f32 v{y}, s{sInv}, v{y}")
            e(f"  v_cvt_pk_bf16_f32 v{WDS+k}, v{x}, v{y}")
        e(f"  v_lshlrev_b32 v{c0}, 16, v{CEN}")
        e(f"  v_and_b32 v{c1}, 0xffff0000, v{CEN}")
        e("  s_mov_b32 s80, 0xc1200000           ; -10.0")
        e("  s_mov_b32 s81, 0x3fb8aa3b           ; log2(e)")
        for u in range(7):
            r = RBF + u
            e(f"  v_lshlrev_b32 v{r}, 16, v{r}")
            e(f"  v_sub_f32 v{x}, v{r}, v{c0}")
            e(f"  v_sub_f32 v{y}, v{r}, v{c1}")
            for op in ("sq", "m10", "exp"):
                e(f"  v_cvt_pk_bf16_f32 v{p}, v{x}, v{y}")
                e(f"  v_lshlrev_b32 v{x}, 16, v{p}")
                e(f"  v_and_b32 v{y}, 0xffff0000, v{p}")
                if op == "sq":
                    e(f"  v_mul_f32 v{x}, v{x}, v{x}")
                    e(f"  v_mul_f32 v{y}, v{y}, v{y}")
                elif op == "m10":
                    e(f"  v_mul_f32 v{x}, s80, v{x}")
                    e(f"  v_mul_f32 v{y}, s80, v{y}")
                else:
                    e(f"  v_mul_f32 v{x}, s81, v{x}")
                    e(f"  v_mul_f32 v{y}, s81, v{y}")
                    e(f"  v_exp_f32 v{x}, v{x}")
                    e(f"  v_exp_f32 v{y}, v{y}")
                    e("  s_nop 0")
            e(f"  v_cvt_pk_bf16_f32 v{r}, v{x}, v{y}")

    for j in range(8):
        if "nobar" not in ABL:
            e("  s_barrier")
        if j in (0, 1, 2, 4, 6, 7):
            stamp("B", f"phase {j} begin")
        for s in range(4):
            last = (j == 7)
            if not last:
                vm.wait(f"A{s}_{j+1}")
                dec_idx(RA(s, j + 1), tI)
            vm.wait(f"g{j}_{s}_0")
            consume(s, 0, False)
            if not last:
                gather(s, 0, tI, f"g{j+1}_{s}_0")
            vm.wait(f"g{j}_{s}_1")
            consume(s, 1, False)
            if not last:
                gather(s, 1, tI, f"g{j+1}_{s}_1")
                if (j + 1) % 2 == 1:
                    pack(s, j)
                dec_rest(RA(s, j + 1), RCp(s, j + 1), (j + 1) % 2 == 1, s)
            prefetch(4 * j + s)
            if j == 0:
                pack(s, 2)
            if j == 1:
                for jj in (4, 5, 6, 7):
                    rec_loads_idx(s, jj)
            if j == 3:
                pack(s, 6)
            if j == 4 and s == 0:
                epi_loads1()
            if j == 5 and s == 0:
                vm.wait("E1")
                epi_prep()
            if j == 5 and s == 3:
                epi_loads2()
    stamp("B", "main done")
    e(f"  s_cmp_eq_u32 s{sTail}, 0")
    e("  s_cbranch_scc1 LB_epi")
    lab("LB_generic")
    q_main = list(vm.q)
    e("  s_waitcnt vmcnt(0)")
    run_table_loads()
    e("  s_waitcnt vmcnt(0)")
    run_params()
    for s in range(4):
        e(f"  v_min_u32 v{CU+s}, 0x80, v{LN+s}")
        e(f"  s_cmp_eq_u32 s{sMode}, 2")
        e(f"  s_cbranch_scc0 LB_gen{s}_c")
        e(f"  v_mov_b32 v{CU+s}, 0")
        lab(f"LB_gen{s}_c")
    for s in range(4):
        lab(f"LB_gen{s}")
        e(f"  v_add_u32 v{t0}, v{CU+s}, v{vL16}")
        e(f"  v_cmp_lt_u32 vcc, v{t0}, v{LN+s}")
        e(f"  s_cbranch_vccz LB_gen{s}_done")
        e(f"  v_add_u32 v{t0}, v{BS+s}, v{t0}")
        e(f"  v_add_u32 v{CU+s}, 16, v{CU+s}")
        e(f"  v_cndmask_b32 v{t0}, -1, v{t0}, vcc")
        e(f"  buffer_load_dword v{G0+8}, v{t0}, s[4:7], 0 idxen")
        e(f"  buffer_load_ushort v{G0+9}, v{t0}, s[8:11], 0 idxen")
        e("  s_waitcnt vmcnt(0)")
        dec_idx(G0 + 8, tI)
        dec_rest(G0 + 8, G0 + 9, False, 0)
        gather(0, 0, tI, "x")
        gather(0, 1, tI, "x")
        e("  s_waitcnt vmcnt(0)")
        e(f"  s_cmp_eq_u32 s{sMode}, 2")
        e(f"  s_cbranch_scc1 LB_gen{s}_f")
        consume(0, 0, False)
        consume(0, 1, False)
        e(f"  s_branch LB_gen{s}")
        lab(f"LB_gen{s}_f")
        consume(0, 0, True)
        consume(0, 1, True)
        e(f"  s_branch LB_gen{s}")
        lab(f"LB_gen{s}_done")
    e(f"  s_cmp_eq_u32 s{sMode}, 2")
    e("  s_cbranch_scc0 LB_epi")
    epi_loads1()
    e("  s_waitcnt vmcnt(0)")
    epi_prep()
    epi_loads2()
    lab("LB_epi")
    vm.q = []
    e("  s_waitcnt lgkmcnt(0)")
    e("  s_barrier")
    stamp("B", "final barrier")
    g = t0
    e(f"  v_and_b32 v{t1}, 63, v0")
    e(f"  v_lshrrev_b32 v{g}, 4, v{t1}")
    e(f"  s_lshl_b32 s80, s{sW}, 4")
    e(f"  v_add_u32 v{t1}, s80, v{vL16}")
    e(f"  v_mul_u32_u24 v{t1}, {ROWB}, v{t1}")
    e(f"  v_lshl_add_u32 v{t2}, v{g}, 4, v{t1}")
    e(f"  s_lshl_b32 s80, s{sW}, 9")
    e(f"  v_lshlrev_b32 v{t6}, 5, v{vL16}")
    e(f"  v_lshl_add_u32 v{t6}, v{g}, 3, v{t6}")
    e(f"  v_add_u32 v{t6}, s80, v{t6}")
    e(f"  s_mov_b64 s[{sOv}:{sOv+1}], 0")
    A_ = lambda u: 8 + 12 * (u % 4)
    G_ = lambda u: 8 + 12 * (u % 4) + 4
    R_ = lambda u: 8 + 12 * (u % 4) + 8
    PK, RP = 66, 68
    X0 = 70
    e(f"  v_mov_b32 v{RP+1}, 0")
    def tile_reads(u):
        e(f"  v_add_u32 v{t3}, {u*256*ROWB}, v{t2}")
        e(f"  v_add_u32 v{t4}, {u*256*ROWB}, v{t1}")
        e(f"  ds_read_b128 v[{A_(u)}:{A_(u)+3}], v{t3}")
        e(f"  ds_read_b32 v{G_(u)}, v{t4} offset:64")
    def tile_stage1(u):
        a, gg, rr = A_(u), G_(u), R_(u)
        e(f"  v_cmp_lt_u32 vcc, 0x1ff, v{gg}")
        e(f"  s_or_b64 s[{sOv}:{sOv+1}], s[{sOv}:{sOv+1}], vcc")
        e(f"  s_cmp_eq_u32 s{sMode}, 2")
        e(f"  s_cbranch_scc1 LB_e{u}_f")
        e(f"  v_mul_u32_u24 v{gg}, 0x12d, v{gg}")
        e(f"  v_lshlrev_b32 v{gg+1}, 22, v{gg}")
        for k in (0, 2):
            e(f"  v_sub_u32 v{a+k}, v{a+k}, v{gg+1}")
            e(f"  v_sub_u32 v{a+k+1}, v{a+k+1}, v{gg+1}")
            e(f"  v_ashrrev_i32 v{X0}, 22, v{a+k}")
            e(f"  v_add_u32 v{X0}, v{X0}, v{gg}")
            e(f"  v_ashrrev_i32 v{X0}, 10, v{X0}")
            e(f"  v_sub_u32 v{a+k+1}, v{a+k+1}, v{X0}")
        for k in range(4):
            e(f"  v_cvt_f32_i32 v{a+k}, v{a+k}")
        lab(f"LB_e{u}_f")
        e(f"  v_cvt_pk_bf16_f32 v{PK}, v{a}, v{a+1}")
        e(f"  v_cvt_pk_bf16_f32 v{PK+1}, v{a+2}, v{a+3}")
        e(f"  v_mov_b32 v{RP}, v{RBF+u}")
        e("  s_nop 1")
        e(f"  v_mfma_f32_16x16x16_bf16 v[{a}:{a+3}], v[{WDS}:{WDS+1}], v[{PK}:{PK+1}], 0")
        e(f"  v_mfma_f32_16x16x16_bf16 v[{gg}:{gg+3}], v[{WS}:{WS+1}], v[{RP}:{RP+1}], 0")
        e(f"  v_mfma_f32_16x16x16_bf16 v[{rr}:{rr+3}], v[{WR}:{WR+1}], v[{RP}:{RP+1}], 0")
    def tile_stage2(u):
        a, gg = A_(u), G_(u)
        for k in range(4):
            e(f"  v_mul_f32 v{a+k}, v{a+k}, v{gg+k}")
        e(f"  v_cvt_pk_bf16_f32 v{PK}, v{a}, v{a+1}")
        e(f"  v_cvt_pk_bf16_f32 v{PK+1}, v{a+2}, v{a+3}")
        e("  s_nop 1")
        e(f"  v_mfma_f32_16x16x16_bf16 v[{gg}:{gg+3}], v[{WU}:{WU+1}], v[{PK}:{PK+1}], 0")
    def tile_stage3(u):
        a, gg, rr = A_(u), G_(u), R_(u)
        m0, m1 = MR + 2 * u, MR + 2 * u + 1
        e(f"  v_lshlrev_b32 v{a}, 16, v{m0}")
        e(f"  v_and_b32 v{a+1}, 0xffff0000, v{m0}")
        e(f"  v_lshlrev_b32 v{a+2}, 16, v{m1}")
        e(f"  v_and_b32 v{a+3}, 0xffff0000, v{m1}")
        for k in range(4):
            e(f"  v_fmac_f32 v{a+k}, v{gg+k}, v{rr+k}")
        e(f"  v_cvt_pk_bf16_f32 v{m0}, v{a}, v{a+1}")
        e(f"  v_cvt_pk_bf16_f32 v{m1}, v{a+2}, v{a+3}")
        e(f"  s_mov_b32 s81, {u*8192}")
        e(f"  buffer_store_dwordx2 v[{m0}:{m1}], v{t6}, s[28:31], s81 offen{BOUT}")
    def guarded(u, fn, tag):
        if u == 6:
            e(f"  s_cmp_ge_u32 s{sW}, 4")
            e(f"  s_cbranch_scc1 LB_skip6{tag}")
        fn(u)
        if u == 6:
            lab(f"LB_skip6{tag}")
    for gi, grp in enumerate(((0, 1, 2, 3), (4, 5, 6))):
        for u in grp:
            guarded(u, tile_reads, "a")
        e("  s_waitcnt lgkmcnt(0)")
        for u in grp:
            guarded(u, tile_stage1, "b")
        e("  s_nop 7")
        for u in grp:
            guarded(u, tile_stage2, "c")
        if gi == 0:
            e("  s_waitcnt vmcnt(0)              ; m rows")
        e("  s_nop 7")
        for u in grp:
            guarded(u, tile_stage3, "d")
    stamp("B", "epilogue done")
    stamp_dump("B", 78, sW)
    e(f"  s_cmp_eq_u32 s{sMode}, 2")
    e("  s_cbranch_scc1 LB_end")
    e(f"  s_cmp_eq_u64 s[{sOv}:{sOv+1}], 0")
    e("  s_cbranch_scc1 LB_noov")
    e(f"  v_mov_b32 v{t3}, {B_FLAG}")
    e(f"  ds_write_b32 v{t3}, v{vOne}")
    lab("LB_noov")
    e("  s_waitcnt lgkmcnt(0)")
    e("  s_barrier")
    e(f"  v_mov_b32 v{t3}, {B_FLAG}")
    e(f"  ds_read_b32 v{t3}, v{t3}")
    e("  s_waitcnt lgkmcnt(0)")
    e(f"  v_readfirstlane_b32 s80, v{t3}")
    e("  s_cmp_eq_u32 s80, 0")
    e("  s_cbranch_scc1 LB_end")
    e("  s_waitcnt vmcnt(0)")
    e("  s_barrier")
    e(f"  s_mov_b32 s{sMode}, 2")
    e("  s_branch LB_start")
    lab("LB_end")
    e("  s_endpgm")

def descriptor(name, vgpr, sgpr):
    e(".p2align 6")
    e(f".amdhsa_kernel {name}")
    e(f"  .amdhsa_next_free_vgpr {vgpr}")
    e(f"  .amdhsa_next_free_sgpr {sgpr}")
    e(f"  .amdhsa_accum_offset {vgpr}")
    e("  .amdhsa_group_segment_fixed_size 0")
    e("  .amdhsa_kernarg_size 112")
    e("  .amdhsa_user_sgpr_count 2")
    e("  .amdhsa_user_sgpr_kernarg_segment_ptr 1")
    e("  .amdhsa_system_sgpr_workgroup_id_x 1")
    e("  .amdhsa_float_denorm_mode_32 3")
    e(".end_amdhsa_kernel")

header = open("standalone__molecular_angular_gemnet__graph.s.ref").read().split("; Override launch")[0]
e(header.rstrip())
for _k in os.environ.get("LIST", "AB"):
    if _k == "A":
        e(f"; @launch kernel={KA} grid=({NCH},1,1) block=(1024,1,1) lds={A_LDS}")
    elif _k == "e":
        e(f"; @launch kernel=empty_kernel grid=(1,1,1) block=(64,1,1) lds=0")
    elif _k == "E":
        e(f"; @launch kernel=empty_kernel grid=(250,1,1) block=(1024,1,1) lds=131072")
    else:
        e(f"; @launch kernel={KB} grid=({NB},1,1) block=(1024,1,1) lds={B_LDS}")
e('.amdgcn_target "amdgcn-amd-amdhsa--gfx950"')
e(".text")
kernel_a()
kernel_b()
if set(os.environ.get("LIST", "")) & set("eE"):
    e(".globl empty_kernel")
    e(".p2align 8")
    e(".type empty_kernel,@function")
    lab("empty_kernel")
    e("  s_endpgm")
e('.section .rodata,"a"')
if set(os.environ.get("LIST", "")) & set("eE"):
    descriptor("empty_kernel", 128, 102)
descriptor(KA, 128, 102)
descriptor(KB, 128, 102)
dst = sys.argv[1] if len(sys.argv) > 1 else "standalone__molecular_angular_gemnet__graph.s"
open(dst, "w").write("\n".join(out) + "\n")
print("wrote", dst, len(out), "lines")
```

```python
import sys, os
DBG = os.environ.get("DBG", "")
ABL = os.environ.get("ABL", "").split(",")
def pol(name, default=""):
    v = os.environ.get(name, default)
    return (" " + v.replace("+", " ")) if v else ""
PF = int(os.environ.get("PF", "0"))
PFLEAD = int(os.environ.get("PFLEAD", "8"))
BARN = int(os.environ.get("BARN", "4"))
SPREAD = int(os.environ.get("SPREAD", "1"))
XMAP = int(os.environ.get("XMAP", "1"))
AIN = pol("AIN"); ATAB = pol("ATAB"); AST = pol("AST"); BREC = pol("BREC"); BOUT = pol("BOUT"); BM = pol("BM")

KA = "standalone__molecular_angular_gemnet__graph_part_kernel"
KB = "standalone__molecular_angular_gemnet__graph_kernel"

E = 400000
T = 6400000
NCH = 250
CH = 25600
NB = 250
BINE = 1600
KS = 8

WS_RECA = 256
WS_RECC = WS_RECA + T * 4
WS_TT = WS_RECA + T * 6
WS_STATS = WS_TT + NCH * 1024

A_HIST = 0
A_C = 8192
A_A = A_C + CH * 2
A_SCR = A_A + CH * 4
A_LDS = A_SCR + 128

ROWB = 80
B_FLAG = BINE * ROWB
B_LDS = 131072

out = []
def e(s=""):
    out.append(s)
def lab(s):
    out.append(s + ":")

DPP = "row_mask:0xf bank_mask:0xf"

def srd(reg, lo, hi, size, stride=0):
    e(f"  s_mov_b32 s{reg}, s{lo}")
    e(f"  s_and_b32 s{reg+1}, s{hi}, 0xffff")
    if stride:
        e(f"  s_or_b32 s{reg+1}, s{reg+1}, {stride << 16:#x}")
    e(f"  s_mov_b32 s{reg+2}, {size}")
    e(f"  s_mov_b32 s{reg+3}, 0x20000")

def srd_off(reg, lo, hi, off_sreg, size, const=0, stride=0):
    e(f"  s_add_u32 s{reg}, s{lo}, s{off_sreg}")
    e(f"  s_addc_u32 s{reg+1}, s{hi}, 0")
    if const:
        e(f"  s_add_u32 s{reg}, s{reg}, {const}")
        e(f"  s_addc_u32 s{reg+1}, s{reg+1}, 0")
    e(f"  s_and_b32 s{reg+1}, s{reg+1}, 0xffff")
    if stride:
        e(f"  s_or_b32 s{reg+1}, s{reg+1}, {stride << 16:#x}")
    e(f"  s_mov_b32 s{reg+2}, {size}")
    e(f"  s_mov_b32 s{reg+3}, 0x20000")

STAMP = os.environ.get("STAMP", "")
stamp_n = [0]
def stamp(kern, name):
    if STAMP != kern:
        return
    k = stamp_n[0]; stamp_n[0] += 1
    assert k < 16
    e(f"  s_memrealtime s[84:85]")
    e("  s_waitcnt lgkmcnt(0)")
    e(f"  s_mov_b32 s{86+k}, s84")
    if k == 0:
        e("  s_memtime s[84:85]")
        e("  s_waitcnt lgkmcnt(0)")
        e("  s_mov_b32 s101, s84")
    print("stamp", k, name)
def stamp_dump(kern, wsreg, wavereg):
    if STAMP != kern:
        return
    e("  s_memtime s[84:85]")
    e("  s_waitcnt lgkmcnt(0)")
    e("  s_sub_u32 s101, s84, s101")
    e(f"  s_cmp_eq_u32 s{wavereg}, {int(os.environ.get('STAMPW', '0'))}")
    e(f"  s_cbranch_scc0 L{kern}_nodump")
    e(f"  s_lshl_b32 s84, s2, 6")
    e(f"  s_add_u32 s84, s84, {128<<20}")
    e(f"  s_add_u32 s102-18, s{wsreg}, s84".replace("s102-18", "s84"))
    e(f"  s_addc_u32 s85, s{wsreg+1}, 0")
    e("  v_mov_b32 v60, 0")
    for k in range(16):
        e(f"  v_mov_b32 v61, s{86+k}")
        e(f"  global_store_dword v60, v61, s[84:85] offset:{4*k}")
    lab(f"L{kern}_nodump")

def wave_scan_add(v):
    for sh in (1, 2, 4, 8):
        e("  s_nop 1")
        e(f"  v_add_u32_dpp v{v}, v{v}, v{v} row_shr:{sh} {DPP}")
    e("  s_nop 1")
    e(f"  v_add_u32_dpp v{v}, v{v}, v{v} row_bcast:15 row_mask:0xa bank_mask:0xf")
    e("  s_nop 1")
    e(f"  v_add_u32_dpp v{v}, v{v}, v{v} row_bcast:31 row_mask:0xc bank_mask:0xf")

def wave_max(vs):
    steps = [f"row_shr:{sh} {DPP}" for sh in (1, 2, 4, 8)] + \
            ["row_bcast:15 row_mask:0xa bank_mask:0xf", "row_bcast:31 row_mask:0xc bank_mask:0xf"]
    for st in steps:
        e("  s_nop 1")
        for v in vs:
            e(f"  v_max_u32_dpp v{v}, v{v}, v{v} {st}")

class VmQ:
    def __init__(self):
        self.q = []
    def issue(self, tag):
        self.q.append(tag)
        assert len(self.q) <= 63, "vmcnt overflow"
    def wait(self, tag):
        if tag not in self.q:
            return
        idx = max(i for i, t in enumerate(self.q) if t == tag)
        n = len(self.q) - 1 - idx
        assert n <= 63
        e(f"  s_waitcnt vmcnt({n})")
        self.q = self.q[idx + 1:]
    def drain(self):
        e("  s_waitcnt vmcnt(0)")
        self.q = []

def kernel_a():
    I0, O0, AN0, RK0, TB0 = 8, 34, 60, 74, 100
    vOne, vF = 2, 3
    t0, t1, t2, t3, t4, t5 = 116, 117, 118, 119, 120, 121
    e(f".globl {KA}")
    e(".p2align 8")
    e(f".type {KA},@function")
    lab(KA)
    e(f"  s_cmp_ge_u32 s2, {NCH}")
    e("  s_cbranch_scc1 LA_end")
    e("  s_load_dwordx4 s[4:7], s[0:1], 0")
    e("  s_load_dwordx2 s[8:9], s[0:1], 16      ; idx_out")
    e("  s_load_dwordx2 s[10:11], s[0:1], 32    ; angle")
    e("  s_load_dwordx2 s[12:13], s[0:1], 48    ; ang_freq")
    e("  s_load_dwordx2 s[14:15], s[0:1], 104   ; ws")
    e("  v_lshrrev_b32 v1, 6, v0")
    e("  v_lshlrev_b32 v4, 4, v0                ; t*16")
    e("  v_readfirstlane_b32 s50, v1")
    e("  v_lshlrev_b32 v5, 3, v0                ; t*8")
    e("  v_lshlrev_b32 v6, 2, v0                ; t*4")
    e("  v_lshlrev_b32 v7, 1, v0                ; t*2")
    e(f"  v_mov_b32 v{vOne}, 1")
    e(f"  v_mov_b32 v{t0}, 0")
    e(f"  v_mov_b32 v{t1}, 0")
    e(f"  s_mul_i32 s48, s2, {CH*4}")
    e(f"  s_mul_i32 s49, s2, {CH*2}")
    e("  s_lshl_b32 s51, s2, 10")
    e("  s_lshl_b32 s52, s2, 3")
    e("  s_waitcnt lgkmcnt(0)")
    srd_off(16, 6, 7, 48, CH * 4)
    srd_off(20, 8, 9, 48, CH * 4)
    srd_off(24, 10, 11, 49, CH * 2)
    vm = VmQ()
    APIPE = int(os.environ.get("APIPE", "7"))
    e(f"  ds_write_b64 v5, v[{t0}:{t1}] offset:{A_HIST}")
    e(f"  v_and_b32 v{t2}, 15, v0")
    e(f"  v_lshlrev_b32 v{t2}, 3, v{t2}")
    e(f"  v_add_u32 v{t2}, {A_SCR}, v{t2}")
    e(f"  ds_write_b64 v{t2}, v[{t0}:{t1}]")
    e(f"  global_load_ushort v{vF}, v{t0}, s[12:13]")
    vm.issue("F")
    stamp("A", "start")
    def loads(u):
        e(f"  s_mov_b32 s53, {u*16384}")
        e(f"  s_mov_b32 s54, {u*8192}")
        if u < 6:
            e(f"  buffer_load_dwordx4 v[{I0+4*u}:{I0+4*u+3}], v4, s[16:19], s53 offen{AIN}")
            e(f"  buffer_load_dwordx4 v[{O0+4*u}:{O0+4*u+3}], v4, s[20:23], s53 offen{AIN}")
            e(f"  buffer_load_dwordx2 v[{AN0+2*u}:{AN0+2*u+1}], v5, s[24:27], s54 offen{AIN}")
        else:
            e(f"  buffer_load_dword v{I0+24}, v6, s[16:19], s53 offen{AIN}")
            e(f"  buffer_load_dword v{O0+24}, v6, s[20:23], s53 offen{AIN}")
            e(f"  buffer_load_ushort v{AN0+12}, v7, s[24:27], s54 offen{AIN}")
        for _ in range(3):
            vm.issue(f"L{u}")
    APRIO = int(os.environ.get("APRIO", "1"))
    e("  s_waitcnt lgkmcnt(0)")
    e("  s_barrier")
    if APRIO:
        e("  s_setprio 3")
    for u in range(min(APIPE, 7)):
        loads(u)
    if APRIO:
        e("  s_setprio 0")
    srd_off(28, 4, 5, 49, 51200)
    srd_off(32, 14, 15, 48, CH * 4, WS_RECA)
    srd_off(36, 14, 15, 49, CH * 2, WS_RECC)
    srd_off(40, 14, 15, 51, 1024, WS_TT)
    srd_off(44, 14, 15, 52, 8, WS_STATS)
    e(f"  s_mov_b32 s55, {(2**32 + BINE - 1)//BINE}      ; o/1600 magic")
    e(f"  s_mov_b32 s56, {(2**32 * KS)//E - 1}")
    e(f"  s_mov_b32 s57, {-BINE}")

    def rec(r):
        I, O, R = I0 + r, O0 + r, RK0 + r
        e(f"  v_mul_hi_u32_u24 v{t0}, s55, v{O}           ; bin")
        e(f"  v_mul_hi_u32_u24 v{t1}, s56, v{I}           ; i range")
        e(f"  v_mad_i32_i24 v{t2}, v{t0}, s57, v{O}       ; o local")
        e(f"  v_lshlrev_b32 v{t1}, 2, v{t1}")
        e(f"  v_lshl_add_u32 v{O}, v{t0}, 5, v{t1}        ; key*4")
        e(f"  v_lshl_or_b32 v{I}, v{t2}, 19, v{I}")
        e(f"  ds_add_rtn_u32 v{R}, v{O}, v{vOne} offset:{A_HIST}")
        e(f"  v_not_b32 v{I}, v{I}")

    def cospair(a):
        x, y = t3, t4
        e(f"  v_lshlrev_b32 v{x}, 16, v{a}")
        e(f"  v_and_b32 v{y}, 0xffff0000, v{a}")
        e(f"  v_mul_f32 v{x}, v{vF}, v{x}")
        e(f"  v_mul_f32 v{y}, v{vF}, v{y}")
        e(f"  v_cvt_pk_bf16_f32 v{t5}, v{x}, v{y}")
        e(f"  v_lshlrev_b32 v{x}, 16, v{t5}")
        e(f"  v_and_b32 v{y}, 0xffff0000, v{t5}")
        e(f"  v_mul_f32 v{x}, 0.15915494, v{x}")
        e(f"  v_mul_f32 v{y}, 0.15915494, v{y}")
        e(f"  v_fract_f32 v{x}, v{x}")
        e(f"  v_fract_f32 v{y}, v{y}")
        e(f"  v_cos_f32 v{x}, v{x}")
        e(f"  v_cos_f32 v{y}, v{y}")
        e("  s_nop 0")
        e(f"  v_cvt_pk_bf16_f32 v{a}, v{x}, v{y}")

    stamp("A", "loads issued")
    for u in range(7):
        vm.wait(f"L{u}")
        if u in (0, 3, 6):
            stamp("A", f"group {u} arrived")
        if u + APIPE < 7:
            loads(u + APIPE)
        if u == 0:
            e(f"  v_lshlrev_b32 v{vF}, 16, v{vF}")
        if u < 6:
            for r in range(4):
                rec(4 * u + r)
            cospair(AN0 + 2 * u)
            cospair(AN0 + 2 * u + 1)
        else:
            rec(24)
            cospair(AN0 + 12)
    for u in range(4):
        e(f"  s_mov_b32 s53, {u*16384}")
        e(f"  buffer_load_dwordx4 v[{TB0+4*u}:{TB0+4*u+3}], v4, s[28:31], s53 offen{ATAB}")
    e("  s_waitcnt lgkmcnt(0)")
    e("  s_barrier")
    stamp("A", "hist barrier")
    e(f"  ds_read_b64 v[{t0}:{t1}], v5 offset:{A_HIST}")
    e("  s_waitcnt lgkmcnt(0)")
    e(f"  v_add_u32 v{t2}, v{t0}, v{t1}")
    e(f"  v_mov_b32 v{t3}, v{t2}")
    wave_scan_add(t3)
    e(f"  s_lshl_b32 s58, s50, 2")
    e(f"  s_add_u32 s58, s58, {A_SCR}")
    e(f"  v_mov_b32 v{t4}, s58")
    e("  s_mov_b32 exec_lo, 0")
    e("  s_mov_b32 exec_hi, 0x80000000")
    e(f"  ds_write_b32 v{t4}, v{t3}")
    e("  s_mov_b64 exec, -1")
    e("  s_waitcnt lgkmcnt(0)")
    e("  s_barrier")
    e(f"  v_and_b32 v{t4}, 15, v0")
    e(f"  v_lshlrev_b32 v{t4}, 2, v{t4}")
    e(f"  v_add_u32 v{t4}, {A_SCR}, v{t4}")
    e(f"  ds_read_b32 v{t4}, v{t4}")
    e("  s_waitcnt lgkmcnt(0)")
    e(f"  v_mov_b32 v{t5}, v{t4}")
    for sh in (1, 2, 4, 8):
        e("  s_nop 1")
        e(f"  v_add_u32_dpp v{t5}, v{t5}, v{t5} row_shr:{sh} {DPP}")
    e(f"  v_sub_u32 v{t5}, v{t5}, v{t4}")
    e("  s_nop 0")
    e(f"  v_readlane_b32 s58, v{t5}, s50")
    e(f"  v_sub_u32 v{t3}, v{t3}, v{t2}")
    e("  s_nop 0")
    e(f"  v_add_u32 v{t2}, s58, v{t3}         ; start0")
    e(f"  v_add_u32 v{t3}, v{t2}, v{t0}       ; start1")
    e(f"  ds_write_b64 v5, v[{t2}:{t3}] offset:{A_HIST}")
    e(f"  v_and_b32 v{t4}, 3, v0")
    e(f"  v_cmp_eq_u32 vcc, 0, v{t4}")
    e("  s_and_saveexec_b64 s[60:61], vcc")
    e(f"  buffer_store_dword v{t2}, v0, s[40:43], 0 offen")
    e("  s_mov_b64 exec, s[60:61]")
    e("  s_waitcnt lgkmcnt(0)")
    e("  s_barrier")
    stamp("A", "scan done")
    groups = [range(0, 9), range(9, 17), range(17, 25)]
    for g in groups:
        for r in g:
            e(f"  ds_read_b32 v{O0+r}, v{O0+r} offset:{A_HIST}")
        e("  s_waitcnt lgkmcnt(0)")
        for r in g:
            e(f"  v_add_u32 v{O0+r}, v{O0+r}, v{RK0+r}")
            e(f"  v_lshlrev_b32 v{RK0+r}, 2, v{O0+r}")
            e(f"  v_lshlrev_b32 v{O0+r}, 1, v{O0+r}")
            e(f"  ds_write_b32 v{RK0+r}, v{I0+r} offset:{A_A}")
            op = "ds_write_b16" if r % 2 == 0 else "ds_write_b16_d16_hi"
            e(f"  {op} v{O0+r}, v{AN0+r//2} offset:{A_C}")
    stamp("A", "scatter issued")
    gM, gR = 122, 123
    e(f"  v_mov_b32 v{gM}, 0")
    e(f"  v_mov_b32 v{gR}, 0")
    e("  s_mov_b32 s58, 0x7fff7fff")
    e("  s_waitcnt vmcnt(0)")
    for u in range(4):
        b = TB0 + 4 * u
        for k in range(4):
            e(f"  v_and_b32 v{b+k}, s58, v{b+k}")
        e(f"  v_pk_max_u16 v{b}, v{b}, v{b+1}")
        e(f"  v_pk_max_u16 v{b+2}, v{b+2}, v{b+3}")
        e(f"  v_pk_max_u16 v{b}, v{b}, v{b+2}")
        e(f"  v_lshrrev_b32 v{b+1}, 16, v{b}")
        e(f"  v_and_b32 v{b}, 0xffff, v{b}")
        e(f"  v_max_u32 v{b}, v{b}, v{b+1}")
        e("  s_nop 1")
        e(f"  v_max_u32_dpp v{b}, v{b}, v{b} quad_perm:[1,0,3,2] {DPP}")
        e(f"  v_max_u32 v{gM}, v{gM}, v{b}")
        e(f"  v_sub_u32 v{b}, 0x8000, v{b}")
        e(f"  v_and_b32 v{b}, 0x7fff, v{b}")
        e(f"  v_max_u32 v{gR}, v{gR}, v{b}")
    wave_max([gM, gR])
    e(f"  v_mov_b32 v{t4}, {A_SCR + 64}")
    e("  s_mov_b32 exec_lo, 0")
    e("  s_mov_b32 exec_hi, 0x80000000")
    e(f"  ds_max_u32 v{t4}, v{gM}")
    e(f"  ds_max_u32 v{t4}, v{gR} offset:4")
    e("  s_mov_b64 exec, -1")
    e("  s_waitcnt lgkmcnt(0)")
    e("  s_barrier")
    stamp("A", "scatter barrier")
    d = 8
    for u in range(6):
        e(f"  v_add_u32 v{t0}, {u*16384}, v4")
        e(f"  ds_read_b128 v[{d+4*u}:{d+4*u+3}], v{t0} offset:{A_A}")
    for u in range(3):
        e(f"  v_add_u32 v{t0}, {u*16384}, v4")
        e(f"  ds_read_b128 v[{d+24+4*u}:{d+24+4*u+3}], v{t0} offset:{A_C}")
    e(f"  v_mov_b32 v{t4}, {A_SCR + 64}")
    e(f"  ds_read_b64 v[{t2}:{t3}], v{t4}")
    for u in range(6):
        e(f"  s_mov_b32 s53, {u*16384}")
        e(f"  s_waitcnt lgkmcnt({9-u})")
        e(f"  buffer_store_dwordx4 v[{d+4*u}:{d+4*u+3}], v4, s[32:35], s53 offen{AST}")
    for u in range(3):
        e(f"  s_mov_b32 s53, {u*16384}")
        e(f"  s_waitcnt lgkmcnt({3-u})")
        e(f"  buffer_store_dwordx4 v[{d+24+4*u}:{d+24+4*u+3}], v4, s[36:39], s53 offen{AST}")
    stamp("A", "stores issued")
    if STAMP == "A":
        e("  s_waitcnt vmcnt(0)")
    stamp("A", "stores done")
    stamp_dump("A", 14, 50)
    e("  s_cmp_lt_u32 s50, 4")
    e("  s_cbranch_scc0 LA_t1")
    e(f"  v_add_u32 v{t0}, {6*16384}, v4")
    e(f"  ds_read_b128 v[60:63], v{t0} offset:{A_A}")
    e(f"  s_mov_b32 s53, {6*16384}")
    e("  s_waitcnt lgkmcnt(0)")
    e(f"  buffer_store_dwordx4 v[60:63], v4, s[32:35], s53 offen{AST}")
    lab("LA_t1")
    e("  s_cmp_lt_u32 s50, 2")
    e("  s_cbranch_scc0 LA_t2")
    e(f"  v_add_u32 v{t0}, {3*16384}, v4")
    e(f"  ds_read_b128 v[64:67], v{t0} offset:{A_C}")
    e(f"  s_mov_b32 s53, {3*16384}")
    e("  s_waitcnt lgkmcnt(0)")
    e(f"  buffer_store_dwordx4 v[64:67], v4, s[36:39], s53 offen{AST}")
    lab("LA_t2")
    e("  s_cmp_eq_u32 s50, 15")
    e("  s_cbranch_scc0 LA_end")
    e("  s_waitcnt lgkmcnt(0)")
    e(f"  v_mov_b32 v{t0}, 0")
    e("  s_mov_b32 exec_lo, 1")
    e("  s_mov_b32 exec_hi, 0")
    e(f"  buffer_store_dwordx2 v[{t2}:{t3}], v{t0}, s[44:47], 0 offen")
    lab("LA_end")
    e("  s_endpgm")

def kernel_b():
    vH8, vIA, vIB, vCB, vOne = 1, 2, 4, 6, 7
    G0 = 8
    OA, CH_ = 40, 44
    P0 = 48
    t0, t1, t2, t3, t4, t5, t6, t7, t8 = range(56, 65)
    BS, LN = 65, 69
    XZ = 65
    CU = 73
    vL16 = 77
    WDS = 78
    RCP, RA0 = 80, 96
    def RA(s, j): return RA0 + 4 * j + s
    def RCp(s, j): return RCP + 4 * (j // 2) + s
    RBF, CEN, WT, MR = 96, 103, 104, 104
    WD, WU, WS, WR = 80, 82, 84, 86
    sW, sMag, sSc, sInv, sMode, sMsk, sN80, sTail, sPerm = 50, 53, 54, 55, 56, 57, 58, 59, 60
    sOv = 66
    vm = VmQ()
    e(f".globl {KB}")
    e(".p2align 8")
    e(f".type {KB},@function")
    lab(KB)
    e(f"  s_cmp_ge_u32 s2, {NB}")
    e("  s_cbranch_scc1 LB_end")
    if XMAP:
        e("  s_and_b32 s3, s2, 7")
        e("  s_lshr_b32 s2, s2, 3")
        e("  s_mul_i32 s4, s3, 31")
        e("  s_min_u32 s3, s3, 2")
        e("  s_add_u32 s2, s2, s3")
        e("  s_add_u32 s2, s2, s4")
    e("  s_load_dwordx2 s[78:79], s[0:1], 104    ; ws")
    e("  s_load_dwordx2 s[68:69], s[0:1], 0      ; m")
    e("  s_load_dwordx2 s[70:71], s[0:1], 24     ; dist")
    e("  s_load_dwordx2 s[40:41], s[0:1], 40     ; centers")
    e("  s_load_dwordx4 s[44:47], s[0:1], 56")
    e("  s_load_dwordx4 s[72:75], s[0:1], 72")
    e("  s_load_dwordx2 s[76:77], s[0:1], 88     ; out")
    e("  v_lshrrev_b32 v8, 6, v0")
    e(f"  v_and_b32 v{vL16}, 15, v0")
    e(f"  v_readfirstlane_b32 s{sW}, v8")
    e(f"  v_and_b32 v9, 1, v0")
    e(f"  v_lshlrev_b32 v{vH8}, 3, v9")
    e(f"  v_lshlrev_b32 v{vIA+1}, 4, v9")
    e(f"  v_lshlrev_b32 v{vIB+1}, 4, v9")
    e(f"  v_mov_b32 v{vCB}, {2047*ROWB}")
    e(f"  v_mov_b32 v{vOne}, 1")
    e(f"  s_mul_i32 s80, s2, {BINE*32}")
    e(f"  s_mul_i32 s81, s2, {BINE*2}")
    e(f"  s_mov_b32 s{sMode}, 0")
    e(f"  s_mov_b32 s{sMsk}, 0x7ffff")
    e(f"  s_mov_b32 s{sN80}, {-ROWB}")
    e(f"  s_mov_b32 s{sPerm}, 0x05040100")
    e("  s_waitcnt lgkmcnt(0)")
    e(f"  s_add_u32 s82, s78, {WS_TT}")
    e("  s_addc_u32 s83, s79, 0")
    srd(16, 82, 83, NCH * 1024)
    e(f"  s_add_u32 s82, s78, {WS_STATS}")
    e("  s_addc_u32 s83, s79, 0")
    srd(20, 82, 83, NCH * 8)
    e(f"  s_add_u32 s82, s78, {WS_RECA - 4}")
    e("  s_addc_u32 s83, s79, 0")
    srd(4, 82, 83, T + 1, 4)
    e(f"  s_add_u32 s82, s78, {WS_RECC - 2}")
    e("  s_addc_u32 s83, s79, 0")
    srd(8, 82, 83, T + 1, 2)
    srd(12, 68, 69, E, 32)
    srd_off(24, 68, 69, 80, BINE * 32)
    srd_off(28, 76, 77, 80, BINE * 32)
    srd_off(32, 70, 71, 81, BINE * 2)
    lab("LB_start")
    stamp("B", "start")
    ST0 = 48
    def run_table_loads():
        g = t0
        e(f"  v_and_b32 v{t1}, 63, v0")
        e(f"  v_lshrrev_b32 v{g}, 4, v{t1}            ; g = lane>>4")
        e(f"  s_lshl_b32 s80, s{sW}, 4")
        e(f"  v_add_u32 v{t1}, s80, v{g}              ; 16w+g")
        e(f"  s_lshl_b32 s81, s2, 2")
        e(f"  v_lshlrev_b32 v{t2}, 10, v{t1}")
        e(f"  v_add_u32 v{t2}, s81, v{t2}")
        for s in range(4):
            e(f"  v_add_u32 v{t3}, {s*4096}, v{t2}")
            e(f"  buffer_load_dwordx2 v[{G0+2*s}:{G0+2*s+1}], v{t3}, s[16:19], 0 offen")
            vm.issue("T")
    def run_params():
        e(f"  s_mov_b32 s80, {CH}")
        for s in range(4):
            e(f"  v_add_u32 v{t3}, {4*s}, v{t1}")
            e(f"  v_mad_u32_u24 v{t3}, v{t3}, s80, 1")
            e(f"  v_add_u32 v{BS+s}, v{t3}, v{G0+2*s}")
            e(f"  v_sub_u32 v{LN+s}, v{G0+2*s+1}, v{G0+2*s}")
    run_table_loads()
    e(f"  v_and_b32 v{t3}, 63, v0")
    e(f"  v_lshlrev_b32 v{t3}, 3, v{t3}")
    for s in range(4):
        e(f"  buffer_load_dwordx2 v[{ST0+2*s}:{ST0+2*s+1}], v{t3}, s[20:23], 0 offen offset:{s*512}")
        vm.issue("ST")
    ZR = 40
    for k in range(4):
        e(f"  v_mov_b32 v{ZR+k}, 0")
    e(f"  v_lshlrev_b32 v{t3}, 4, v0")
    for u in range(8):
        if u == 4:
            e(f"  v_add_u32 v{t3}, 0x10000, v{t3}")
        e(f"  ds_write_b128 v{t3}, v[{ZR}:{ZR+3}] offset:{(u%4)*16384}")
    vm.wait("T")
    stamp("B", "T arrived")
    run_params()
    e(f"  v_max_u32 v{t3}, v{LN}, v{LN+1}")
    e(f"  v_max3_u32 v{t3}, v{t3}, v{LN+2}, v{LN+3}")
    e(f"  v_cmp_lt_u32 vcc, 0x80, v{t3}")
    e(f"  s_cmp_lg_u64 vcc, 0")
    e(f"  s_cselect_b32 s{sTail}, 1, 0")
    def LZ(s, j): return RCp(s, j) if j % 2 == 0 else G0 + 8 + 4 * (j // 2) + s
    for s in range(4):
        lp, acc, lo, hi = t2, t3, t4, t6
        e(f"  v_min_u32 v{lp}, 0x80, v{LN+s}          ; len'")
        e(f"  v_mov_b32 v{lo}, v{vL16}")
        e(f"  v_mov_b32 v{acc}, v{lp}")
        for j in range(8):
            e(f"  v_lshrrev_b32 v{hi}, 3, v{acc}")
            e(f"  v_add_u32 v{acc}, v{acc}, v{lp}")
            e(f"  v_cmp_lt_u32 vcc, v{lo}, v{hi}")
            e(f"  v_add_u32 v{t7}, v{BS+s}, v{lo}")
            e(f"  v_add_u32 v{lo}, v{hi}, v{vL16}")
            e(f"  v_cndmask_b32 v{RA(s,j)}, 0, v{t7}, vcc")
            e("  s_mov_b64 exec, vcc")
            e(f"  buffer_load_ushort v{LZ(s,j)}, v{RA(s,j)}, s[8:11], 0 idxen{BREC}")
            vm.issue(f"C{s}_{j}")
            e(f"  buffer_load_dword v{RA(s,j)}, v{RA(s,j)}, s[4:7], 0 idxen{BREC}")
            vm.issue(f"A{s}_{j}")
            e("  s_mov_b64 exec, -1")
        if s == 2:
            vm.wait("A0_7")
    stamp("B", "rec loads issued")
    a, b = ST0, ST0 + 1
    e(f"  v_max3_u32 v{a}, v{ST0}, v{ST0+2}, v{ST0+4}")
    e(f"  v_max3_u32 v{b}, v{ST0+1}, v{ST0+3}, v{ST0+5}")
    e(f"  v_max_u32 v{a}, v{a}, v{ST0+6}")
    e(f"  v_max_u32 v{b}, v{b}, v{ST0+7}")
    wave_max([a, b])
    e("  s_nop 0")
    e(f"  v_readlane_b32 s80, v{a}, 63")
    e(f"  v_readlane_b32 s81, v{b}, 63")
    e("  s_nop 0")
    e("  s_lshr_b32 s82, s80, 7")
    e("  s_sub_u32 s81, 0x8000, s81")
    e("  s_lshr_b32 s81, s81, 7")
    e("  s_sub_u32 s83, s82, s81")
    e(f"  s_cmp_eq_u32 s{sMode}, 2")
    e("  s_cbranch_scc1 LB_float")
    e("  s_cmp_ge_u32 s80, 0x7f80")
    e("  s_cbranch_scc1 LB_float")
    e("  s_cmp_lt_u32 s82, 32")
    e("  s_cbranch_scc1 LB_float")
    e("  s_cmp_gt_u32 s82, 200")
    e("  s_cbranch_scc1 LB_float")
    e("  s_cmp_gt_i32 s83, 10")
    e("  s_cbranch_scc1 LB_float")
    e(f"  s_mov_b32 s{sMag}, 0x4b400000")
    e("  s_sub_u32 s83, 275, s82")
    e(f"  s_lshl_b32 s{sSc}, s83, 23")
    e("  s_sub_u32 s83, s82, 21")
    e(f"  s_lshl_b32 s{sInv}, s83, 23")
    e("  s_branch LB_fast")
    lab("LB_float")
    e(f"  s_mov_b32 s{sMode}, 2")
    e(f"  s_mov_b32 s{sMag}, 0")
    e(f"  s_mov_b32 s{sSc}, 1.0")
    e(f"  s_mov_b32 s{sInv}, 1.0")
    e(f"  s_mov_b32 s{sTail}, 1")
    e("  s_waitcnt vmcnt(0) lgkmcnt(0)")
    e("  s_barrier")
    e("  s_branch LB_generic")
    lab("LB_fast")
    for s in range(4):
        for jj in range(4):
            vm.wait(f"C{s}_{2*jj+1}")
            e(f"  v_perm_b32 v{RCp(s,2*jj)}, v{LZ(s,2*jj+1)}, v{RCp(s,2*jj)}, s{sPerm}")
    vm.drain()
    stamp("B", "records arrived")

    def dec_idx(ra, dst):
        e(f"  v_bfi_b32 v{dst}, v{ra}, 0, s{sMsk}")
    def dec_rest(ra, rc, hi_half, s):
        e(f"  v_bfe_u32 v{t7}, v{ra}, 19, 11")
        if hi_half:
            e(f"  v_and_b32 v{t8}, 0xffff0000, v{rc}")
        else:
            e(f"  v_lshlrev_b32 v{t8}, 16, v{rc}")
        e(f"  v_mad_i32_i24 v{OA+s}, v{t7}, s{sN80}, v{vCB}")
        e(f"  v_mul_f32 v{CH_+s}, s{sSc}, v{t8}")
        e(f"  ds_add_u32 v{OA+s}, v{vOne} offset:64")
    def gather(s, h, src, tag):
        g0 = G0 + 8 * s + 4 * h
        vi = vIA if h == 0 else vIB
        qp = "[0,0,2,2]" if h == 0 else "[1,1,3,3]"
        e(f"  v_mov_b32_dpp v{vi}, v{src} quad_perm:{qp} {DPP}")
        if "nogather" in ABL:
            e(f"  v_mov_b32 v{vi}, -1")
        e(f"  buffer_load_dwordx4 v[{g0}:{g0+3}], v[{vi}:{vi+1}], s[12:15], 0 idxen offen")
        vm.issue(tag)
    def consume(s, h, isfloat):
        qp = "[0,0,2,2]" if h == 0 else "[1,1,3,3]"
        g0 = G0 + 8 * s + 4 * h
        ad, ch, cl = t0 + 3 * h, t1 + 3 * h, t2 + 3 * h
        e(f"  v_mov_b32_dpp v{ch}, v{CH_+s} quad_perm:{qp} {DPP}")
        e(f"  v_add_u32_dpp v{ad}, v{OA+s}, v{vH8} quad_perm:{qp} {DPP}")
        e(f"  v_lshrrev_b32 v{cl}, 16, v{ch}")
        for k in range(4):
            e(f"  v_dot2_f32_bf16 v{P0+2*k+1}, v{g0+k}, v{ch}, s{sMag}")
            e(f"  v_dot2_f32_bf16 v{P0+2*k}, v{g0+k}, v{cl}, s{sMag}")
            if "noatom" in ABL:
                continue
            if isfloat:
                e(f"  ds_add_f32 v{ad}, v{P0+2*k} offset:{16*k}")
                e(f"  ds_add_f32 v{ad}, v{P0+2*k+1} offset:{16*k+4}")
            else:
                e(f"  ds_add_u64 v{ad}, v[{P0+2*k}:{P0+2*k+1}] offset:{16*k}")
    e("  s_waitcnt lgkmcnt(0)")
    e("  s_barrier")
    stamp("B", "after barrier")
    tI = t6
    for s in range(4):
        dec_idx(RA(s, 0), tI)
        dec_rest(RA(s, 0), RCp(s, 0), False, s)
        gather(s, 0, tI, f"g0_{s}_0")
        gather(s, 1, tI, f"g0_{s}_1")

    def epi_loads1():
        gg, nn = t7, vL16
        e(f"  v_and_b32 v{t8}, 63, v0")
        e(f"  v_lshrrev_b32 v{gg}, 4, v{t8}")
        e(f"  v_lshlrev_b32 v{t8}, 6, v{gg}")
        e(f"  v_lshl_add_u32 v{t8}, v{nn}, 1, v{t8}     ; 64g + 2n")
        for k, off in enumerate((0, 32, 256, 288)):
            e(f"  global_load_ushort v{WT+k}, v{t8}, s[72:73] offset:{off}"); vm.issue("E1")
        for k in range(2):
            e(f"  global_load_ushort v{WT+8+k}, v{t8}, s[44:45] offset:{32*k}"); vm.issue("E1")
            e(f"  global_load_ushort v{WT+10+k}, v{t8}, s[46:47] offset:{32*k}"); vm.issue("E1")
        e(f"  v_lshlrev_b32 v{t8}, 7, v{gg}")
        e(f"  v_lshl_add_u32 v{t8}, v{nn}, 1, v{t8}     ; 128g + 2n")
        for k in range(4):
            e(f"  global_load_ushort v{WT+4+k}, v{t8}, s[74:75] offset:{32*k}"); vm.issue("E1")
        e(f"  v_lshlrev_b32 v{t8}, 2, v{gg}")
        e(f"  global_load_dword v{CEN}, v{t8}, s[40:41]"); vm.issue("E1")
        e(f"  s_lshl_b32 s80, s{sW}, 5")
        e(f"  v_lshl_add_u32 v{t8}, v{nn}, 1, s80")
        for u in range(7):
            e(f"  buffer_load_ushort v{RBF+u}, v{t8}, s[32:35], 0 offen offset:{u*512}"); vm.issue("E1")
    def epi_loads2():
        gg, nn = t7, vL16
        e(f"  v_and_b32 v{t8}, 63, v0")
        e(f"  v_lshrrev_b32 v{gg}, 4, v{t8}")
        e(f"  s_lshl_b32 s80, s{sW}, 9")
        e(f"  v_lshlrev_b32 v{t8}, 5, v{nn}")
        e(f"  v_lshl_add_u32 v{t8}, v{gg}, 3, v{t8}")
        e(f"  v_add_u32 v{t8}, s80, v{t8}")
        for u in range(7):
            e(f"  s_mov_b32 s81, {u*8192}")
            e(f"  buffer_load_dwordx2 v[{MR+2*u}:{MR+2*u+1}], v{t8}, s[24:27], s81 offen{BM}"); vm.issue("E2")
    def epi_prep_w():
        e(f"  v_lshl_or_b32 v{WD}, v{WT+1}, 16, v{WT}")
        e(f"  v_lshl_or_b32 v{WD+1}, v{WT+3}, 16, v{WT+2}")
        e(f"  v_lshl_or_b32 v{WU}, v{WT+5}, 16, v{WT+4}")
        e(f"  v_lshl_or_b32 v{WU+1}, v{WT+7}, 16, v{WT+6}")
        e(f"  v_lshl_or_b32 v{WR}, v{WT+9}, 16, v{WT+8}")
        e(f"  v_lshl_or_b32 v{WS}, v{WT+11}, 16, v{WT+10}")
        e(f"  v_mov_b32 v{WR+1}, 0")
        e(f"  v_mov_b32 v{WS+1}, 0")
        c0, c1, x, y, p = XZ, XZ + 1, XZ + 2, XZ + 3, XZ + 4
        for k in range(2):
            e(f"  v_lshlrev_b32 v{x}, 16, v{WD+k}")
            e(f"  v_and_b32 v{y}, 0xffff0000, v{WD+k}")
            e(f"  v_mul_f32 v{x}, s{sInv}, v{x}")
            e(f"  v_mul_f32 v{y}, s{sInv}, v{y}")
            e(f"  v_cvt_pk_bf16_f32 v{WDS+k}, v{x}, v{y}")
        e(f"  v_lshlrev_b32 v{c0}, 16, v{CEN}")
        e(f"  v_and_b32 v{c1}, 0xffff0000, v{CEN}")
    def epi_prep_rbf(u):
        c0, c1, x, y, p = XZ, XZ + 1, XZ + 2, XZ + 3, XZ + 4
        r = RBF + u
        e("  s_mov_b32 s80, 0xc1200000           ; -10.0")
        e("  s_mov_b32 s81, 0x3fb8aa3b           ; log2(e)")
        e(f"  v_lshlrev_b32 v{r}, 16, v{r}")
        e(f"  v_sub_f32 v{x}, v{r}, v{c0}")
        e(f"  v_sub_f32 v{y}, v{r}, v{c1}")
        for op in ("sq", "m10", "exp"):
            e(f"  v_cvt_pk_bf16_f32 v{p}, v{x}, v{y}")
            e(f"  v_lshlrev_b32 v{x}, 16, v{p}")
            e(f"  v_and_b32 v{y}, 0xffff0000, v{p}")
            if op == "sq":
                e(f"  v_mul_f32 v{x}, v{x}, v{x}")
                e(f"  v_mul_f32 v{y}, v{y}, v{y}")
            elif op == "m10":
                e(f"  v_mul_f32 v{x}, s80, v{x}")
                e(f"  v_mul_f32 v{y}, s80, v{y}")
            else:
                e(f"  v_mul_f32 v{x}, s81, v{x}")
                e(f"  v_mul_f32 v{y}, s81, v{y}")
                e(f"  v_exp_f32 v{x}, v{x}")
                e(f"  v_exp_f32 v{y}, v{y}")
                e("  s_nop 0")
        e(f"  v_cvt_pk_bf16_f32 v{r}, v{x}, v{y}")
    def epi_prep():
        epi_prep_w()
        for u in range(7):
            epi_prep_rbf(u)

    for j in range(8):
        if "nobar" not in ABL:
            e("  s_barrier")
        if j in (0, 1, 2, 4, 6, 7):
            stamp("B", f"phase {j} begin")
        for s in range(4):
            last = (j == 7)
            if s and s % BARN == 0 and not last:
                e("  s_barrier")
            if not last:
                dec_idx(RA(s, j + 1), tI)
            vm.wait(f"g{j}_{s}_0")
            consume(s, 0, False)
            if not last:
                gather(s, 0, tI, f"g{j+1}_{s}_0")
            vm.wait(f"g{j}_{s}_1")
            consume(s, 1, False)
            if not last:
                gather(s, 1, tI, f"g{j+1}_{s}_1")
                dec_rest(RA(s, j + 1), RCp(s, j + 1), (j + 1) % 2 == 1, s)
            step = 4 * j + s
            if step == 15:
                epi_loads1()
            if SPREAD:
                if step == 19:
                    vm.wait("E1")
                    epi_prep_w()
                if 20 <= step <= 26:
                    epi_prep_rbf(step - 20)
                if step == 27:
                    epi_loads2()
            else:
                if step == 20:
                    vm.wait("E1")
                    epi_prep()
                if step == 23:
                    epi_loads2()
    stamp("B", "main done")
    e(f"  s_cmp_eq_u32 s{sTail}, 0")
    e("  s_cbranch_scc1 LB_epi")
    lab("LB_generic")
    q_main = list(vm.q)
    e("  s_waitcnt vmcnt(0)")
    run_table_loads()
    e("  s_waitcnt vmcnt(0)")
    run_params()
    for s in range(4):
        e(f"  v_min_u32 v{CU+s}, 0x80, v{LN+s}")
        e(f"  s_cmp_eq_u32 s{sMode}, 2")
        e(f"  s_cbranch_scc0 LB_gen{s}_c")
        e(f"  v_mov_b32 v{CU+s}, 0")
        lab(f"LB_gen{s}_c")
    for s in range(4):
        lab(f"LB_gen{s}")
        e(f"  v_add_u32 v{t0}, v{CU+s}, v{vL16}")
        e(f"  v_cmp_lt_u32 vcc, v{t0}, v{LN+s}")
        e(f"  s_cbranch_vccz LB_gen{s}_done")
        e(f"  v_add_u32 v{t0}, v{BS+s}, v{t0}")
        e(f"  v_add_u32 v{CU+s}, 16, v{CU+s}")
        e(f"  v_cndmask_b32 v{t0}, -1, v{t0}, vcc")
        e(f"  buffer_load_dword v{G0+8}, v{t0}, s[4:7], 0 idxen")
        e(f"  buffer_load_ushort v{G0+9}, v{t0}, s[8:11], 0 idxen")
        e("  s_waitcnt vmcnt(0)")
        dec_idx(G0 + 8, tI)
        dec_rest(G0 + 8, G0 + 9, False, 0)
        gather(0, 0, tI, "x")
        gather(0, 1, tI, "x")
        e("  s_waitcnt vmcnt(0)")
        e(f"  s_cmp_eq_u32 s{sMode}, 2")
        e(f"  s_cbranch_scc1 LB_gen{s}_f")
        consume(0, 0, False)
        consume(0, 1, False)
        e(f"  s_branch LB_gen{s}")
        lab(f"LB_gen{s}_f")
        consume(0, 0, True)
        consume(0, 1, True)
        e(f"  s_branch LB_gen{s}")
        lab(f"LB_gen{s}_done")
    e(f"  s_cmp_eq_u32 s{sMode}, 2")
    e("  s_cbranch_scc0 LB_epi")
    epi_loads1()
    e("  s_waitcnt vmcnt(0)")
    epi_prep()
    epi_loads2()
    lab("LB_epi")
    vm.q = []
    e("  s_waitcnt lgkmcnt(0)")
    e("  s_barrier")
    stamp("B", "final barrier")
    g = t0
    e(f"  v_and_b32 v{t1}, 63, v0")
    e(f"  v_lshrrev_b32 v{g}, 4, v{t1}")
    e(f"  s_lshl_b32 s80, s{sW}, 4")
    e(f"  v_add_u32 v{t1}, s80, v{vL16}")
    e(f"  v_mul_u32_u24 v{t1}, {ROWB}, v{t1}")
    e(f"  v_lshl_add_u32 v{t2}, v{g}, 4, v{t1}")
    e(f"  s_lshl_b32 s80, s{sW}, 9")
    e(f"  v_lshlrev_b32 v{t6}, 5, v{vL16}")
    e(f"  v_lshl_add_u32 v{t6}, v{g}, 3, v{t6}")
    e(f"  v_add_u32 v{t6}, s80, v{t6}")
    e(f"  s_mov_b64 s[{sOv}:{sOv+1}], 0")
    A_ = lambda u: 8 + 12 * (u % 4)
    G_ = lambda u: 8 + 12 * (u % 4) + 4
    R_ = lambda u: 8 + 12 * (u % 4) + 8
    PK, RP = 66, 68
    X0 = 70
    e(f"  v_mov_b32 v{RP+1}, 0")
    def tile_reads(u):
        e(f"  v_add_u32 v{t3}, {u*256*ROWB}, v{t2}")
        e(f"  v_add_u32 v{t4}, {u*256*ROWB}, v{t1}")
        e(f"  ds_read_b128 v[{A_(u)}:{A_(u)+3}], v{t3}")
        e(f"  ds_read_b32 v{G_(u)}, v{t4} offset:64")
    def tile_stage1(u):
        a, gg, rr = A_(u), G_(u), R_(u)
        e(f"  v_cmp_lt_u32 vcc, 0x1ff, v{gg}")
        e(f"  s_or_b64 s[{sOv}:{sOv+1}], s[{sOv}:{sOv+1}], vcc")
        e(f"  s_cmp_eq_u32 s{sMode}, 2")
        e(f"  s_cbranch_scc1 LB_e{u}_f")
        e(f"  v_mul_u32_u24 v{gg}, 0x12d, v{gg}")
        e(f"  v_lshlrev_b32 v{gg+1}, 22, v{gg}")
        for k in (0, 2):
            e(f"  v_sub_u32 v{a+k}, v{a+k}, v{gg+1}")
            e(f"  v_sub_u32 v{a+k+1}, v{a+k+1}, v{gg+1}")
            e(f"  v_ashrrev_i32 v{X0}, 22, v{a+k}")
            e(f"  v_add_u32 v{X0}, v{X0}, v{gg}")
            e(f"  v_ashrrev_i32 v{X0}, 10, v{X0}")
            e(f"  v_sub_u32 v{a+k+1}, v{a+k+1}, v{X0}")
        for k in range(4):
            e(f"  v_cvt_f32_i32 v{a+k}, v{a+k}")
        lab(f"LB_e{u}_f")
        e(f"  v_cvt_pk_bf16_f32 v{PK}, v{a}, v{a+1}")
        e(f"  v_cvt_pk_bf16_f32 v{PK+1}, v{a+2}, v{a+3}")
        e(f"  v_mov_b32 v{RP}, v{RBF+u}")
        e("  s_nop 1")
        e(f"  v_mfma_f32_16x16x16_bf16 v[{a}:{a+3}], v[{WDS}:{WDS+1}], v[{PK}:{PK+1}], 0")
        e(f"  v_mfma_f32_16x16x16_bf16 v[{gg}:{gg+3}], v[{WS}:{WS+1}], v[{RP}:{RP+1}], 0")
        e(f"  v_mfma_f32_16x16x16_bf16 v[{rr}:{rr+3}], v[{WR}:{WR+1}], v[{RP}:{RP+1}], 0")
    def tile_stage2(u):
        a, gg = A_(u), G_(u)
        for k in range(4):
            e(f"  v_mul_f32 v{a+k}, v{a+k}, v{gg+k}")
        e(f"  v_cvt_pk_bf16_f32 v{PK}, v{a}, v{a+1}")
        e(f"  v_cvt_pk_bf16_f32 v{PK+1}, v{a+2}, v{a+3}")
        e("  s_nop 1")
        e(f"  v_mfma_f32_16x16x16_bf16 v[{gg}:{gg+3}], v[{WU}:{WU+1}], v[{PK}:{PK+1}], 0")
    def tile_stage3(u):
        a, gg, rr = A_(u), G_(u), R_(u)
        m0, m1 = MR + 2 * u, MR + 2 * u + 1
        e(f"  v_lshlrev_b32 v{a}, 16, v{m0}")
        e(f"  v_and_b32 v{a+1}, 0xffff0000, v{m0}")
        e(f"  v_lshlrev_b32 v{a+2}, 16, v{m1}")
        e(f"  v_and_b32 v{a+3}, 0xffff0000, v{m1}")
        for k in range(4):
            e(f"  v_fmac_f32 v{a+k}, v{gg+k}, v{rr+k}")
        e(f"  v_cvt_pk_bf16_f32 v{m0}, v{a}, v{a+1}")
        e(f"  v_cvt_pk_bf16_f32 v{m1}, v{a+2}, v{a+3}")
        e(f"  s_mov_b32 s81, {u*8192}")
        e(f"  buffer_store_dwordx2 v[{m0}:{m1}], v{t6}, s[28:31], s81 offen{BOUT}")
    def guarded(u, fn, tag):
        if u == 6:
            e(f"  s_cmp_ge_u32 s{sW}, 4")
            e(f"  s_cbranch_scc1 LB_skip6{tag}")
        fn(u)
        if u == 6:
            lab(f"LB_skip6{tag}")
    for gi, grp in enumerate(((0, 1, 2, 3), (4, 5, 6))):
        for u in grp:
            guarded(u, tile_reads, "a")
        e("  s_waitcnt lgkmcnt(0)")
        for u in grp:
            guarded(u, tile_stage1, "b")
        e("  s_nop 7")
        for u in grp:
            guarded(u, tile_stage2, "c")
        if gi == 0:
            e("  s_waitcnt vmcnt(0)              ; m rows")
        e("  s_nop 7")
        for u in grp:
            guarded(u, tile_stage3, "d")
    stamp("B", "epilogue done")
    stamp_dump("B", 78, sW)
    e(f"  s_cmp_eq_u32 s{sMode}, 2")
    e("  s_cbranch_scc1 LB_end")
    e(f"  s_cmp_eq_u64 s[{sOv}:{sOv+1}], 0")
    e("  s_cbranch_scc1 LB_noov")
    e(f"  v_mov_b32 v{t3}, {B_FLAG}")
    e(f"  ds_write_b32 v{t3}, v{vOne}")
    lab("LB_noov")
    e("  s_waitcnt lgkmcnt(0)")
    e("  s_barrier")
    e(f"  v_mov_b32 v{t3}, {B_FLAG}")
    e(f"  ds_read_b32 v{t3}, v{t3}")
    e("  s_waitcnt lgkmcnt(0)")
    e(f"  v_readfirstlane_b32 s80, v{t3}")
    e("  s_cmp_eq_u32 s80, 0")
    e("  s_cbranch_scc1 LB_end")
    e("  s_waitcnt vmcnt(0)")
    e("  s_barrier")
    e(f"  s_mov_b32 s{sMode}, 2")
    e("  s_branch LB_start")
    lab("LB_end")
    e("  s_endpgm")

def descriptor(name, vgpr, sgpr):
    e(".p2align 6")
    e(f".amdhsa_kernel {name}")
    e(f"  .amdhsa_next_free_vgpr {vgpr}")
    e(f"  .amdhsa_next_free_sgpr {sgpr}")
    e(f"  .amdhsa_accum_offset {vgpr}")
    e("  .amdhsa_group_segment_fixed_size 0")
    e("  .amdhsa_kernarg_size 112")
    e("  .amdhsa_user_sgpr_count 2")
    e("  .amdhsa_user_sgpr_kernarg_segment_ptr 1")
    e("  .amdhsa_system_sgpr_workgroup_id_x 1")
    e("  .amdhsa_float_denorm_mode_32 3")
    e(".end_amdhsa_kernel")

header = open("standalone__molecular_angular_gemnet__graph.s.ref").read().split("; Override launch")[0]
e(header.rstrip())
for _k in os.environ.get("LIST", "AB"):
    if _k == "A":
        e(f"; @launch kernel={KA} grid=({NCH},1,1) block=(1024,1,1) lds={A_LDS}")
    elif _k == "e":
        e(f"; @launch kernel=empty_kernel grid=(1,1,1) block=(64,1,1) lds=0")
    elif _k == "E":
        e(f"; @launch kernel=empty_kernel grid=(250,1,1) block=(1024,1,1) lds=131072")
    else:
        e(f"; @launch kernel={KB} grid=({NB},1,1) block=(1024,1,1) lds={B_LDS}")
e('.amdgcn_target "amdgcn-amd-amdhsa--gfx950"')
e(".text")
kernel_a()
kernel_b()
if set(os.environ.get("LIST", "")) & set("eE"):
    e(".globl empty_kernel")
    e(".p2align 8")
    e(".type empty_kernel,@function")
    lab("empty_kernel")
    e("  s_endpgm")
e('.section .rodata,"a"')
if set(os.environ.get("LIST", "")) & set("eE"):
    descriptor("empty_kernel", 128, 102)
descriptor(KA, 128, 102)
descriptor(KB, 128, 102)
dst = sys.argv[1] if len(sys.argv) > 1 else "standalone__molecular_angular_gemnet__graph.s"
open(dst, "w").write("\n".join(out) + "\n")
print("wrote", dst, len(out), "lines")
```

```python
import sys, os
DBG = os.environ.get("DBG", "")
ABL = os.environ.get("ABL", "").split(",")
def pol(name, default=""):
    v = os.environ.get(name, default)
    return (" " + v.replace("+", " ")) if v else ""
PF = int(os.environ.get("PF", "0"))
PFLEAD = int(os.environ.get("PFLEAD", "8"))
BARN = int(os.environ.get("BARN", "4"))
SPREAD = int(os.environ.get("SPREAD", "1"))
EARLYBAR = int(os.environ.get("EARLYBAR", "0"))
BURST = int(os.environ.get("BURST", "0"))
XMAP = int(os.environ.get("XMAP", "1"))
AIN = pol("AIN", "nt"); ATAB = pol("ATAB"); AST = pol("AST", "sc0+sc1"); BREC = pol("BREC"); BOUT = pol("BOUT", "nt"); BM = pol("BM")

KA = "standalone__molecular_angular_gemnet__graph_part_kernel"
KB = "standalone__molecular_angular_gemnet__graph_kernel"

E = 400000
T = 6400000
NWG = int(os.environ.get("NWG", "256"))
NCH = NWG
NB = NWG
UNITS = T // 64
CH = -(-UNITS // NCH) * 64
NBIG = UNITS - (CH // 64 - 1) * NCH if UNITS % NCH else NCH
BINE = -(-(-(-E // NB)) // 4) * 4
TP = CH * NCH
assert T % 64 == 0 and NBIG * CH + (NCH - NBIG) * (CH - 64) == T and 24576 < CH - 64 * (NBIG < NCH) and CH <= 25600
KS = 8

WS_RECA = 256
WS_RECC = WS_RECA + TP * 4
WS_TT = WS_RECA + TP * 6
WS_STATS = WS_TT + NCH * 1024

A_HIST = 0
A_C = 8192
A_A = A_C + -(-CH * 2 // 16) * 16
A_SCR = A_A + -(-CH * 4 // 16) * 16
A_LDS = A_SCR + 128

ROWB = 80
B_FLAG = 130048
B_LDS = 131072

out = []
def e(s=""):
    out.append(s)
def lab(s):
    out.append(s + ":")

DPP = "row_mask:0xf bank_mask:0xf"

def srd(reg, lo, hi, size, stride=0):
    e(f"  s_mov_b32 s{reg}, s{lo}")
    e(f"  s_and_b32 s{reg+1}, s{hi}, 0xffff")
    if stride:
        e(f"  s_or_b32 s{reg+1}, s{reg+1}, {stride << 16:#x}")
    e(f"  s_mov_b32 s{reg+2}, {size}")
    e(f"  s_mov_b32 s{reg+3}, 0x20000")

def srd_off(reg, lo, hi, off_sreg, size, const=0, stride=0):
    e(f"  s_add_u32 s{reg}, s{lo}, s{off_sreg}")
    e(f"  s_addc_u32 s{reg+1}, s{hi}, 0")
    if const:
        e(f"  s_add_u32 s{reg}, s{reg}, {const}")
        e(f"  s_addc_u32 s{reg+1}, s{reg+1}, 0")
    e(f"  s_and_b32 s{reg+1}, s{reg+1}, 0xffff")
    if stride:
        e(f"  s_or_b32 s{reg+1}, s{reg+1}, {stride << 16:#x}")
    e(f"  s_mov_b32 s{reg+2}, {size}")
    e(f"  s_mov_b32 s{reg+3}, 0x20000")

STAMP = os.environ.get("STAMP", "")
stamp_n = [0]
def stamp(kern, name):
    if STAMP != kern:
        return
    k = stamp_n[0]; stamp_n[0] += 1
    assert k < 16
    e(f"  s_memrealtime s[84:85]")
    e("  s_waitcnt lgkmcnt(0)")
    e(f"  s_mov_b32 s{86+k}, s84")
    if k == 0:
        e("  s_memtime s[84:85]")
        e("  s_waitcnt lgkmcnt(0)")
        e("  s_mov_b32 s101, s84")
    print("stamp", k, name)
def stamp_dump(kern, wsreg, wavereg):
    if STAMP != kern:
        return
    e("  s_memtime s[84:85]")
    e("  s_waitcnt lgkmcnt(0)")
    e("  s_sub_u32 s101, s84, s101")
    e(f"  s_cmp_eq_u32 s{wavereg}, {int(os.environ.get('STAMPW', '0'))}")
    e(f"  s_cbranch_scc0 L{kern}_nodump")
    e(f"  s_lshl_b32 s84, s2, 6")
    e(f"  s_add_u32 s84, s84, {128<<20}")
    e(f"  s_add_u32 s102-18, s{wsreg}, s84".replace("s102-18", "s84"))
    e(f"  s_addc_u32 s85, s{wsreg+1}, 0")
    e("  v_mov_b32 v60, 0")
    for k in range(16):
        e(f"  v_mov_b32 v61, s{86+k}")
        e(f"  global_store_dword v60, v61, s[84:85] offset:{4*k}")
    lab(f"L{kern}_nodump")

def wave_scan_add(v):
    for sh in (1, 2, 4, 8):
        e("  s_nop 1")
        e(f"  v_add_u32_dpp v{v}, v{v}, v{v} row_shr:{sh} {DPP}")
    e("  s_nop 1")
    e(f"  v_add_u32_dpp v{v}, v{v}, v{v} row_bcast:15 row_mask:0xa bank_mask:0xf")
    e("  s_nop 1")
    e(f"  v_add_u32_dpp v{v}, v{v}, v{v} row_bcast:31 row_mask:0xc bank_mask:0xf")

def wave_max(vs):
    steps = [f"row_shr:{sh} {DPP}" for sh in (1, 2, 4, 8)] + \
            ["row_bcast:15 row_mask:0xa bank_mask:0xf", "row_bcast:31 row_mask:0xc bank_mask:0xf"]
    for st in steps:
        e("  s_nop 1")
        for v in vs:
            e(f"  v_max_u32_dpp v{v}, v{v}, v{v} {st}")

class VmQ:
    def __init__(self):
        self.q = []
    def issue(self, tag):
        self.q.append(tag)
        assert len(self.q) <= 63, "vmcnt overflow"
    def wait(self, tag):
        if tag not in self.q:
            return
        idx = max(i for i, t in enumerate(self.q) if t == tag)
        n = len(self.q) - 1 - idx
        assert n <= 63
        e(f"  s_waitcnt vmcnt({n})")
        self.q = self.q[idx + 1:]
    def drain(self):
        e("  s_waitcnt vmcnt(0)")
        self.q = []

def kernel_a():
    I0, O0, AN0, RK0, TB0 = 8, 34, 60, 74, 100
    vOne, vF = 2, 3
    t0, t1, t2, t3, t4, t5 = 116, 117, 118, 119, 120, 121
    e(f".globl {KA}")
    e(".p2align 8")
    e(f".type {KA},@function")
    lab(KA)
    e(f"  s_cmp_ge_u32 s2, {NCH}")
    e("  s_cbranch_scc1 LA_end")
    e("  s_load_dwordx4 s[4:7], s[0:1], 0")
    e("  s_load_dwordx2 s[8:9], s[0:1], 16      ; idx_out")
    e("  s_load_dwordx2 s[10:11], s[0:1], 32    ; angle")
    e("  s_load_dwordx2 s[12:13], s[0:1], 48    ; ang_freq")
    e("  s_load_dwordx2 s[14:15], s[0:1], 104   ; ws")
    e("  v_lshrrev_b32 v1, 6, v0")
    e("  v_lshlrev_b32 v4, 4, v0                ; t*16")
    e("  v_readfirstlane_b32 s50, v1")
    e("  v_lshlrev_b32 v5, 3, v0                ; t*8")
    e("  v_lshlrev_b32 v6, 2, v0                ; t*4")
    e("  v_lshlrev_b32 v7, 1, v0                ; t*2")
    e(f"  v_mov_b32 v{vOne}, 1")
    e(f"  v_mov_b32 v{t0}, 0")
    e(f"  v_mov_b32 v{t1}, 0")
    e(f"  s_mul_i32 s46, s2, {CH//64 - 1 if NBIG < NCH else CH//64}")
    if NBIG < NCH:
        e(f"  s_min_u32 s47, s2, {NBIG}")
        e("  s_add_u32 s46, s46, s47")
    e("  s_lshl_b32 s48, s46, 8")
    e("  s_lshl_b32 s49, s46, 7")
    e(f"  s_mov_b32 s59, {CH - 64 if NBIG < NCH else CH}")
    if NBIG < NCH:
        e(f"  s_cmp_lt_u32 s2, {NBIG}")
        e(f"  s_cselect_b32 s59, {CH}, s59")
    e(f"  s_mul_i32 s64, s2, {CH*4}")
    e(f"  s_mul_i32 s65, s2, {CH*2}")
    e("  s_lshl_b32 s51, s2, 10")
    e("  s_lshl_b32 s52, s2, 3")
    e("  s_waitcnt lgkmcnt(0)")
    srd_off(16, 6, 7, 48, CH * 4)
    srd_off(20, 8, 9, 48, CH * 4)
    srd_off(24, 10, 11, 49, CH * 2)
    e("  s_lshl_b32 s18, s59, 2")
    e("  s_lshl_b32 s22, s59, 2")
    e("  s_lshl_b32 s26, s59, 1")
    vm = VmQ()
    APIPE = int(os.environ.get("APIPE", "7"))
    e(f"  ds_write_b64 v5, v[{t0}:{t1}] offset:{A_HIST}")
    e(f"  v_and_b32 v{t2}, 15, v0")
    e(f"  v_lshlrev_b32 v{t2}, 3, v{t2}")
    e(f"  v_add_u32 v{t2}, {A_SCR}, v{t2}")
    e(f"  ds_write_b64 v{t2}, v[{t0}:{t1}]")
    e(f"  global_load_ushort v{vF}, v{t0}, s[12:13]")
    vm.issue("F")
    stamp("A", "start")
    def loads(u):
        e(f"  s_mov_b32 s53, {u*16384}")
        e(f"  s_mov_b32 s54, {u*8192}")
        if u < 6:
            e(f"  buffer_load_dwordx4 v[{I0+4*u}:{I0+4*u+3}], v4, s[16:19], s53 offen{AIN}")
            e(f"  buffer_load_dwordx4 v[{O0+4*u}:{O0+4*u+3}], v4, s[20:23], s53 offen{AIN}")
            e(f"  buffer_load_dwordx2 v[{AN0+2*u}:{AN0+2*u+1}], v5, s[24:27], s54 offen{AIN}")
        else:
            e(f"  buffer_load_dword v{I0+24}, v6, s[16:19], s53 offen{AIN}")
            e(f"  buffer_load_dword v{O0+24}, v6, s[20:23], s53 offen{AIN}")
            e(f"  buffer_load_ushort v{AN0+12}, v7, s[24:27], s54 offen{AIN}")
        for _ in range(3):
            vm.issue(f"L{u}")
    APRIO = int(os.environ.get("APRIO", "1"))
    e("  s_waitcnt lgkmcnt(0)")
    e("  s_barrier")
    if APRIO:
        e("  s_setprio 3")
    for u in range(min(APIPE, 7)):
        loads(u)
    if APRIO:
        e("  s_setprio 0")
    e(f"  s_mul_i32 s47, s2, {BINE*32}")
    srd_off(28, 4, 5, 47, BINE * 32)
    e(f"  s_sub_u32 s47, {E*32}, s47")
    e(f"  s_min_u32 s30, s47, {BINE*32}")
    srd_off(32, 14, 15, 64, CH * 4, WS_RECA)
    srd_off(36, 14, 15, 65, CH * 2, WS_RECC)
    e("  s_lshl_b32 s34, s59, 2")
    e("  s_lshl_b32 s38, s59, 1")
    e("  s_sub_u32 s59, s59, 24576")
    srd_off(40, 14, 15, 51, 1024, WS_TT)
    srd_off(44, 14, 15, 52, 8, WS_STATS)
    assert (((2**32 + BINE - 1)//BINE) * BINE - 2**32) * E < 2**32
    e(f"  s_mov_b32 s55, {(2**32 + BINE - 1)//BINE}")
    e(f"  s_mov_b32 s56, {(2**32 * KS)//E - 1}")
    e(f"  s_mov_b32 s57, {-BINE}")

    def rec(r):
        I, O, R = I0 + r, O0 + r, RK0 + r
        e(f"  v_mul_hi_u32_u24 v{t0}, s55, v{O}           ; bin")
        e(f"  v_mul_hi_u32_u24 v{t1}, s56, v{I}           ; i range")
        e(f"  v_mad_i32_i24 v{t2}, v{t0}, s57, v{O}       ; o local")
        e(f"  v_lshlrev_b32 v{t1}, 2, v{t1}")
        e(f"  v_lshl_add_u32 v{O}, v{t0}, 5, v{t1}        ; key*4")
        e(f"  v_lshl_or_b32 v{I}, v{t2}, 19, v{I}")
        e(f"  ds_add_rtn_u32 v{R}, v{O}, v{vOne} offset:{A_HIST}")
        e(f"  v_not_b32 v{I}, v{I}")

    def cospair(a):
        x, y = t3, t4
        e(f"  v_lshlrev_b32 v{x}, 16, v{a}")
        e(f"  v_and_b32 v{y}, 0xffff0000, v{a}")
        e(f"  v_mul_f32 v{x}, v{vF}, v{x}")
        e(f"  v_mul_f32 v{y}, v{vF}, v{y}")
        e(f"  v_cvt_pk_bf16_f32 v{t5}, v{x}, v{y}")
        e(f"  v_lshlrev_b32 v{x}, 16, v{t5}")
        e(f"  v_and_b32 v{y}, 0xffff0000, v{t5}")
        e(f"  v_mul_f32 v{x}, 0.15915494, v{x}")
        e(f"  v_mul_f32 v{y}, 0.15915494, v{y}")
        e(f"  v_fract_f32 v{x}, v{x}")
        e(f"  v_fract_f32 v{y}, v{y}")
        e(f"  v_cos_f32 v{x}, v{x}")
        e(f"  v_cos_f32 v{y}, v{y}")
        e("  s_nop 0")
        e(f"  v_cvt_pk_bf16_f32 v{a}, v{x}, v{y}")

    stamp("A", "loads issued")
    for u in range(7):
        vm.wait(f"L{u}")
        if u in (0, 3, 6):
            stamp("A", f"group {u} arrived")
        if u + APIPE < 7:
            loads(u + APIPE)
        if u == 0:
            e(f"  v_lshlrev_b32 v{vF}, 16, v{vF}")
        if u < 6:
            for r in range(4):
                rec(4 * u + r)
            cospair(AN0 + 2 * u)
            cospair(AN0 + 2 * u + 1)
        else:
            e(f"  v_cmp_gt_u32 vcc, s59, v0")
            e("  s_and_saveexec_b64 s[62:63], vcc")
            e("  s_cbranch_execz LA_r24")
            rec(24)
            cospair(AN0 + 12)
            lab("LA_r24")
            e("  s_mov_b64 exec, s[62:63]")
    for u in range(4):
        e(f"  s_mov_b32 s53, {u*16384}")
        e(f"  buffer_load_dwordx4 v[{TB0+4*u}:{TB0+4*u+3}], v4, s[28:31], s53 offen{ATAB}")
    e("  s_waitcnt lgkmcnt(0)")
    e("  s_barrier")
    stamp("A", "hist barrier")
    e(f"  ds_read_b64 v[{t0}:{t1}], v5 offset:{A_HIST}")
    e("  s_waitcnt lgkmcnt(0)")
    e(f"  v_add_u32 v{t2}, v{t0}, v{t1}")
    e(f"  v_mov_b32 v{t3}, v{t2}")
    wave_scan_add(t3)
    e(f"  s_lshl_b32 s58, s50, 2")
    e(f"  s_add_u32 s58, s58, {A_SCR}")
    e(f"  v_mov_b32 v{t4}, s58")
    e("  s_mov_b32 exec_lo, 0")
    e("  s_mov_b32 exec_hi, 0x80000000")
    e(f"  ds_write_b32 v{t4}, v{t3}")
    e("  s_mov_b64 exec, -1")
    e("  s_waitcnt lgkmcnt(0)")
    e("  s_barrier")
    e(f"  v_and_b32 v{t4}, 15, v0")
    e(f"  v_lshlrev_b32 v{t4}, 2, v{t4}")
    e(f"  v_add_u32 v{t4}, {A_SCR}, v{t4}")
    e(f"  ds_read_b32 v{t4}, v{t4}")
    e("  s_waitcnt lgkmcnt(0)")
    e(f"  v_mov_b32 v{t5}, v{t4}")
    for sh in (1, 2, 4, 8):
        e("  s_nop 1")
        e(f"  v_add_u32_dpp v{t5}, v{t5}, v{t5} row_shr:{sh} {DPP}")
    e(f"  v_sub_u32 v{t5}, v{t5}, v{t4}")
    e("  s_nop 0")
    e(f"  v_readlane_b32 s58, v{t5}, s50")
    e(f"  v_sub_u32 v{t3}, v{t3}, v{t2}")
    e("  s_nop 0")
    e(f"  v_add_u32 v{t2}, s58, v{t3}         ; start0")
    e(f"  v_add_u32 v{t3}, v{t2}, v{t0}       ; start1")
    e(f"  ds_write_b64 v5, v[{t2}:{t3}] offset:{A_HIST}")
    e(f"  v_and_b32 v{t4}, 3, v0")
    e(f"  v_cmp_eq_u32 vcc, 0, v{t4}")
    e("  s_and_saveexec_b64 s[60:61], vcc")
    e(f"  buffer_store_dword v{t2}, v0, s[40:43], 0 offen")
    e("  s_mov_b64 exec, s[60:61]")
    e("  s_waitcnt lgkmcnt(0)")
    e("  s_barrier")
    stamp("A", "scan done")
    groups = [range(0, 8), range(8, 16), range(16, 24), range(24, 25)]
    for g in groups:
        if g[0] == 24:
            e(f"  v_cmp_gt_u32 vcc, s59, v0")
            e("  s_and_saveexec_b64 s[62:63], vcc")
            e("  s_cbranch_execz LA_s24")
        for r in g:
            e(f"  ds_read_b32 v{O0+r}, v{O0+r} offset:{A_HIST}")
        e("  s_waitcnt lgkmcnt(0)")
        for r in g:
            e(f"  v_add_u32 v{O0+r}, v{O0+r}, v{RK0+r}")
            e(f"  v_lshlrev_b32 v{RK0+r}, 2, v{O0+r}")
            e(f"  v_lshlrev_b32 v{O0+r}, 1, v{O0+r}")
            e(f"  ds_write_b32 v{RK0+r}, v{I0+r} offset:{A_A}")
            op = "ds_write_b16" if r % 2 == 0 else "ds_write_b16_d16_hi"
            e(f"  {op} v{O0+r}, v{AN0+r//2} offset:{A_C}")
        if g[0] == 24:
            lab("LA_s24")
            e("  s_mov_b64 exec, s[62:63]")
    stamp("A", "scatter issued")
    gM, gR = 122, 123
    e(f"  v_mov_b32 v{gM}, 0")
    e(f"  v_mov_b32 v{gR}, 0")
    e("  s_mov_b32 s58, 0x7fff7fff")
    e("  s_waitcnt vmcnt(0)")
    for u in range(4):
        b = TB0 + 4 * u
        for k in range(4):
            e(f"  v_and_b32 v{b+k}, s58, v{b+k}")
        e(f"  v_pk_max_u16 v{b}, v{b}, v{b+1}")
        e(f"  v_pk_max_u16 v{b+2}, v{b+2}, v{b+3}")
        e(f"  v_pk_max_u16 v{b}, v{b}, v{b+2}")
        e(f"  v_lshrrev_b32 v{b+1}, 16, v{b}")
        e(f"  v_and_b32 v{b}, 0xffff, v{b}")
        e(f"  v_max_u32 v{b}, v{b}, v{b+1}")
        e("  s_nop 1")
        e(f"  v_max_u32_dpp v{b}, v{b}, v{b} quad_perm:[1,0,3,2] {DPP}")
        e(f"  v_max_u32 v{gM}, v{gM}, v{b}")
        e(f"  v_sub_u32 v{b}, 0x8000, v{b}")
        e(f"  v_and_b32 v{b}, 0x7fff, v{b}")
        e(f"  v_max_u32 v{gR}, v{gR}, v{b}")
    wave_max([gM, gR])
    e(f"  v_mov_b32 v{t4}, {A_SCR + 64}")
    e("  s_mov_b32 exec_lo, 0")
    e("  s_mov_b32 exec_hi, 0x80000000")
    e(f"  ds_max_u32 v{t4}, v{gM}")
    e(f"  ds_max_u32 v{t4}, v{gR} offset:4")
    e("  s_mov_b64 exec, -1")
    e("  s_waitcnt lgkmcnt(0)")
    e("  s_barrier")
    stamp("A", "scatter barrier")
    d = 8
    for u in range(6):
        e(f"  v_add_u32 v{t0}, {u*16384}, v4")
        e(f"  ds_read_b128 v[{d+4*u}:{d+4*u+3}], v{t0} offset:{A_A}")
    for u in range(3):
        e(f"  v_add_u32 v{t0}, {u*16384}, v4")
        e(f"  ds_read_b128 v[{d+24+4*u}:{d+24+4*u+3}], v{t0} offset:{A_C}")
    e(f"  v_mov_b32 v{t4}, {A_SCR + 64}")
    e(f"  ds_read_b64 v[{t2}:{t3}], v{t4}")
    for u in range(6):
        e(f"  s_mov_b32 s53, {u*16384}")
        e(f"  s_waitcnt lgkmcnt({9-u})")
        e(f"  buffer_store_dwordx4 v[{d+4*u}:{d+4*u+3}], v4, s[32:35], s53 offen{AST}")
    for u in range(3):
        e(f"  s_mov_b32 s53, {u*16384}")
        e(f"  s_waitcnt lgkmcnt({3-u})")
        e(f"  buffer_store_dwordx4 v[{d+24+4*u}:{d+24+4*u+3}], v4, s[36:39], s53 offen{AST}")
    stamp("A", "stores issued")
    if STAMP == "A":
        e("  s_waitcnt vmcnt(0)")
    stamp("A", "stores done")
    stamp_dump("A", 14, 50)
    e(f"  s_cmp_lt_u32 s50, {-(-(CH*4 - 6*16384) // 1024)}")
    e("  s_cbranch_scc0 LA_t1")
    e(f"  v_add_u32 v{t0}, {6*16384}, v4")
    e(f"  ds_read_b128 v[60:63], v{t0} offset:{A_A}")
    e(f"  s_mov_b32 s53, {6*16384}")
    e("  s_waitcnt lgkmcnt(0)")
    e(f"  buffer_store_dwordx4 v[60:63], v4, s[32:35], s53 offen{AST}")
    lab("LA_t1")
    e(f"  s_cmp_lt_u32 s50, {-(-(CH*2 - 3*16384) // 1024)}")
    e("  s_cbranch_scc0 LA_t2")
    e(f"  v_add_u32 v{t0}, {3*16384}, v4")
    e(f"  ds_read_b128 v[64:67], v{t0} offset:{A_C}")
    e(f"  s_mov_b32 s53, {3*16384}")
    e("  s_waitcnt lgkmcnt(0)")
    e(f"  buffer_store_dwordx4 v[64:67], v4, s[36:39], s53 offen{AST}")
    lab("LA_t2")
    e("  s_cmp_eq_u32 s50, 15")
    e("  s_cbranch_scc0 LA_end")
    e("  s_waitcnt lgkmcnt(0)")
    e(f"  v_mov_b32 v{t0}, 0")
    e("  s_mov_b32 exec_lo, 1")
    e("  s_mov_b32 exec_hi, 0")
    e(f"  buffer_store_dwordx2 v[{t2}:{t3}], v{t0}, s[44:47], 0 offen")
    lab("LA_end")
    e("  s_endpgm")

def kernel_b():
    vH8, vIA, vIB, vCB, vOne = 1, 2, 4, 6, 7
    G0 = 8
    OA, CH_ = 40, 44
    P0 = 48
    t0, t1, t2, t3, t4, t5, t6, t7, t8 = range(56, 65)
    BS, LN = 65, 69
    XZ = 65
    CU = 73
    vL16 = 77
    WDS = 78
    RCP, RA0 = 80, 96
    def RA(s, j): return RA0 + 4 * j + s
    def RCp(s, j): return RCP + 4 * (j // 2) + s
    RBF, CEN, WT, MR = 96, 103, 104, 104
    WD, WU, WS, WR = 80, 82, 84, 86
    sW, sMag, sSc, sInv, sMode, sMsk, sN80, sTail, sPerm = 50, 53, 54, 55, 56, 57, 58, 59, 60
    sOv = 66
    vm = VmQ()
    e(f".globl {KB}")
    e(".p2align 8")
    e(f".type {KB},@function")
    lab(KB)
    e(f"  s_cmp_ge_u32 s2, {NB}")
    e("  s_cbranch_scc1 LB_end")
    if XMAP:
        e("  s_and_b32 s3, s2, 7")
        e("  s_lshr_b32 s2, s2, 3")
        e(f"  s_mul_i32 s4, s3, {NB//8}")
        if NB % 8:
            e(f"  s_min_u32 s3, s3, {NB%8}")
            e("  s_add_u32 s2, s2, s3")
        e("  s_add_u32 s2, s2, s4")
    e("  s_load_dwordx2 s[78:79], s[0:1], 104    ; ws")
    e("  s_load_dwordx2 s[68:69], s[0:1], 0      ; m")
    e("  s_load_dwordx2 s[70:71], s[0:1], 24     ; dist")
    e("  s_load_dwordx2 s[40:41], s[0:1], 40     ; centers")
    e("  s_load_dwordx4 s[44:47], s[0:1], 56")
    e("  s_load_dwordx4 s[72:75], s[0:1], 72")
    e("  s_load_dwordx2 s[76:77], s[0:1], 88     ; out")
    e("  v_lshrrev_b32 v8, 6, v0")
    e(f"  v_and_b32 v{vL16}, 15, v0")
    e(f"  v_readfirstlane_b32 s{sW}, v8")
    e(f"  v_and_b32 v9, 1, v0")
    e(f"  v_lshlrev_b32 v{vH8}, 3, v9")
    e(f"  v_lshlrev_b32 v{vIA+1}, 4, v9")
    e(f"  v_lshlrev_b32 v{vIB+1}, 4, v9")
    e(f"  v_mov_b32 v{vCB}, {2047*ROWB}")
    e(f"  v_mov_b32 v{vOne}, 1")
    e(f"  s_mul_i32 s80, s2, {BINE*32}")
    e(f"  s_mul_i32 s81, s2, {BINE*2}")
    e(f"  s_mov_b32 s{sMode}, 0")
    e(f"  s_mov_b32 s{sMsk}, 0x7ffff")
    e(f"  s_mov_b32 s{sN80}, {-ROWB}")
    e(f"  s_mov_b32 s{sPerm}, 0x05040100")
    e("  s_waitcnt lgkmcnt(0)")
    e(f"  s_add_u32 s82, s78, {WS_TT}")
    e("  s_addc_u32 s83, s79, 0")
    srd(16, 82, 83, NCH * 1024)
    e(f"  s_add_u32 s82, s78, {WS_STATS}")
    e("  s_addc_u32 s83, s79, 0")
    srd(20, 82, 83, NCH * 8)
    e(f"  s_add_u32 s82, s78, {WS_RECA - 4}")
    e("  s_addc_u32 s83, s79, 0")
    srd(4, 82, 83, TP + 1, 4)
    e(f"  s_add_u32 s82, s78, {WS_RECC - 2}")
    e("  s_addc_u32 s83, s79, 0")
    srd(8, 82, 83, TP + 1, 2)
    srd(12, 68, 69, E, 32)
    srd_off(24, 68, 69, 80, BINE * 32)
    srd_off(28, 76, 77, 80, BINE * 32)
    srd_off(32, 70, 71, 81, BINE * 2)
    e(f"  s_sub_u32 s82, {E*32}, s80")
    e(f"  s_min_u32 s26, s82, {BINE*32}")
    e("  s_mov_b32 s30, s26")
    e("  s_lshr_b32 s34, s26, 4")
    lab("LB_start")
    stamp("B", "start")
    ST0 = 48
    def run_table_loads():
        g = t0
        e(f"  v_and_b32 v{t1}, 63, v0")
        e(f"  v_lshrrev_b32 v{g}, 4, v{t1}            ; g = lane>>4")
        e(f"  s_lshl_b32 s80, s{sW}, 4")
        e(f"  v_add_u32 v{t1}, s80, v{g}              ; 16w+g")
        e(f"  s_lshl_b32 s81, s2, 2")
        e(f"  v_lshlrev_b32 v{t2}, 10, v{t1}")
        e(f"  v_add_u32 v{t2}, s81, v{t2}")
        for s in range(4):
            e(f"  v_add_u32 v{t3}, {s*4096}, v{t2}")
            e(f"  buffer_load_dwordx2 v[{G0+2*s}:{G0+2*s+1}], v{t3}, s[16:19], 0 offen")
            vm.issue("T")
    rp_n = [0]
    def run_params():
        rp_n[0] += 1
        e(f"  s_mov_b32 s80, {CH}")
        for s in range(4):
            e(f"  v_add_u32 v{t3}, {4*s}, v{t1}")
            e(f"  v_mad_u32_u24 v{t3}, v{t3}, s80, 1")
            e(f"  v_add_u32 v{BS+s}, v{t3}, v{G0+2*s}")
            if NB == 256:
                e(f"  s_cmp_eq_u32 s2, {NB-1}")
                e(f"  s_cbranch_scc0 LB_rp{rp_n[0]}_{s}")
                e(f"  v_add_u32 v{t4}, {4*s}, v{t1}")
                e(f"  v_cmp_gt_u32 vcc, {NBIG}, v{t4}")
                e(f"  v_mov_b32 v{t4}, {CH}")
                e(f"  v_mov_b32 v{G0+2*s+1}, {CH-64}")
                e(f"  v_cndmask_b32 v{G0+2*s+1}, v{G0+2*s+1}, v{t4}, vcc")
                lab(f"LB_rp{rp_n[0]}_{s}")
            e(f"  v_sub_u32 v{LN+s}, v{G0+2*s+1}, v{G0+2*s}")
    run_table_loads()
    e(f"  v_and_b32 v{t3}, 63, v0")
    e(f"  v_lshlrev_b32 v{t3}, 3, v{t3}")
    for s in range(4):
        e(f"  buffer_load_dwordx2 v[{ST0+2*s}:{ST0+2*s+1}], v{t3}, s[20:23], 0 offen offset:{s*512}")
        vm.issue("ST")
    ZR = 40
    for k in range(4):
        e(f"  v_mov_b32 v{ZR+k}, 0")
    e(f"  v_lshlrev_b32 v{t3}, 4, v0")
    for u in range(8):
        if u == 4:
            e(f"  v_add_u32 v{t3}, 0x10000, v{t3}")
        e(f"  ds_write_b128 v{t3}, v[{ZR}:{ZR+3}] offset:{(u%4)*16384}")
    vm.wait("T")
    stamp("B", "T arrived")
    run_params()
    e(f"  v_max_u32 v{t3}, v{LN}, v{LN+1}")
    e(f"  v_max3_u32 v{t3}, v{t3}, v{LN+2}, v{LN+3}")
    e(f"  v_cmp_lt_u32 vcc, 0x80, v{t3}")
    e(f"  s_cmp_lg_u64 vcc, 0")
    e(f"  s_cselect_b32 s{sTail}, 1, 0")
    def LZ(s, j): return RCp(s, j) if j % 2 == 0 else G0 + 8 + 4 * (j // 2) + s
    if EARLYBAR:
        e("  s_waitcnt lgkmcnt(0)")
        e("  s_barrier")
    for s in range(4):
        lp, acc, lo, hi = t2, t3, t4, t6
        e(f"  v_min_u32 v{lp}, 0x80, v{LN+s}          ; len'")
        e(f"  v_mov_b32 v{lo}, v{vL16}")
        e(f"  v_mov_b32 v{acc}, v{lp}")
        def msk(j):
            return f"s[{84+2*j}:{85+2*j}]" if (BURST and not STAMP) else "vcc"
        def lds(j):
            e(f"  s_mov_b64 exec, {msk(j)}")
            e(f"  buffer_load_ushort v{LZ(s,j)}, v{RA(s,j)}, s[8:11], 0 idxen{BREC}")
            vm.issue(f"C{s}_{j}")
            e(f"  buffer_load_dword v{RA(s,j)}, v{RA(s,j)}, s[4:7], 0 idxen{BREC}")
            vm.issue(f"A{s}_{j}")
        for j in range(8):
            e(f"  v_lshrrev_b32 v{hi}, 3, v{acc}")
            e(f"  v_add_u32 v{acc}, v{acc}, v{lp}")
            e(f"  v_cmp_lt_u32 {msk(j)}, v{lo}, v{hi}")
            e(f"  v_add_u32 v{t7}, v{BS+s}, v{lo}")
            e(f"  v_add_u32 v{lo}, v{hi}, v{vL16}")
            e(f"  v_cndmask_b32 v{RA(s,j)}, 0, v{t7}, {msk(j)}")
            if not (BURST and not STAMP):
                lds(j)
                e("  s_mov_b64 exec, -1")
        if BURST and not STAMP:
            for j in range(8):
                lds(j)
            e("  s_mov_b64 exec, -1")
        if s == 2:
            vm.wait("A0_7")
    stamp("B", "rec loads issued")
    a, b = ST0, ST0 + 1
    e(f"  v_max3_u32 v{a}, v{ST0}, v{ST0+2}, v{ST0+4}")
    e(f"  v_max3_u32 v{b}, v{ST0+1}, v{ST0+3}, v{ST0+5}")
    e(f"  v_max_u32 v{a}, v{a}, v{ST0+6}")
    e(f"  v_max_u32 v{b}, v{b}, v{ST0+7}")
    wave_max([a, b])
    e("  s_nop 0")
    e(f"  v_readlane_b32 s80, v{a}, 63")
    e(f"  v_readlane_b32 s81, v{b}, 63")
    e("  s_nop 0")
    e("  s_lshr_b32 s82, s80, 7")
    e("  s_sub_u32 s81, 0x8000, s81")
    e("  s_lshr_b32 s81, s81, 7")
    e("  s_sub_u32 s83, s82, s81")
    e(f"  s_cmp_eq_u32 s{sMode}, 2")
    e("  s_cbranch_scc1 LB_float")
    e("  s_cmp_ge_u32 s80, 0x7f80")
    e("  s_cbranch_scc1 LB_float")
    e("  s_cmp_lt_u32 s82, 32")
    e("  s_cbranch_scc1 LB_float")
    e("  s_cmp_gt_u32 s82, 200")
    e("  s_cbranch_scc1 LB_float")
    e("  s_cmp_gt_i32 s83, 10")
    e("  s_cbranch_scc1 LB_float")
    e(f"  s_mov_b32 s{sMag}, 0x4b400000")
    e("  s_sub_u32 s83, 275, s82")
    e(f"  s_lshl_b32 s{sSc}, s83, 23")
    e("  s_sub_u32 s83, s82, 21")
    e(f"  s_lshl_b32 s{sInv}, s83, 23")
    e("  s_branch LB_fast")
    lab("LB_float")
    e(f"  s_mov_b32 s{sMode}, 2")
    e(f"  s_mov_b32 s{sMag}, 0")
    e(f"  s_mov_b32 s{sSc}, 1.0")
    e(f"  s_mov_b32 s{sInv}, 1.0")
    e(f"  s_mov_b32 s{sTail}, 1")
    e("  s_waitcnt vmcnt(0) lgkmcnt(0)")
    e("  s_barrier")
    e("  s_branch LB_generic")
    lab("LB_fast")
    for s in range(4):
        for jj in range(4):
            vm.wait(f"C{s}_{2*jj+1}")
            e(f"  v_perm_b32 v{RCp(s,2*jj)}, v{LZ(s,2*jj+1)}, v{RCp(s,2*jj)}, s{sPerm}")
    vm.drain()
    stamp("B", "records arrived")

    def dec_idx(ra, dst):
        e(f"  v_bfi_b32 v{dst}, v{ra}, 0, s{sMsk}")
    def dec_rest(ra, rc, hi_half, s):
        e(f"  v_bfe_u32 v{t7}, v{ra}, 19, 11")
        if hi_half:
            e(f"  v_and_b32 v{t8}, 0xffff0000, v{rc}")
        else:
            e(f"  v_lshlrev_b32 v{t8}, 16, v{rc}")
        e(f"  v_mad_i32_i24 v{OA+s}, v{t7}, s{sN80}, v{vCB}")
        e(f"  v_mul_f32 v{CH_+s}, s{sSc}, v{t8}")
        e(f"  ds_add_u32 v{OA+s}, v{vOne} offset:64")
    def gather(s, h, src, tag):
        g0 = G0 + 8 * s + 4 * h
        vi = vIA if h == 0 else vIB
        qp = "[0,0,2,2]" if h == 0 else "[1,1,3,3]"
        e(f"  v_mov_b32_dpp v{vi}, v{src} quad_perm:{qp} {DPP}")
        if "nogather" in ABL:
            e(f"  v_mov_b32 v{vi}, -1")
        e(f"  buffer_load_dwordx4 v[{g0}:{g0+3}], v[{vi}:{vi+1}], s[12:15], 0 idxen offen")
        vm.issue(tag)
    def consume(s, h, isfloat):
        qp = "[0,0,2,2]" if h == 0 else "[1,1,3,3]"
        g0 = G0 + 8 * s + 4 * h
        ad, ch, cl = t0 + 3 * h, t1 + 3 * h, t2 + 3 * h
        e(f"  v_mov_b32_dpp v{ch}, v{CH_+s} quad_perm:{qp} {DPP}")
        e(f"  v_add_u32_dpp v{ad}, v{OA+s}, v{vH8} quad_perm:{qp} {DPP}")
        e(f"  v_lshrrev_b32 v{cl}, 16, v{ch}")
        for k in range(4):
            e(f"  v_dot2_f32_bf16 v{P0+2*k+1}, v{g0+k}, v{ch}, s{sMag}")
            e(f"  v_dot2_f32_bf16 v{P0+2*k}, v{g0+k}, v{cl}, s{sMag}")
            if "noatom" in ABL:
                continue
            if isfloat:
                e(f"  ds_add_f32 v{ad}, v{P0+2*k} offset:{16*k}")
                e(f"  ds_add_f32 v{ad}, v{P0+2*k+1} offset:{16*k+4}")
            else:
                e(f"  ds_add_u64 v{ad}, v[{P0+2*k}:{P0+2*k+1}] offset:{16*k}")
    if not EARLYBAR:
        e("  s_waitcnt lgkmcnt(0)")
        e("  s_barrier")
    stamp("B", "after barrier")
    tI = t6
    for s in range(4):
        dec_idx(RA(s, 0), tI)
        dec_rest(RA(s, 0), RCp(s, 0), False, s)
        gather(s, 0, tI, f"g0_{s}_0")
        gather(s, 1, tI, f"g0_{s}_1")

    def epi_loads1():
        gg, nn = t7, vL16
        e(f"  v_and_b32 v{t8}, 63, v0")
        e(f"  v_lshrrev_b32 v{gg}, 4, v{t8}")
        e(f"  v_lshlrev_b32 v{t8}, 6, v{gg}")
        e(f"  v_lshl_add_u32 v{t8}, v{nn}, 1, v{t8}     ; 64g + 2n")
        for k, off in enumerate((0, 32, 256, 288)):
            e(f"  global_load_ushort v{WT+k}, v{t8}, s[72:73] offset:{off}"); vm.issue("E1")
        for k in range(2):
            e(f"  global_load_ushort v{WT+8+k}, v{t8}, s[44:45] offset:{32*k}"); vm.issue("E1")
            e(f"  global_load_ushort v{WT+10+k}, v{t8}, s[46:47] offset:{32*k}"); vm.issue("E1")
        e(f"  v_lshlrev_b32 v{t8}, 7, v{gg}")
        e(f"  v_lshl_add_u32 v{t8}, v{nn}, 1, v{t8}     ; 128g + 2n")
        for k in range(4):
            e(f"  global_load_ushort v{WT+4+k}, v{t8}, s[74:75] offset:{32*k}"); vm.issue("E1")
        e(f"  v_lshlrev_b32 v{t8}, 2, v{gg}")
        e(f"  global_load_dword v{CEN}, v{t8}, s[40:41]"); vm.issue("E1")
        e(f"  s_lshl_b32 s80, s{sW}, 5")
        e(f"  v_lshl_add_u32 v{t8}, v{nn}, 1, s80")
        for u in range(7):
            e(f"  buffer_load_ushort v{RBF+u}, v{t8}, s[32:35], 0 offen offset:{u*512}"); vm.issue("E1")
    def epi_loads2():
        gg, nn = t7, vL16
        e(f"  v_and_b32 v{t8}, 63, v0")
        e(f"  v_lshrrev_b32 v{gg}, 4, v{t8}")
        e(f"  s_lshl_b32 s80, s{sW}, 9")
        e(f"  v_lshlrev_b32 v{t8}, 5, v{nn}")
        e(f"  v_lshl_add_u32 v{t8}, v{gg}, 3, v{t8}")
        e(f"  v_add_u32 v{t8}, s80, v{t8}")
        for u in range(7):
            e(f"  s_mov_b32 s81, {u*8192}")
            e(f"  buffer_load_dwordx2 v[{MR+2*u}:{MR+2*u+1}], v{t8}, s[24:27], s81 offen{BM}"); vm.issue("E2")
    def epi_prep_w():
        e(f"  v_lshl_or_b32 v{WD}, v{WT+1}, 16, v{WT}")
        e(f"  v_lshl_or_b32 v{WD+1}, v{WT+3}, 16, v{WT+2}")
        e(f"  v_lshl_or_b32 v{WU}, v{WT+5}, 16, v{WT+4}")
        e(f"  v_lshl_or_b32 v{WU+1}, v{WT+7}, 16, v{WT+6}")
        e(f"  v_lshl_or_b32 v{WR}, v{WT+9}, 16, v{WT+8}")
        e(f"  v_lshl_or_b32 v{WS}, v{WT+11}, 16, v{WT+10}")
        e(f"  v_mov_b32 v{WR+1}, 0")
        e(f"  v_mov_b32 v{WS+1}, 0")
        c0, c1, x, y, p = XZ, XZ + 1, XZ + 2, XZ + 3, XZ + 4
        for k in range(2):
            e(f"  v_lshlrev_b32 v{x}, 16, v{WD+k}")
            e(f"  v_and_b32 v{y}, 0xffff0000, v{WD+k}")
            e(f"  v_mul_f32 v{x}, s{sInv}, v{x}")
            e(f"  v_mul_f32 v{y}, s{sInv}, v{y}")
            e(f"  v_cvt_pk_bf16_f32 v{WDS+k}, v{x}, v{y}")
        e(f"  v_lshlrev_b32 v{c0}, 16, v{CEN}")
        e(f"  v_and_b32 v{c1}, 0xffff0000, v{CEN}")
    def epi_prep_rbf(u):
        c0, c1, x, y, p = XZ, XZ + 1, XZ + 2, XZ + 3, XZ + 4
        r = RBF + u
        e("  s_mov_b32 s80, 0xc1200000           ; -10.0")
        e("  s_mov_b32 s81, 0x3fb8aa3b           ; log2(e)")
        e(f"  v_lshlrev_b32 v{r}, 16, v{r}")
        e(f"  v_sub_f32 v{x}, v{r}, v{c0}")
        e(f"  v_sub_f32 v{y}, v{r}, v{c1}")
        for op in ("sq", "m10", "exp"):
            e(f"  v_cvt_pk_bf16_f32 v{p}, v{x}, v{y}")
            e(f"  v_lshlrev_b32 v{x}, 16, v{p}")
            e(f"  v_and_b32 v{y}, 0xffff0000, v{p}")
            if op == "sq":
                e(f"  v_mul_f32 v{x}, v{x}, v{x}")
                e(f"  v_mul_f32 v{y}, v{y}, v{y}")
            elif op == "m10":
                e(f"  v_mul_f32 v{x}, s80, v{x}")
                e(f"  v_mul_f32 v{y}, s80, v{y}")
            else:
                e(f"  v_mul_f32 v{x}, s81, v{x}")
                e(f"  v_mul_f32 v{y}, s81, v{y}")
                e(f"  v_exp_f32 v{x}, v{x}")
                e(f"  v_exp_f32 v{y}, v{y}")
                e("  s_nop 0")
        e(f"  v_cvt_pk_bf16_f32 v{r}, v{x}, v{y}")
    def epi_prep():
        epi_prep_w()
        for u in range(7):
            epi_prep_rbf(u)

    for j in range(8):
        if "nobar" not in ABL:
            e("  s_barrier")
        if j in (0, 1, 2, 4, 6, 7):
            stamp("B", f"phase {j} begin")
        for s in range(4):
            last = (j == 7)
            if s and s % BARN == 0 and not last:
                e("  s_barrier")
            if not last:
                dec_idx(RA(s, j + 1), tI)
            vm.wait(f"g{j}_{s}_0")
            consume(s, 0, False)
            if not last:
                gather(s, 0, tI, f"g{j+1}_{s}_0")
            vm.wait(f"g{j}_{s}_1")
            consume(s, 1, False)
            if not last:
                gather(s, 1, tI, f"g{j+1}_{s}_1")
                dec_rest(RA(s, j + 1), RCp(s, j + 1), (j + 1) % 2 == 1, s)
            step = 4 * j + s
            if step == 15:
                epi_loads1()
            if SPREAD:
                if step == 19:
                    vm.wait("E1")
                    epi_prep_w()
                if 20 <= step <= 26:
                    epi_prep_rbf(step - 20)
                if step == 27:
                    epi_loads2()
            else:
                if step == 20:
                    vm.wait("E1")
                    epi_prep()
                if step == 23:
                    epi_loads2()
    stamp("B", "main done")
    e(f"  s_cmp_eq_u32 s{sTail}, 0")
    e("  s_cbranch_scc1 LB_epi")
    lab("LB_generic")
    q_main = list(vm.q)
    e("  s_waitcnt vmcnt(0)")
    run_table_loads()
    e("  s_waitcnt vmcnt(0)")
    run_params()
    for s in range(4):
        e(f"  v_min_u32 v{CU+s}, 0x80, v{LN+s}")
        e(f"  s_cmp_eq_u32 s{sMode}, 2")
        e(f"  s_cbranch_scc0 LB_gen{s}_c")
        e(f"  v_mov_b32 v{CU+s}, 0")
        lab(f"LB_gen{s}_c")
    for s in range(4):
        lab(f"LB_gen{s}")
        e(f"  v_add_u32 v{t0}, v{CU+s}, v{vL16}")
        e(f"  v_cmp_lt_u32 vcc, v{t0}, v{LN+s}")
        e(f"  s_cbranch_vccz LB_gen{s}_done")
        e(f"  v_add_u32 v{t0}, v{BS+s}, v{t0}")
        e(f"  v_add_u32 v{CU+s}, 16, v{CU+s}")
        e(f"  v_cndmask_b32 v{t0}, -1, v{t0}, vcc")
        e(f"  buffer_load_dword v{G0+8}, v{t0}, s[4:7], 0 idxen")
        e(f"  buffer_load_ushort v{G0+9}, v{t0}, s[8:11], 0 idxen")
        e("  s_waitcnt vmcnt(0)")
        dec_idx(G0 + 8, tI)
        dec_rest(G0 + 8, G0 + 9, False, 0)
        gather(0, 0, tI, "x")
        gather(0, 1, tI, "x")
        e("  s_waitcnt vmcnt(0)")
        e(f"  s_cmp_eq_u32 s{sMode}, 2")
        e(f"  s_cbranch_scc1 LB_gen{s}_f")
        consume(0, 0, False)
        consume(0, 1, False)
        e(f"  s_branch LB_gen{s}")
        lab(f"LB_gen{s}_f")
        consume(0, 0, True)
        consume(0, 1, True)
        e(f"  s_branch LB_gen{s}")
        lab(f"LB_gen{s}_done")
    e(f"  s_cmp_eq_u32 s{sMode}, 2")
    e("  s_cbranch_scc0 LB_epi")
    epi_loads1()
    e("  s_waitcnt vmcnt(0)")
    epi_prep()
    epi_loads2()
    lab("LB_epi")
    vm.q = []
    e("  s_waitcnt lgkmcnt(0)")
    e("  s_barrier")
    stamp("B", "final barrier")
    g = t0
    e(f"  v_and_b32 v{t1}, 63, v0")
    e(f"  v_lshrrev_b32 v{g}, 4, v{t1}")
    e(f"  s_lshl_b32 s80, s{sW}, 4")
    e(f"  v_add_u32 v{t1}, s80, v{vL16}")
    e(f"  v_mul_u32_u24 v{t1}, {ROWB}, v{t1}")
    e(f"  v_lshl_add_u32 v{t2}, v{g}, 4, v{t1}")
    e(f"  s_lshl_b32 s80, s{sW}, 9")
    e(f"  v_lshlrev_b32 v{t6}, 5, v{vL16}")
    e(f"  v_lshl_add_u32 v{t6}, v{g}, 3, v{t6}")
    e(f"  v_add_u32 v{t6}, s80, v{t6}")
    e(f"  s_mov_b64 s[{sOv}:{sOv+1}], 0")
    A_ = lambda u: 8 + 12 * (u % 4)
    G_ = lambda u: 8 + 12 * (u % 4) + 4
    R_ = lambda u: 8 + 12 * (u % 4) + 8
    PK, RP = 66, 68
    X0 = 70
    e(f"  v_mov_b32 v{RP+1}, 0")
    def tile_reads(u):
        e(f"  v_add_u32 v{t3}, {u*256*ROWB}, v{t2}")
        e(f"  v_add_u32 v{t4}, {u*256*ROWB}, v{t1}")
        e(f"  ds_read_b128 v[{A_(u)}:{A_(u)+3}], v{t3}")
        e(f"  ds_read_b32 v{G_(u)}, v{t4} offset:64")
    def tile_stage1(u):
        a, gg, rr = A_(u), G_(u), R_(u)
        e(f"  v_cmp_lt_u32 vcc, 0x1ff, v{gg}")
        e(f"  s_or_b64 s[{sOv}:{sOv+1}], s[{sOv}:{sOv+1}], vcc")
        e(f"  s_cmp_eq_u32 s{sMode}, 2")
        e(f"  s_cbranch_scc1 LB_e{u}_f")
        e(f"  v_mul_u32_u24 v{gg}, 0x12d, v{gg}")
        e(f"  v_lshlrev_b32 v{gg+1}, 22, v{gg}")
        for k in (0, 2):
            e(f"  v_sub_u32 v{a+k}, v{a+k}, v{gg+1}")
            e(f"  v_sub_u32 v{a+k+1}, v{a+k+1}, v{gg+1}")
            e(f"  v_ashrrev_i32 v{X0}, 22, v{a+k}")
            e(f"  v_add_u32 v{X0}, v{X0}, v{gg}")
            e(f"  v_ashrrev_i32 v{X0}, 10, v{X0}")
            e(f"  v_sub_u32 v{a+k+1}, v{a+k+1}, v{X0}")
        for k in range(4):
            e(f"  v_cvt_f32_i32 v{a+k}, v{a+k}")
        lab(f"LB_e{u}_f")
        e(f"  v_cvt_pk_bf16_f32 v{PK}, v{a}, v{a+1}")
        e(f"  v_cvt_pk_bf16_f32 v{PK+1}, v{a+2}, v{a+3}")
        e(f"  v_mov_b32 v{RP}, v{RBF+u}")
        e("  s_nop 1")
        e(f"  v_mfma_f32_16x16x16_bf16 v[{a}:{a+3}], v[{WDS}:{WDS+1}], v[{PK}:{PK+1}], 0")
        e(f"  v_mfma_f32_16x16x16_bf16 v[{gg}:{gg+3}], v[{WS}:{WS+1}], v[{RP}:{RP+1}], 0")
        e(f"  v_mfma_f32_16x16x16_bf16 v[{rr}:{rr+3}], v[{WR}:{WR+1}], v[{RP}:{RP+1}], 0")
    def tile_stage2(u):
        a, gg = A_(u), G_(u)
        for k in range(4):
            e(f"  v_mul_f32 v{a+k}, v{a+k}, v{gg+k}")
        e(f"  v_cvt_pk_bf16_f32 v{PK}, v{a}, v{a+1}")
        e(f"  v_cvt_pk_bf16_f32 v{PK+1}, v{a+2}, v{a+3}")
        e("  s_nop 1")
        e(f"  v_mfma_f32_16x16x16_bf16 v[{gg}:{gg+3}], v[{WU}:{WU+1}], v[{PK}:{PK+1}], 0")
    def tile_stage3(u):
        a, gg, rr = A_(u), G_(u), R_(u)
        m0, m1 = MR + 2 * u, MR + 2 * u + 1
        e(f"  v_lshlrev_b32 v{a}, 16, v{m0}")
        e(f"  v_and_b32 v{a+1}, 0xffff0000, v{m0}")
        e(f"  v_lshlrev_b32 v{a+2}, 16, v{m1}")
        e(f"  v_and_b32 v{a+3}, 0xffff0000, v{m1}")
        for k in range(4):
            e(f"  v_fmac_f32 v{a+k}, v{gg+k}, v{rr+k}")
        e(f"  v_cvt_pk_bf16_f32 v{m0}, v{a}, v{a+1}")
        e(f"  v_cvt_pk_bf16_f32 v{m1}, v{a+2}, v{a+3}")
        e(f"  s_mov_b32 s81, {u*8192}")
        e(f"  buffer_store_dwordx2 v[{m0}:{m1}], v{t6}, s[28:31], s81 offen{BOUT}")
    NTILE = -(-BINE // 16)
    W6 = NTILE - 96
    def guarded(u, fn, tag):
        if u == 6:
            e(f"  s_cmp_ge_u32 s{sW}, {W6}")
            e(f"  s_cbranch_scc1 LB_skip6{tag}")
        fn(u)
        if u == 6:
            lab(f"LB_skip6{tag}")
    for gi, grp in enumerate(((0, 1, 2, 3), (4, 5, 6))):
        for u in grp:
            guarded(u, tile_reads, "a")
        e("  s_waitcnt lgkmcnt(0)")
        for u in grp:
            guarded(u, tile_stage1, "b")
        e("  s_nop 7")
        for u in grp:
            guarded(u, tile_stage2, "c")
        if gi == 0:
            e("  s_waitcnt vmcnt(0)              ; m rows")
        e("  s_nop 7")
        for u in grp:
            guarded(u, tile_stage3, "d")
    stamp("B", "epilogue done")
    stamp_dump("B", 78, sW)
    e(f"  s_cmp_eq_u32 s{sMode}, 2")
    e("  s_cbranch_scc1 LB_end")
    e(f"  s_cmp_eq_u64 s[{sOv}:{sOv+1}], 0")
    e("  s_cbranch_scc1 LB_noov")
    e(f"  v_mov_b32 v{t3}, {B_FLAG}")
    e(f"  ds_write_b32 v{t3}, v{vOne}")
    lab("LB_noov")
    e("  s_waitcnt lgkmcnt(0)")
    e("  s_barrier")
    e(f"  v_mov_b32 v{t3}, {B_FLAG}")
    e(f"  ds_read_b32 v{t3}, v{t3}")
    e("  s_waitcnt lgkmcnt(0)")
    e(f"  v_readfirstlane_b32 s80, v{t3}")
    e("  s_cmp_eq_u32 s80, 0")
    e("  s_cbranch_scc1 LB_end")
    e("  s_waitcnt vmcnt(0)")
    e("  s_barrier")
    e(f"  s_mov_b32 s{sMode}, 2")
    e("  s_branch LB_start")
    lab("LB_end")
    e("  s_endpgm")

def descriptor(name, vgpr, sgpr):
    e(".p2align 6")
    e(f".amdhsa_kernel {name}")
    e(f"  .amdhsa_next_free_vgpr {vgpr}")
    e(f"  .amdhsa_next_free_sgpr {sgpr}")
    e(f"  .amdhsa_accum_offset {vgpr}")
    e("  .amdhsa_group_segment_fixed_size 0")
    e("  .amdhsa_kernarg_size 112")
    e("  .amdhsa_user_sgpr_count 2")
    e("  .amdhsa_user_sgpr_kernarg_segment_ptr 1")
    e("  .amdhsa_system_sgpr_workgroup_id_x 1")
    e("  .amdhsa_float_denorm_mode_32 3")
    e(".end_amdhsa_kernel")

header = open("standalone__molecular_angular_gemnet__graph.s.ref").read().split("; Override launch")[0]
e(header.rstrip())
for _k in os.environ.get("LIST", "AB"):
    if _k == "A":
        e(f"; @launch kernel={KA} grid=({NCH},1,1) block=(1024,1,1) lds={A_LDS}")
    elif _k == "e":
        e(f"; @launch kernel=empty_kernel grid=(1,1,1) block=(64,1,1) lds=0")
    elif _k == "E":
        e(f"; @launch kernel=empty_kernel grid=(250,1,1) block=(1024,1,1) lds=131072")
    else:
        e(f"; @launch kernel={KB} grid=({NB},1,1) block=(1024,1,1) lds={B_LDS}")
e('.amdgcn_target "amdgcn-amd-amdhsa--gfx950"')
e(".text")
kernel_a()
kernel_b()
if set(os.environ.get("LIST", "")) & set("eE"):
    e(".globl empty_kernel")
    e(".p2align 8")
    e(".type empty_kernel,@function")
    lab("empty_kernel")
    e("  s_endpgm")
e('.section .rodata,"a"')
if set(os.environ.get("LIST", "")) & set("eE"):
    descriptor("empty_kernel", 128, 102)
descriptor(KA, 128, 102)
descriptor(KB, 128, 102)
dst = sys.argv[1] if len(sys.argv) > 1 else "standalone__molecular_angular_gemnet__graph.s"
open(dst, "w").write("\n".join(out) + "\n")
print("wrote", dst, len(out), "lines")
```

```python
import sys, os
DBG = os.environ.get("DBG", "")
ABL = os.environ.get("ABL", "").split(",")
def pol(name, default=""):
    v = os.environ.get(name, default)
    return (" " + v.replace("+", " ")) if v else ""
PF = int(os.environ.get("PF", "0"))
PFLEAD = int(os.environ.get("PFLEAD", "8"))
BARN = int(os.environ.get("BARN", "4"))
SPREAD = int(os.environ.get("SPREAD", "1"))
TOUCH = os.environ.get("TOUCH", "")
EARLYBAR = int(os.environ.get("EARLYBAR", "0"))
BURST = int(os.environ.get("BURST", "0"))
XMAP = int(os.environ.get("XMAP", "1"))
AIN = pol("AIN", "nt"); ATAB = pol("ATAB"); AST = pol("AST", "sc0+sc1"); BREC = pol("BREC"); BOUT = pol("BOUT", "nt"); BM = pol("BM")

KA = "standalone__molecular_angular_gemnet__graph_part_kernel"
KB = "standalone__molecular_angular_gemnet__graph_kernel"

E = 400000
T = 6400000
NWG = int(os.environ.get("NWG", "256"))
NCH = NWG
NB = NWG
UNITS = T // 64
CH = -(-UNITS // NCH) * 64
NBIG = UNITS - (CH // 64 - 1) * NCH if UNITS % NCH else NCH
BINE = -(-(-(-E // NB)) // 4) * 4
TP = CH * NCH
assert T % 64 == 0 and NBIG * CH + (NCH - NBIG) * (CH - 64) == T and 24576 < CH - 64 * (NBIG < NCH) and CH <= 25600
KS = 8

WS_RECA = 256
WS_RECC = WS_RECA + TP * 4
WS_TT = WS_RECA + TP * 6
WS_STATS = WS_TT + NCH * 1024

A_HIST = 0
A_C = 8192
A_A = A_C + -(-CH * 2 // 16) * 16
A_SCR = A_A + -(-CH * 4 // 16) * 16
A_LDS = A_SCR + 128

ROWB = 80
B_FLAG = 130048
B_LDS = 131072

out = []
def e(s=""):
    out.append(s)
def lab(s):
    out.append(s + ":")

DPP = "row_mask:0xf bank_mask:0xf"

def srd(reg, lo, hi, size, stride=0):
    e(f"  s_mov_b32 s{reg}, s{lo}")
    e(f"  s_and_b32 s{reg+1}, s{hi}, 0xffff")
    if stride:
        e(f"  s_or_b32 s{reg+1}, s{reg+1}, {stride << 16:#x}")
    e(f"  s_mov_b32 s{reg+2}, {size}")
    e(f"  s_mov_b32 s{reg+3}, 0x20000")

def srd_off(reg, lo, hi, off_sreg, size, const=0, stride=0):
    e(f"  s_add_u32 s{reg}, s{lo}, s{off_sreg}")
    e(f"  s_addc_u32 s{reg+1}, s{hi}, 0")
    if const:
        e(f"  s_add_u32 s{reg}, s{reg}, {const}")
        e(f"  s_addc_u32 s{reg+1}, s{reg+1}, 0")
    e(f"  s_and_b32 s{reg+1}, s{reg+1}, 0xffff")
    if stride:
        e(f"  s_or_b32 s{reg+1}, s{reg+1}, {stride << 16:#x}")
    e(f"  s_mov_b32 s{reg+2}, {size}")
    e(f"  s_mov_b32 s{reg+3}, 0x20000")

STAMP = os.environ.get("STAMP", "")
stamp_n = [0]
def stamp(kern, name):
    if STAMP != kern:
        return
    k = stamp_n[0]; stamp_n[0] += 1
    assert k < 16
    e(f"  s_memrealtime s[84:85]")
    e("  s_waitcnt lgkmcnt(0)")
    e(f"  s_mov_b32 s{86+k}, s84")
    if k == 0:
        e("  s_memtime s[84:85]")
        e("  s_waitcnt lgkmcnt(0)")
        e("  s_mov_b32 s101, s84")
    print("stamp", k, name)
def stamp_dump(kern, wsreg, wavereg):
    if STAMP != kern:
        return
    e("  s_memtime s[84:85]")
    e("  s_waitcnt lgkmcnt(0)")
    e("  s_sub_u32 s101, s84, s101")
    e(f"  s_cmp_eq_u32 s{wavereg}, {int(os.environ.get('STAMPW', '0'))}")
    e(f"  s_cbranch_scc0 L{kern}_nodump")
    e(f"  s_lshl_b32 s84, s2, 6")
    e(f"  s_add_u32 s84, s84, {128<<20}")
    e(f"  s_add_u32 s102-18, s{wsreg}, s84".replace("s102-18", "s84"))
    e(f"  s_addc_u32 s85, s{wsreg+1}, 0")
    e("  v_mov_b32 v60, 0")
    for k in range(16):
        e(f"  v_mov_b32 v61, s{86+k}")
        e(f"  global_store_dword v60, v61, s[84:85] offset:{4*k}")
    lab(f"L{kern}_nodump")

def wave_scan_add(v):
    for sh in (1, 2, 4, 8):
        e("  s_nop 1")
        e(f"  v_add_u32_dpp v{v}, v{v}, v{v} row_shr:{sh} {DPP}")
    e("  s_nop 1")
    e(f"  v_add_u32_dpp v{v}, v{v}, v{v} row_bcast:15 row_mask:0xa bank_mask:0xf")
    e("  s_nop 1")
    e(f"  v_add_u32_dpp v{v}, v{v}, v{v} row_bcast:31 row_mask:0xc bank_mask:0xf")

def wave_max(vs):
    steps = [f"row_shr:{sh} {DPP}" for sh in (1, 2, 4, 8)] + \
            ["row_bcast:15 row_mask:0xa bank_mask:0xf", "row_bcast:31 row_mask:0xc bank_mask:0xf"]
    for st in steps:
        e("  s_nop 1")
        for v in vs:
            e(f"  v_max_u32_dpp v{v}, v{v}, v{v} {st}")

class VmQ:
    def __init__(self):
        self.q = []
    def issue(self, tag):
        self.q.append(tag)
        assert len(self.q) <= 63, "vmcnt overflow"
    def wait(self, tag):
        if tag not in self.q:
            return
        idx = max(i for i, t in enumerate(self.q) if t == tag)
        n = len(self.q) - 1 - idx
        assert n <= 63
        e(f"  s_waitcnt vmcnt({n})")
        self.q = self.q[idx + 1:]
    def drain(self):
        e("  s_waitcnt vmcnt(0)")
        self.q = []

def kernel_a():
    I0, O0, AN0, RK0, TB0 = 8, 34, 60, 74, 100
    vOne, vF = 2, 3
    t0, t1, t2, t3, t4, t5 = 116, 117, 118, 119, 120, 121
    e(f".globl {KA}")
    e(".p2align 8")
    e(f".type {KA},@function")
    lab(KA)
    e(f"  s_cmp_ge_u32 s2, {NCH}")
    e("  s_cbranch_scc1 LA_end")
    e("  s_load_dwordx4 s[4:7], s[0:1], 0")
    e("  s_load_dwordx2 s[8:9], s[0:1], 16      ; idx_out")
    e("  s_load_dwordx2 s[10:11], s[0:1], 32    ; angle")
    e("  s_load_dwordx2 s[12:13], s[0:1], 48    ; ang_freq")
    e("  s_load_dwordx2 s[14:15], s[0:1], 104   ; ws")
    e("  v_lshrrev_b32 v1, 6, v0")
    e("  v_lshlrev_b32 v4, 4, v0                ; t*16")
    e("  v_readfirstlane_b32 s50, v1")
    e("  v_lshlrev_b32 v5, 3, v0                ; t*8")
    e("  v_lshlrev_b32 v6, 2, v0                ; t*4")
    e("  v_lshlrev_b32 v7, 1, v0                ; t*2")
    e(f"  v_mov_b32 v{vOne}, 1")
    e(f"  v_mov_b32 v{t0}, 0")
    e(f"  v_mov_b32 v{t1}, 0")
    e(f"  s_mul_i32 s46, s2, {CH//64 - 1 if NBIG < NCH else CH//64}")
    if NBIG < NCH:
        e(f"  s_min_u32 s47, s2, {NBIG}")
        e("  s_add_u32 s46, s46, s47")
    e("  s_lshl_b32 s48, s46, 8")
    e("  s_lshl_b32 s49, s46, 7")
    e(f"  s_mov_b32 s59, {CH - 64 if NBIG < NCH else CH}")
    if NBIG < NCH:
        e(f"  s_cmp_lt_u32 s2, {NBIG}")
        e(f"  s_cselect_b32 s59, {CH}, s59")
    e(f"  s_mul_i32 s64, s2, {CH*4}")
    e(f"  s_mul_i32 s65, s2, {CH*2}")
    e("  s_lshl_b32 s51, s2, 10")
    e("  s_lshl_b32 s52, s2, 3")
    e("  s_waitcnt lgkmcnt(0)")
    srd_off(16, 6, 7, 48, CH * 4)
    srd_off(20, 8, 9, 48, CH * 4)
    srd_off(24, 10, 11, 49, CH * 2)
    e("  s_lshl_b32 s18, s59, 2")
    e("  s_lshl_b32 s22, s59, 2")
    e("  s_lshl_b32 s26, s59, 1")
    vm = VmQ()
    APIPE = int(os.environ.get("APIPE", "7"))
    e(f"  ds_write_b64 v5, v[{t0}:{t1}] offset:{A_HIST}")
    e(f"  v_and_b32 v{t2}, 15, v0")
    e(f"  v_lshlrev_b32 v{t2}, 3, v{t2}")
    e(f"  v_add_u32 v{t2}, {A_SCR}, v{t2}")
    e(f"  ds_write_b64 v{t2}, v[{t0}:{t1}]")
    e(f"  global_load_ushort v{vF}, v{t0}, s[12:13]")
    vm.issue("F")
    stamp("A", "start")
    def loads(u):
        e(f"  s_mov_b32 s53, {u*16384}")
        e(f"  s_mov_b32 s54, {u*8192}")
        if u < 6:
            e(f"  buffer_load_dwordx4 v[{I0+4*u}:{I0+4*u+3}], v4, s[16:19], s53 offen{AIN}")
            e(f"  buffer_load_dwordx4 v[{O0+4*u}:{O0+4*u+3}], v4, s[20:23], s53 offen{AIN}")
            e(f"  buffer_load_dwordx2 v[{AN0+2*u}:{AN0+2*u+1}], v5, s[24:27], s54 offen{AIN}")
        else:
            e(f"  buffer_load_dword v{I0+24}, v6, s[16:19], s53 offen{AIN}")
            e(f"  buffer_load_dword v{O0+24}, v6, s[20:23], s53 offen{AIN}")
            e(f"  buffer_load_ushort v{AN0+12}, v7, s[24:27], s54 offen{AIN}")
        for _ in range(3):
            vm.issue(f"L{u}")
    APRIO = int(os.environ.get("APRIO", "1"))
    e("  s_waitcnt lgkmcnt(0)")
    e("  s_barrier")
    if APRIO:
        e("  s_setprio 3")
    for u in range(min(APIPE, 7)):
        loads(u)
    if APRIO:
        e("  s_setprio 0")
    e(f"  s_mul_i32 s47, s2, {BINE*32}")
    srd_off(28, 4, 5, 47, BINE * 32)
    e(f"  s_sub_u32 s47, {E*32}, s47")
    e(f"  s_min_u32 s30, s47, {BINE*32}")
    srd_off(32, 14, 15, 64, CH * 4, WS_RECA)
    srd_off(36, 14, 15, 65, CH * 2, WS_RECC)
    e("  s_lshl_b32 s34, s59, 2")
    e("  s_lshl_b32 s38, s59, 1")
    e("  s_sub_u32 s59, s59, 24576")
    srd_off(40, 14, 15, 51, 1024, WS_TT)
    srd_off(44, 14, 15, 52, 8, WS_STATS)
    assert (((2**32 + BINE - 1)//BINE) * BINE - 2**32) * E < 2**32
    e(f"  s_mov_b32 s55, {(2**32 + BINE - 1)//BINE}")
    e(f"  s_mov_b32 s56, {(2**32 * KS)//E - 1}")
    e(f"  s_mov_b32 s57, {-BINE}")

    def rec(r):
        I, O, R = I0 + r, O0 + r, RK0 + r
        e(f"  v_mul_hi_u32_u24 v{t0}, s55, v{O}           ; bin")
        e(f"  v_mul_hi_u32_u24 v{t1}, s56, v{I}           ; i range")
        e(f"  v_mad_i32_i24 v{t2}, v{t0}, s57, v{O}       ; o local")
        e(f"  v_lshlrev_b32 v{t1}, 2, v{t1}")
        e(f"  v_lshl_add_u32 v{O}, v{t0}, 5, v{t1}        ; key*4")
        e(f"  v_lshl_or_b32 v{I}, v{t2}, 19, v{I}")
        e(f"  ds_add_rtn_u32 v{R}, v{O}, v{vOne} offset:{A_HIST}")
        e(f"  v_not_b32 v{I}, v{I}")

    def cospair(a):
        x, y = t3, t4
        e(f"  v_lshlrev_b32 v{x}, 16, v{a}")
        e(f"  v_and_b32 v{y}, 0xffff0000, v{a}")
        e(f"  v_mul_f32 v{x}, v{vF}, v{x}")
        e(f"  v_mul_f32 v{y}, v{vF}, v{y}")
        e(f"  v_cvt_pk_bf16_f32 v{t5}, v{x}, v{y}")
        e(f"  v_lshlrev_b32 v{x}, 16, v{t5}")
        e(f"  v_and_b32 v{y}, 0xffff0000, v{t5}")
        e(f"  v_mul_f32 v{x}, 0.15915494, v{x}")
        e(f"  v_mul_f32 v{y}, 0.15915494, v{y}")
        e(f"  v_fract_f32 v{x}, v{x}")
        e(f"  v_fract_f32 v{y}, v{y}")
        e(f"  v_cos_f32 v{x}, v{x}")
        e(f"  v_cos_f32 v{y}, v{y}")
        e("  s_nop 0")
        e(f"  v_cvt_pk_bf16_f32 v{a}, v{x}, v{y}")

    if "A" in TOUCH:
        e(f"  v_mov_b32 v{t3}, 0")
        for r in (32, 36, 40, 44):
            e(f"  buffer_load_dword v127, v{t3}, s[{r}:{r+3}], 0 offen")
            vm.issue("touch")
    stamp("A", "loads issued")
    for u in range(7):
        vm.wait(f"L{u}")
        if u in (0, 3, 6):
            stamp("A", f"group {u} arrived")
        if u + APIPE < 7:
            loads(u + APIPE)
        if u == 0:
            e(f"  v_lshlrev_b32 v{vF}, 16, v{vF}")
        if u < 6:
            for r in range(4):
                rec(4 * u + r)
            cospair(AN0 + 2 * u)
            cospair(AN0 + 2 * u + 1)
        else:
            e(f"  v_cmp_gt_u32 vcc, s59, v0")
            e("  s_and_saveexec_b64 s[62:63], vcc")
            e("  s_cbranch_execz LA_r24")
            rec(24)
            cospair(AN0 + 12)
            lab("LA_r24")
            e("  s_mov_b64 exec, s[62:63]")
    for u in range(4):
        e(f"  s_mov_b32 s53, {u*16384}")
        e(f"  buffer_load_dwordx4 v[{TB0+4*u}:{TB0+4*u+3}], v4, s[28:31], s53 offen{ATAB}")
    e("  s_waitcnt lgkmcnt(0)")
    e("  s_barrier")
    stamp("A", "hist barrier")
    e(f"  ds_read_b64 v[{t0}:{t1}], v5 offset:{A_HIST}")
    e("  s_waitcnt lgkmcnt(0)")
    e(f"  v_add_u32 v{t2}, v{t0}, v{t1}")
    e(f"  v_mov_b32 v{t3}, v{t2}")
    wave_scan_add(t3)
    e(f"  s_lshl_b32 s58, s50, 2")
    e(f"  s_add_u32 s58, s58, {A_SCR}")
    e(f"  v_mov_b32 v{t4}, s58")
    e("  s_mov_b32 exec_lo, 0")
    e("  s_mov_b32 exec_hi, 0x80000000")
    e(f"  ds_write_b32 v{t4}, v{t3}")
    e("  s_mov_b64 exec, -1")
    e("  s_waitcnt lgkmcnt(0)")
    e("  s_barrier")
    e(f"  v_and_b32 v{t4}, 15, v0")
    e(f"  v_lshlrev_b32 v{t4}, 2, v{t4}")
    e(f"  v_add_u32 v{t4}, {A_SCR}, v{t4}")
    e(f"  ds_read_b32 v{t4}, v{t4}")
    e("  s_waitcnt lgkmcnt(0)")
    e(f"  v_mov_b32 v{t5}, v{t4}")
    for sh in (1, 2, 4, 8):
        e("  s_nop 1")
        e(f"  v_add_u32_dpp v{t5}, v{t5}, v{t5} row_shr:{sh} {DPP}")
    e(f"  v_sub_u32 v{t5}, v{t5}, v{t4}")
    e("  s_nop 0")
    e(f"  v_readlane_b32 s58, v{t5}, s50")
    e(f"  v_sub_u32 v{t3}, v{t3}, v{t2}")
    e("  s_nop 0")
    e(f"  v_add_u32 v{t2}, s58, v{t3}         ; start0")
    e(f"  v_add_u32 v{t3}, v{t2}, v{t0}       ; start1")
    e(f"  ds_write_b64 v5, v[{t2}:{t3}] offset:{A_HIST}")
    e(f"  v_and_b32 v{t4}, 3, v0")
    e(f"  v_cmp_eq_u32 vcc, 0, v{t4}")
    e("  s_and_saveexec_b64 s[60:61], vcc")
    e(f"  buffer_store_dword v{t2}, v0, s[40:43], 0 offen")
    e("  s_mov_b64 exec, s[60:61]")
    e("  s_waitcnt lgkmcnt(0)")
    e("  s_barrier")
    stamp("A", "scan done")
    groups = [range(0, 8), range(8, 16), range(16, 24), range(24, 25)]
    for g in groups:
        if g[0] == 24:
            e(f"  v_cmp_gt_u32 vcc, s59, v0")
            e("  s_and_saveexec_b64 s[62:63], vcc")
            e("  s_cbranch_execz LA_s24")
        for r in g:
            e(f"  ds_read_b32 v{O0+r}, v{O0+r} offset:{A_HIST}")
        e("  s_waitcnt lgkmcnt(0)")
        for r in g:
            e(f"  v_add_u32 v{O0+r}, v{O0+r}, v{RK0+r}")
            e(f"  v_lshlrev_b32 v{RK0+r}, 2, v{O0+r}")
            e(f"  v_lshlrev_b32 v{O0+r}, 1, v{O0+r}")
            e(f"  ds_write_b32 v{RK0+r}, v{I0+r} offset:{A_A}")
            op = "ds_write_b16" if r % 2 == 0 else "ds_write_b16_d16_hi"
            e(f"  {op} v{O0+r}, v{AN0+r//2} offset:{A_C}")
        if g[0] == 24:
            lab("LA_s24")
            e("  s_mov_b64 exec, s[62:63]")
    stamp("A", "scatter issued")
    gM, gR = 122, 123
    e(f"  v_mov_b32 v{gM}, 0")
    e(f"  v_mov_b32 v{gR}, 0")
    e("  s_mov_b32 s58, 0x7fff7fff")
    e("  s_waitcnt vmcnt(0)")
    for u in range(4):
        b = TB0 + 4 * u
        for k in range(4):
            e(f"  v_and_b32 v{b+k}, s58, v{b+k}")
        e(f"  v_pk_max_u16 v{b}, v{b}, v{b+1}")
        e(f"  v_pk_max_u16 v{b+2}, v{b+2}, v{b+3}")
        e(f"  v_pk_max_u16 v{b}, v{b}, v{b+2}")
        e(f"  v_lshrrev_b32 v{b+1}, 16, v{b}")
        e(f"  v_and_b32 v{b}, 0xffff, v{b}")
        e(f"  v_max_u32 v{b}, v{b}, v{b+1}")
        e("  s_nop 1")
        e(f"  v_max_u32_dpp v{b}, v{b}, v{b} quad_perm:[1,0,3,2] {DPP}")
        e(f"  v_max_u32 v{gM}, v{gM}, v{b}")
        e(f"  v_sub_u32 v{b}, 0x8000, v{b}")
        e(f"  v_and_b32 v{b}, 0x7fff, v{b}")
        e(f"  v_max_u32 v{gR}, v{gR}, v{b}")
    wave_max([gM, gR])
    e(f"  v_mov_b32 v{t4}, {A_SCR + 64}")
    e("  s_mov_b32 exec_lo, 0")
    e("  s_mov_b32 exec_hi, 0x80000000")
    e(f"  ds_max_u32 v{t4}, v{gM}")
    e(f"  ds_max_u32 v{t4}, v{gR} offset:4")
    e("  s_mov_b64 exec, -1")
    e("  s_waitcnt lgkmcnt(0)")
    e("  s_barrier")
    stamp("A", "scatter barrier")
    d = 8
    for u in range(6):
        e(f"  v_add_u32 v{t0}, {u*16384}, v4")
        e(f"  ds_read_b128 v[{d+4*u}:{d+4*u+3}], v{t0} offset:{A_A}")
    for u in range(3):
        e(f"  v_add_u32 v{t0}, {u*16384}, v4")
        e(f"  ds_read_b128 v[{d+24+4*u}:{d+24+4*u+3}], v{t0} offset:{A_C}")
    e(f"  v_mov_b32 v{t4}, {A_SCR + 64}")
    e(f"  ds_read_b64 v[{t2}:{t3}], v{t4}")
    for u in range(6):
        e(f"  s_mov_b32 s53, {u*16384}")
        e(f"  s_waitcnt lgkmcnt({9-u})")
        e(f"  buffer_store_dwordx4 v[{d+4*u}:{d+4*u+3}], v4, s[32:35], s53 offen{AST}")
    for u in range(3):
        e(f"  s_mov_b32 s53, {u*16384}")
        e(f"  s_waitcnt lgkmcnt({3-u})")
        e(f"  buffer_store_dwordx4 v[{d+24+4*u}:{d+24+4*u+3}], v4, s[36:39], s53 offen{AST}")
    stamp("A", "stores issued")
    if STAMP == "A":
        e("  s_waitcnt vmcnt(0)")
    stamp("A", "stores done")
    stamp_dump("A", 14, 50)
    e(f"  s_cmp_lt_u32 s50, {-(-(CH*4 - 6*16384) // 1024)}")
    e("  s_cbranch_scc0 LA_t1")
    e(f"  v_add_u32 v{t0}, {6*16384}, v4")
    e(f"  ds_read_b128 v[60:63], v{t0} offset:{A_A}")
    e(f"  s_mov_b32 s53, {6*16384}")
    e("  s_waitcnt lgkmcnt(0)")
    e(f"  buffer_store_dwordx4 v[60:63], v4, s[32:35], s53 offen{AST}")
    lab("LA_t1")
    e(f"  s_cmp_lt_u32 s50, {-(-(CH*2 - 3*16384) // 1024)}")
    e("  s_cbranch_scc0 LA_t2")
    e(f"  v_add_u32 v{t0}, {3*16384}, v4")
    e(f"  ds_read_b128 v[64:67], v{t0} offset:{A_C}")
    e(f"  s_mov_b32 s53, {3*16384}")
    e("  s_waitcnt lgkmcnt(0)")
    e(f"  buffer_store_dwordx4 v[64:67], v4, s[36:39], s53 offen{AST}")
    lab("LA_t2")
    e("  s_cmp_eq_u32 s50, 15")
    e("  s_cbranch_scc0 LA_end")
    e("  s_waitcnt lgkmcnt(0)")
    e(f"  v_mov_b32 v{t0}, 0")
    e("  s_mov_b32 exec_lo, 1")
    e("  s_mov_b32 exec_hi, 0")
    e(f"  buffer_store_dwordx2 v[{t2}:{t3}], v{t0}, s[44:47], 0 offen")
    lab("LA_end")
    e("  s_endpgm")

def kernel_b():
    vH8, vIA, vIB, vCB, vOne = 1, 2, 4, 6, 7
    G0 = 8
    OA, CH_ = 40, 44
    P0 = 48
    t0, t1, t2, t3, t4, t5, t6, t7, t8 = range(56, 65)
    BS, LN = 65, 69
    XZ = 65
    CU = 73
    vL16 = 77
    WDS = 78
    RCP, RA0 = 80, 96
    def RA(s, j): return RA0 + 4 * j + s
    def RCp(s, j): return RCP + 4 * (j // 2) + s
    RBF, CEN, WT, MR = 96, 103, 104, 104
    WD, WU, WS, WR = 80, 82, 84, 86
    sW, sMag, sSc, sInv, sMode, sMsk, sN80, sTail, sPerm = 50, 53, 54, 55, 56, 57, 58, 59, 60
    sOv = 66
    vm = VmQ()
    e(f".globl {KB}")
    e(".p2align 8")
    e(f".type {KB},@function")
    lab(KB)
    e(f"  s_cmp_ge_u32 s2, {NB}")
    e("  s_cbranch_scc1 LB_end")
    if XMAP:
        e("  s_and_b32 s3, s2, 7")
        e("  s_lshr_b32 s2, s2, 3")
        e(f"  s_mul_i32 s4, s3, {NB//8}")
        if NB % 8:
            e(f"  s_min_u32 s3, s3, {NB%8}")
            e("  s_add_u32 s2, s2, s3")
        e("  s_add_u32 s2, s2, s4")
    e("  s_load_dwordx2 s[78:79], s[0:1], 104    ; ws")
    e("  s_load_dwordx2 s[68:69], s[0:1], 0      ; m")
    e("  s_load_dwordx2 s[70:71], s[0:1], 24     ; dist")
    e("  s_load_dwordx2 s[40:41], s[0:1], 40     ; centers")
    e("  s_load_dwordx4 s[44:47], s[0:1], 56")
    e("  s_load_dwordx4 s[72:75], s[0:1], 72")
    e("  s_load_dwordx2 s[76:77], s[0:1], 88     ; out")
    e("  v_lshrrev_b32 v8, 6, v0")
    e(f"  v_and_b32 v{vL16}, 15, v0")
    e(f"  v_readfirstlane_b32 s{sW}, v8")
    e(f"  v_and_b32 v9, 1, v0")
    e(f"  v_lshlrev_b32 v{vH8}, 3, v9")
    e(f"  v_lshlrev_b32 v{vIA+1}, 4, v9")
    e(f"  v_lshlrev_b32 v{vIB+1}, 4, v9")
    e(f"  v_mov_b32 v{vCB}, {2047*ROWB}")
    e(f"  v_mov_b32 v{vOne}, 1")
    e(f"  s_mul_i32 s80, s2, {BINE*32}")
    e(f"  s_mul_i32 s81, s2, {BINE*2}")
    e(f"  s_mov_b32 s{sMode}, 0")
    e(f"  s_mov_b32 s{sMsk}, 0x7ffff")
    e(f"  s_mov_b32 s{sN80}, {-ROWB}")
    e(f"  s_mov_b32 s{sPerm}, 0x05040100")
    e("  s_waitcnt lgkmcnt(0)")
    e(f"  s_add_u32 s82, s78, {WS_TT}")
    e("  s_addc_u32 s83, s79, 0")
    srd(16, 82, 83, NCH * 1024)
    e(f"  s_add_u32 s82, s78, {WS_STATS}")
    e("  s_addc_u32 s83, s79, 0")
    srd(20, 82, 83, NCH * 8)
    e(f"  s_add_u32 s82, s78, {WS_RECA - 4}")
    e("  s_addc_u32 s83, s79, 0")
    srd(4, 82, 83, TP + 1, 4)
    e(f"  s_add_u32 s82, s78, {WS_RECC - 2}")
    e("  s_addc_u32 s83, s79, 0")
    srd(8, 82, 83, TP + 1, 2)
    srd(12, 68, 69, E, 32)
    srd_off(24, 68, 69, 80, BINE * 32)
    srd_off(28, 76, 77, 80, BINE * 32)
    srd_off(32, 70, 71, 81, BINE * 2)
    e(f"  s_sub_u32 s82, {E*32}, s80")
    e(f"  s_min_u32 s26, s82, {BINE*32}")
    e("  s_mov_b32 s30, s26")
    e("  s_lshr_b32 s34, s26, 4")
    lab("LB_start")
    stamp("B", "start")
    ST0 = 48
    def run_table_loads():
        g = t0
        e(f"  v_and_b32 v{t1}, 63, v0")
        e(f"  v_lshrrev_b32 v{g}, 4, v{t1}            ; g = lane>>4")
        e(f"  s_lshl_b32 s80, s{sW}, 4")
        e(f"  v_add_u32 v{t1}, s80, v{g}              ; 16w+g")
        e(f"  s_lshl_b32 s81, s2, 2")
        e(f"  v_lshlrev_b32 v{t2}, 10, v{t1}")
        e(f"  v_add_u32 v{t2}, s81, v{t2}")
        for s in range(4):
            e(f"  v_add_u32 v{t3}, {s*4096}, v{t2}")
            e(f"  buffer_load_dwordx2 v[{G0+2*s}:{G0+2*s+1}], v{t3}, s[16:19], 0 offen")
            vm.issue("T")
    rp_n = [0]
    def run_params():
        rp_n[0] += 1
        e(f"  s_mov_b32 s80, {CH}")
        for s in range(4):
            e(f"  v_add_u32 v{t3}, {4*s}, v{t1}")
            e(f"  v_mad_u32_u24 v{t3}, v{t3}, s80, 1")
            e(f"  v_add_u32 v{BS+s}, v{t3}, v{G0+2*s}")
            if NB == 256:
                e(f"  s_cmp_eq_u32 s2, {NB-1}")
                e(f"  s_cbranch_scc0 LB_rp{rp_n[0]}_{s}")
                e(f"  v_add_u32 v{t4}, {4*s}, v{t1}")
                e(f"  v_cmp_gt_u32 vcc, {NBIG}, v{t4}")
                e(f"  v_mov_b32 v{t4}, {CH}")
                e(f"  v_mov_b32 v{G0+2*s+1}, {CH-64}")
                e(f"  v_cndmask_b32 v{G0+2*s+1}, v{G0+2*s+1}, v{t4}, vcc")
                lab(f"LB_rp{rp_n[0]}_{s}")
            e(f"  v_sub_u32 v{LN+s}, v{G0+2*s+1}, v{G0+2*s}")
    run_table_loads()
    e(f"  v_and_b32 v{t3}, 63, v0")
    e(f"  v_lshlrev_b32 v{t3}, 3, v{t3}")
    for s in range(4):
        e(f"  buffer_load_dwordx2 v[{ST0+2*s}:{ST0+2*s+1}], v{t3}, s[20:23], 0 offen offset:{s*512}")
        vm.issue("ST")
    if "B" in TOUCH:
        e(f"  v_mov_b32 v{t3}, 0")
        for r in (28,):
            e(f"  buffer_load_dword v79, v{t3}, s[{r}:{r+3}], 0 offen")
            vm.issue("touch")
    ZR = 40
    for k in range(4):
        e(f"  v_mov_b32 v{ZR+k}, 0")
    e(f"  v_lshlrev_b32 v{t3}, 4, v0")
    for u in range(8):
        if u == 4:
            e(f"  v_add_u32 v{t3}, 0x10000, v{t3}")
        e(f"  ds_write_b128 v{t3}, v[{ZR}:{ZR+3}] offset:{(u%4)*16384}")
    vm.wait("T")
    stamp("B", "T arrived")
    run_params()
    e(f"  v_max_u32 v{t3}, v{LN}, v{LN+1}")
    e(f"  v_max3_u32 v{t3}, v{t3}, v{LN+2}, v{LN+3}")
    e(f"  v_cmp_lt_u32 vcc, 0x80, v{t3}")
    e(f"  s_cmp_lg_u64 vcc, 0")
    e(f"  s_cselect_b32 s{sTail}, 1, 0")
    def LZ(s, j): return RCp(s, j) if j % 2 == 0 else G0 + 8 + 4 * (j // 2) + s
    if EARLYBAR:
        e("  s_waitcnt lgkmcnt(0)")
        e("  s_barrier")
    for s in range(4):
        lp, acc, lo, hi = t2, t3, t4, t6
        e(f"  v_min_u32 v{lp}, 0x80, v{LN+s}          ; len'")
        e(f"  v_mov_b32 v{lo}, v{vL16}")
        e(f"  v_mov_b32 v{acc}, v{lp}")
        def msk(j):
            return f"s[{84+2*j}:{85+2*j}]" if (BURST and not STAMP) else "vcc"
        def lds(j):
            e(f"  s_mov_b64 exec, {msk(j)}")
            e(f"  buffer_load_ushort v{LZ(s,j)}, v{RA(s,j)}, s[8:11], 0 idxen{BREC}")
            vm.issue(f"C{s}_{j}")
            e(f"  buffer_load_dword v{RA(s,j)}, v{RA(s,j)}, s[4:7], 0 idxen{BREC}")
            vm.issue(f"A{s}_{j}")
        for j in range(8):
            e(f"  v_lshrrev_b32 v{hi}, 3, v{acc}")
            e(f"  v_add_u32 v{acc}, v{acc}, v{lp}")
            e(f"  v_cmp_lt_u32 {msk(j)}, v{lo}, v{hi}")
            e(f"  v_add_u32 v{t7}, v{BS+s}, v{lo}")
            e(f"  v_add_u32 v{lo}, v{hi}, v{vL16}")
            e(f"  v_cndmask_b32 v{RA(s,j)}, 0, v{t7}, {msk(j)}")
            if not (BURST and not STAMP):
                lds(j)
                e("  s_mov_b64 exec, -1")
        if BURST and not STAMP:
            for j in range(8):
                lds(j)
            e("  s_mov_b64 exec, -1")
        if s == 2:
            vm.wait("A0_7")
    stamp("B", "rec loads issued")
    a, b = ST0, ST0 + 1
    e(f"  v_max3_u32 v{a}, v{ST0}, v{ST0+2}, v{ST0+4}")
    e(f"  v_max3_u32 v{b}, v{ST0+1}, v{ST0+3}, v{ST0+5}")
    e(f"  v_max_u32 v{a}, v{a}, v{ST0+6}")
    e(f"  v_max_u32 v{b}, v{b}, v{ST0+7}")
    wave_max([a, b])
    e("  s_nop 0")
    e(f"  v_readlane_b32 s80, v{a}, 63")
    e(f"  v_readlane_b32 s81, v{b}, 63")
    e("  s_nop 0")
    e("  s_lshr_b32 s82, s80, 7")
    e("  s_sub_u32 s81, 0x8000, s81")
    e("  s_lshr_b32 s81, s81, 7")
    e("  s_sub_u32 s83, s82, s81")
    e(f"  s_cmp_eq_u32 s{sMode}, 2")
    e("  s_cbranch_scc1 LB_float")
    e("  s_cmp_ge_u32 s80, 0x7f80")
    e("  s_cbranch_scc1 LB_float")
    e("  s_cmp_lt_u32 s82, 32")
    e("  s_cbranch_scc1 LB_float")
    e("  s_cmp_gt_u32 s82, 200")
    e("  s_cbranch_scc1 LB_float")
    e("  s_cmp_gt_i32 s83, 10")
    e("  s_cbranch_scc1 LB_float")
    e(f"  s_mov_b32 s{sMag}, 0x4b400000")
    e("  s_sub_u32 s83, 275, s82")
    e(f"  s_lshl_b32 s{sSc}, s83, 23")
    e("  s_sub_u32 s83, s82, 21")
    e(f"  s_lshl_b32 s{sInv}, s83, 23")
    e("  s_branch LB_fast")
    lab("LB_float")
    e(f"  s_mov_b32 s{sMode}, 2")
    e(f"  s_mov_b32 s{sMag}, 0")
    e(f"  s_mov_b32 s{sSc}, 1.0")
    e(f"  s_mov_b32 s{sInv}, 1.0")
    e(f"  s_mov_b32 s{sTail}, 1")
    e("  s_waitcnt vmcnt(0) lgkmcnt(0)")
    e("  s_barrier")
    e("  s_branch LB_generic")
    lab("LB_fast")
    for s in range(4):
        for jj in range(4):
            vm.wait(f"C{s}_{2*jj+1}")
            e(f"  v_perm_b32 v{RCp(s,2*jj)}, v{LZ(s,2*jj+1)}, v{RCp(s,2*jj)}, s{sPerm}")
    vm.drain()
    stamp("B", "records arrived")

    def dec_idx(ra, dst):
        e(f"  v_bfi_b32 v{dst}, v{ra}, 0, s{sMsk}")
    def dec_rest(ra, rc, hi_half, s):
        e(f"  v_bfe_u32 v{t7}, v{ra}, 19, 11")
        if hi_half:
            e(f"  v_and_b32 v{t8}, 0xffff0000, v{rc}")
        else:
            e(f"  v_lshlrev_b32 v{t8}, 16, v{rc}")
        e(f"  v_mad_i32_i24 v{OA+s}, v{t7}, s{sN80}, v{vCB}")
        e(f"  v_mul_f32 v{CH_+s}, s{sSc}, v{t8}")
        e(f"  ds_add_u32 v{OA+s}, v{vOne} offset:64")
    def gather(s, h, src, tag):
        g0 = G0 + 8 * s + 4 * h
        vi = vIA if h == 0 else vIB
        qp = "[0,0,2,2]" if h == 0 else "[1,1,3,3]"
        e(f"  v_mov_b32_dpp v{vi}, v{src} quad_perm:{qp} {DPP}")
        if "nogather" in ABL:
            e(f"  v_mov_b32 v{vi}, -1")
        e(f"  buffer_load_dwordx4 v[{g0}:{g0+3}], v[{vi}:{vi+1}], s[12:15], 0 idxen offen")
        vm.issue(tag)
    def consume(s, h, isfloat):
        qp = "[0,0,2,2]" if h == 0 else "[1,1,3,3]"
        g0 = G0 + 8 * s + 4 * h
        ad, ch, cl = t0 + 3 * h, t1 + 3 * h, t2 + 3 * h
        e(f"  v_mov_b32_dpp v{ch}, v{CH_+s} quad_perm:{qp} {DPP}")
        e(f"  v_add_u32_dpp v{ad}, v{OA+s}, v{vH8} quad_perm:{qp} {DPP}")
        e(f"  v_lshrrev_b32 v{cl}, 16, v{ch}")
        for k in range(4):
            e(f"  v_dot2_f32_bf16 v{P0+2*k+1}, v{g0+k}, v{ch}, s{sMag}")
            e(f"  v_dot2_f32_bf16 v{P0+2*k}, v{g0+k}, v{cl}, s{sMag}")
            if "noatom" in ABL:
                continue
            if isfloat:
                e(f"  ds_add_f32 v{ad}, v{P0+2*k} offset:{16*k}")
                e(f"  ds_add_f32 v{ad}, v{P0+2*k+1} offset:{16*k+4}")
            else:
                e(f"  ds_add_u64 v{ad}, v[{P0+2*k}:{P0+2*k+1}] offset:{16*k}")
    if not EARLYBAR:
        e("  s_waitcnt lgkmcnt(0)")
        e("  s_barrier")
    stamp("B", "after barrier")
    tI = t6
    for s in range(4):
        dec_idx(RA(s, 0), tI)
        dec_rest(RA(s, 0), RCp(s, 0), False, s)
        gather(s, 0, tI, f"g0_{s}_0")
        gather(s, 1, tI, f"g0_{s}_1")

    def epi_loads1():
        gg, nn = t7, vL16
        e(f"  v_and_b32 v{t8}, 63, v0")
        e(f"  v_lshrrev_b32 v{gg}, 4, v{t8}")
        e(f"  v_lshlrev_b32 v{t8}, 6, v{gg}")
        e(f"  v_lshl_add_u32 v{t8}, v{nn}, 1, v{t8}     ; 64g + 2n")
        for k, off in enumerate((0, 32, 256, 288)):
            e(f"  global_load_ushort v{WT+k}, v{t8}, s[72:73] offset:{off}"); vm.issue("E1")
        for k in range(2):
            e(f"  global_load_ushort v{WT+8+k}, v{t8}, s[44:45] offset:{32*k}"); vm.issue("E1")
            e(f"  global_load_ushort v{WT+10+k}, v{t8}, s[46:47] offset:{32*k}"); vm.issue("E1")
        e(f"  v_lshlrev_b32 v{t8}, 7, v{gg}")
        e(f"  v_lshl_add_u32 v{t8}, v{nn}, 1, v{t8}     ; 128g + 2n")
        for k in range(4):
            e(f"  global_load_ushort v{WT+4+k}, v{t8}, s[74:75] offset:{32*k}"); vm.issue("E1")
        e(f"  v_lshlrev_b32 v{t8}, 2, v{gg}")
        e(f"  global_load_dword v{CEN}, v{t8}, s[40:41]"); vm.issue("E1")
        e(f"  s_lshl_b32 s80, s{sW}, 5")
        e(f"  v_lshl_add_u32 v{t8}, v{nn}, 1, s80")
        for u in range(7):
            e(f"  buffer_load_ushort v{RBF+u}, v{t8}, s[32:35], 0 offen offset:{u*512}"); vm.issue("E1")
    def epi_loads2():
        gg, nn = t7, vL16
        e(f"  v_and_b32 v{t8}, 63, v0")
        e(f"  v_lshrrev_b32 v{gg}, 4, v{t8}")
        e(f"  s_lshl_b32 s80, s{sW}, 9")
        e(f"  v_lshlrev_b32 v{t8}, 5, v{nn}")
        e(f"  v_lshl_add_u32 v{t8}, v{gg}, 3, v{t8}")
        e(f"  v_add_u32 v{t8}, s80, v{t8}")
        for u in range(7):
            e(f"  s_mov_b32 s81, {u*8192}")
            e(f"  buffer_load_dwordx2 v[{MR+2*u}:{MR+2*u+1}], v{t8}, s[24:27], s81 offen{BM}"); vm.issue("E2")
    def epi_prep_w():
        e(f"  v_lshl_or_b32 v{WD}, v{WT+1}, 16, v{WT}")
        e(f"  v_lshl_or_b32 v{WD+1}, v{WT+3}, 16, v{WT+2}")
        e(f"  v_lshl_or_b32 v{WU}, v{WT+5}, 16, v{WT+4}")
        e(f"  v_lshl_or_b32 v{WU+1}, v{WT+7}, 16, v{WT+6}")
        e(f"  v_lshl_or_b32 v{WR}, v{WT+9}, 16, v{WT+8}")
        e(f"  v_lshl_or_b32 v{WS}, v{WT+11}, 16, v{WT+10}")
        e(f"  v_mov_b32 v{WR+1}, 0")
        e(f"  v_mov_b32 v{WS+1}, 0")
        c0, c1, x, y, p = XZ, XZ + 1, XZ + 2, XZ + 3, XZ + 4
        for k in range(2):
            e(f"  v_lshlrev_b32 v{x}, 16, v{WD+k}")
            e(f"  v_and_b32 v{y}, 0xffff0000, v{WD+k}")
            e(f"  v_mul_f32 v{x}, s{sInv}, v{x}")
            e(f"  v_mul_f32 v{y}, s{sInv}, v{y}")
            e(f"  v_cvt_pk_bf16_f32 v{WDS+k}, v{x}, v{y}")
        e(f"  v_lshlrev_b32 v{c0}, 16, v{CEN}")
        e(f"  v_and_b32 v{c1}, 0xffff0000, v{CEN}")
    def epi_prep_rbf(u):
        c0, c1, x, y, p = XZ, XZ + 1, XZ + 2, XZ + 3, XZ + 4
        r = RBF + u
        e("  s_mov_b32 s80, 0xc1200000           ; -10.0")
        e("  s_mov_b32 s81, 0x3fb8aa3b           ; log2(e)")
        e(f"  v_lshlrev_b32 v{r}, 16, v{r}")
        e(f"  v_sub_f32 v{x}, v{r}, v{c0}")
        e(f"  v_sub_f32 v{y}, v{r}, v{c1}")
        for op in ("sq", "m10", "exp"):
            e(f"  v_cvt_pk_bf16_f32 v{p}, v{x}, v{y}")
            e(f"  v_lshlrev_b32 v{x}, 16, v{p}")
            e(f"  v_and_b32 v{y}, 0xffff0000, v{p}")
            if op == "sq":
                e(f"  v_mul_f32 v{x}, v{x}, v{x}")
                e(f"  v_mul_f32 v{y}, v{y}, v{y}")
            elif op == "m10":
                e(f"  v_mul_f32 v{x}, s80, v{x}")
                e(f"  v_mul_f32 v{y}, s80, v{y}")
            else:
                e(f"  v_mul_f32 v{x}, s81, v{x}")
                e(f"  v_mul_f32 v{y}, s81, v{y}")
                e(f"  v_exp_f32 v{x}, v{x}")
                e(f"  v_exp_f32 v{y}, v{y}")
                e("  s_nop 0")
        e(f"  v_cvt_pk_bf16_f32 v{r}, v{x}, v{y}")
    def epi_prep():
        epi_prep_w()
        for u in range(7):
            epi_prep_rbf(u)

    for j in range(8):
        if "nobar" not in ABL:
            e("  s_barrier")
        if j in (0, 1, 2, 4, 6, 7):
            stamp("B", f"phase {j} begin")
        for s in range(4):
            last = (j == 7)
            if s and s % BARN == 0 and not last:
                e("  s_barrier")
            if not last:
                dec_idx(RA(s, j + 1), tI)
            vm.wait(f"g{j}_{s}_0")
            consume(s, 0, False)
            if not last:
                gather(s, 0, tI, f"g{j+1}_{s}_0")
            vm.wait(f"g{j}_{s}_1")
            consume(s, 1, False)
            if not last:
                gather(s, 1, tI, f"g{j+1}_{s}_1")
                dec_rest(RA(s, j + 1), RCp(s, j + 1), (j + 1) % 2 == 1, s)
            step = 4 * j + s
            if step == 15:
                epi_loads1()
            if SPREAD:
                if step == 19:
                    vm.wait("E1")
                    epi_prep_w()
                if 20 <= step <= 26:
                    epi_prep_rbf(step - 20)
                if step == 27:
                    epi_loads2()
            else:
                if step == 20:
                    vm.wait("E1")
                    epi_prep()
                if step == 23:
                    epi_loads2()
    stamp("B", "main done")
    e(f"  s_cmp_eq_u32 s{sTail}, 0")
    e("  s_cbranch_scc1 LB_epi")
    lab("LB_generic")
    q_main = list(vm.q)
    e("  s_waitcnt vmcnt(0)")
    run_table_loads()
    e("  s_waitcnt vmcnt(0)")
    run_params()
    for s in range(4):
        e(f"  v_min_u32 v{CU+s}, 0x80, v{LN+s}")
        e(f"  s_cmp_eq_u32 s{sMode}, 2")
        e(f"  s_cbranch_scc0 LB_gen{s}_c")
        e(f"  v_mov_b32 v{CU+s}, 0")
        lab(f"LB_gen{s}_c")
    for s in range(4):
        lab(f"LB_gen{s}")
        e(f"  v_add_u32 v{t0}, v{CU+s}, v{vL16}")
        e(f"  v_cmp_lt_u32 vcc, v{t0}, v{LN+s}")
        e(f"  s_cbranch_vccz LB_gen{s}_done")
        e(f"  v_add_u32 v{t0}, v{BS+s}, v{t0}")
        e(f"  v_add_u32 v{CU+s}, 16, v{CU+s}")
        e(f"  v_cndmask_b32 v{t0}, -1, v{t0}, vcc")
        e(f"  buffer_load_dword v{G0+8}, v{t0}, s[4:7], 0 idxen")
        e(f"  buffer_load_ushort v{G0+9}, v{t0}, s[8:11], 0 idxen")
        e("  s_waitcnt vmcnt(0)")
        dec_idx(G0 + 8, tI)
        dec_rest(G0 + 8, G0 + 9, False, 0)
        gather(0, 0, tI, "x")
        gather(0, 1, tI, "x")
        e("  s_waitcnt vmcnt(0)")
        e(f"  s_cmp_eq_u32 s{sMode}, 2")
        e(f"  s_cbranch_scc1 LB_gen{s}_f")
        consume(0, 0, False)
        consume(0, 1, False)
        e(f"  s_branch LB_gen{s}")
        lab(f"LB_gen{s}_f")
        consume(0, 0, True)
        consume(0, 1, True)
        e(f"  s_branch LB_gen{s}")
        lab(f"LB_gen{s}_done")
    e(f"  s_cmp_eq_u32 s{sMode}, 2")
    e("  s_cbranch_scc0 LB_epi")
    epi_loads1()
    e("  s_waitcnt vmcnt(0)")
    epi_prep()
    epi_loads2()
    lab("LB_epi")
    vm.q = []
    e("  s_waitcnt lgkmcnt(0)")
    e("  s_barrier")
    stamp("B", "final barrier")
    g = t0
    e(f"  v_and_b32 v{t1}, 63, v0")
    e(f"  v_lshrrev_b32 v{g}, 4, v{t1}")
    e(f"  s_lshl_b32 s80, s{sW}, 4")
    e(f"  v_add_u32 v{t1}, s80, v{vL16}")
    e(f"  v_mul_u32_u24 v{t1}, {ROWB}, v{t1}")
    e(f"  v_lshl_add_u32 v{t2}, v{g}, 4, v{t1}")
    e(f"  s_lshl_b32 s80, s{sW}, 9")
    e(f"  v_lshlrev_b32 v{t6}, 5, v{vL16}")
    e(f"  v_lshl_add_u32 v{t6}, v{g}, 3, v{t6}")
    e(f"  v_add_u32 v{t6}, s80, v{t6}")
    e(f"  s_mov_b64 s[{sOv}:{sOv+1}], 0")
    A_ = lambda u: 8 + 12 * (u % 4)
    G_ = lambda u: 8 + 12 * (u % 4) + 4
    R_ = lambda u: 8 + 12 * (u % 4) + 8
    PK, RP = 66, 68
    X0 = 70
    e(f"  v_mov_b32 v{RP+1}, 0")
    def tile_reads(u):
        e(f"  v_add_u32 v{t3}, {u*256*ROWB}, v{t2}")
        e(f"  v_add_u32 v{t4}, {u*256*ROWB}, v{t1}")
        e(f"  ds_read_b128 v[{A_(u)}:{A_(u)+3}], v{t3}")
        e(f"  ds_read_b32 v{G_(u)}, v{t4} offset:64")
    def tile_stage1(u):
        a, gg, rr = A_(u), G_(u), R_(u)
        e(f"  v_cmp_lt_u32 vcc, 0x1ff, v{gg}")
        e(f"  s_or_b64 s[{sOv}:{sOv+1}], s[{sOv}:{sOv+1}], vcc")
        e(f"  s_cmp_eq_u32 s{sMode}, 2")
        e(f"  s_cbranch_scc1 LB_e{u}_f")
        e(f"  v_mul_u32_u24 v{gg}, 0x12d, v{gg}")
        e(f"  v_lshlrev_b32 v{gg+1}, 22, v{gg}")
        for k in (0, 2):
            e(f"  v_sub_u32 v{a+k}, v{a+k}, v{gg+1}")
            e(f"  v_sub_u32 v{a+k+1}, v{a+k+1}, v{gg+1}")
            e(f"  v_ashrrev_i32 v{X0}, 22, v{a+k}")
            e(f"  v_add_u32 v{X0}, v{X0}, v{gg}")
            e(f"  v_ashrrev_i32 v{X0}, 10, v{X0}")
            e(f"  v_sub_u32 v{a+k+1}, v{a+k+1}, v{X0}")
        for k in range(4):
            e(f"  v_cvt_f32_i32 v{a+k}, v{a+k}")
        lab(f"LB_e{u}_f")
        e(f"  v_cvt_pk_bf16_f32 v{PK}, v{a}, v{a+1}")
        e(f"  v_cvt_pk_bf16_f32 v{PK+1}, v{a+2}, v{a+3}")
        e(f"  v_mov_b32 v{RP}, v{RBF+u}")
        e("  s_nop 1")
        e(f"  v_mfma_f32_16x16x16_bf16 v[{a}:{a+3}], v[{WDS}:{WDS+1}], v[{PK}:{PK+1}], 0")
        e(f"  v_mfma_f32_16x16x16_bf16 v[{gg}:{gg+3}], v[{WS}:{WS+1}], v[{RP}:{RP+1}], 0")
        e(f"  v_mfma_f32_16x16x16_bf16 v[{rr}:{rr+3}], v[{WR}:{WR+1}], v[{RP}:{RP+1}], 0")
    def tile_stage2(u):
        a, gg = A_(u), G_(u)
        for k in range(4):
            e(f"  v_mul_f32 v{a+k}, v{a+k}, v{gg+k}")
        e(f"  v_cvt_pk_bf16_f32 v{PK}, v{a}, v{a+1}")
        e(f"  v_cvt_pk_bf16_f32 v{PK+1}, v{a+2}, v{a+3}")
        e("  s_nop 1")
        e(f"  v_mfma_f32_16x16x16_bf16 v[{gg}:{gg+3}], v[{WU}:{WU+1}], v[{PK}:{PK+1}], 0")
    def tile_stage3(u):
        a, gg, rr = A_(u), G_(u), R_(u)
        m0, m1 = MR + 2 * u, MR + 2 * u + 1
        e(f"  v_lshlrev_b32 v{a}, 16, v{m0}")
        e(f"  v_and_b32 v{a+1}, 0xffff0000, v{m0}")
        e(f"  v_lshlrev_b32 v{a+2}, 16, v{m1}")
        e(f"  v_and_b32 v{a+3}, 0xffff0000, v{m1}")
        for k in range(4):
            e(f"  v_fmac_f32 v{a+k}, v{gg+k}, v{rr+k}")
        e(f"  v_cvt_pk_bf16_f32 v{m0}, v{a}, v{a+1}")
        e(f"  v_cvt_pk_bf16_f32 v{m1}, v{a+2}, v{a+3}")
        e(f"  s_mov_b32 s81, {u*8192}")
        e(f"  buffer_store_dwordx2 v[{m0}:{m1}], v{t6}, s[28:31], s81 offen{BOUT}")
    NTILE = -(-BINE // 16)
    W6 = NTILE - 96
    def guarded(u, fn, tag):
        if u == 6:
            e(f"  s_cmp_ge_u32 s{sW}, {W6}")
            e(f"  s_cbranch_scc1 LB_skip6{tag}")
        fn(u)
        if u == 6:
            lab(f"LB_skip6{tag}")
    for gi, grp in enumerate(((0, 1, 2, 3), (4, 5, 6))):
        for u in grp:
            guarded(u, tile_reads, "a")
        e("  s_waitcnt lgkmcnt(0)")
        for u in grp:
            guarded(u, tile_stage1, "b")
        e("  s_nop 7")
        for u in grp:
            guarded(u, tile_stage2, "c")
        if gi == 0:
            e("  s_waitcnt vmcnt(0)              ; m rows")
        e("  s_nop 7")
        for u in grp:
            guarded(u, tile_stage3, "d")
    stamp("B", "epilogue done")
    stamp_dump("B", 78, sW)
    e(f"  s_cmp_eq_u32 s{sMode}, 2")
    e("  s_cbranch_scc1 LB_end")
    e(f"  s_cmp_eq_u64 s[{sOv}:{sOv+1}], 0")
    e("  s_cbranch_scc1 LB_noov")
    e(f"  v_mov_b32 v{t3}, {B_FLAG}")
    e(f"  ds_write_b32 v{t3}, v{vOne}")
    lab("LB_noov")
    e("  s_waitcnt lgkmcnt(0)")
    e("  s_barrier")
    e(f"  v_mov_b32 v{t3}, {B_FLAG}")
    e(f"  ds_read_b32 v{t3}, v{t3}")
    e("  s_waitcnt lgkmcnt(0)")
    e(f"  v_readfirstlane_b32 s80, v{t3}")
    e("  s_cmp_eq_u32 s80, 0")
    e("  s_cbranch_scc1 LB_end")
    e("  s_waitcnt vmcnt(0)")
    e("  s_barrier")
    e(f"  s_mov_b32 s{sMode}, 2")
    e("  s_branch LB_start")
    lab("LB_end")
    e("  s_endpgm")

def descriptor(name, vgpr, sgpr):
    e(".p2align 6")
    e(f".amdhsa_kernel {name}")
    e(f"  .amdhsa_next_free_vgpr {vgpr}")
    e(f"  .amdhsa_next_free_sgpr {sgpr}")
    e(f"  .amdhsa_accum_offset {vgpr}")
    e("  .amdhsa_group_segment_fixed_size 0")
    e("  .amdhsa_kernarg_size 112")
    e("  .amdhsa_user_sgpr_count 2")
    e("  .amdhsa_user_sgpr_kernarg_segment_ptr 1")
    e("  .amdhsa_system_sgpr_workgroup_id_x 1")
    e("  .amdhsa_float_denorm_mode_32 3")
    e(".end_amdhsa_kernel")

header = open("standalone__molecular_angular_gemnet__graph.s.ref").read().split("; Override launch")[0]
e(header.rstrip())
for _k in os.environ.get("LIST", "AB"):
    if _k == "A":
        e(f"; @launch kernel={KA} grid=({NCH},1,1) block=(1024,1,1) lds={A_LDS}")
    elif _k == "e":
        e(f"; @launch kernel=empty_kernel grid=(1,1,1) block=(64,1,1) lds=0")
    elif _k == "E":
        e(f"; @launch kernel=empty_kernel grid=(250,1,1) block=(1024,1,1) lds=131072")
    else:
        e(f"; @launch kernel={KB} grid=({NB},1,1) block=(1024,1,1) lds={B_LDS}")
e('.amdgcn_target "amdgcn-amd-amdhsa--gfx950"')
e(".text")
kernel_a()
kernel_b()
if set(os.environ.get("LIST", "")) & set("eE"):
    e(".globl empty_kernel")
    e(".p2align 8")
    e(".type empty_kernel,@function")
    lab("empty_kernel")
    e("  s_endpgm")
e('.section .rodata,"a"')
if set(os.environ.get("LIST", "")) & set("eE"):
    descriptor("empty_kernel", 128, 102)
descriptor(KA, 128, 102)
descriptor(KB, 128, 102)
dst = sys.argv[1] if len(sys.argv) > 1 else "standalone__molecular_angular_gemnet__graph.s"
open(dst, "w").write("\n".join(out) + "\n")
print("wrote", dst, len(out), "lines")
```

```python
import sys, os
DBG = os.environ.get("DBG", "")
ABL = os.environ.get("ABL", "").split(",")
def pol(name, default=""):
    v = os.environ.get(name, default)
    return (" " + v.replace("+", " ")) if v else ""
PF = int(os.environ.get("PF", "0"))
PFLEAD = int(os.environ.get("PFLEAD", "8"))
BARN = int(os.environ.get("BARN", "4"))
SPREAD = int(os.environ.get("SPREAD", "1"))
TOUCH = os.environ.get("TOUCH", "")
EARLYBAR = int(os.environ.get("EARLYBAR", "0"))
BURST = int(os.environ.get("BURST", "0"))
XMAP = int(os.environ.get("XMAP", "1"))
AIN = pol("AIN", "nt"); ATAB = pol("ATAB"); AST = pol("AST", "sc0+sc1"); BREC = pol("BREC"); BOUT = pol("BOUT", "nt"); BM = pol("BM")

KA = "standalone__molecular_angular_gemnet__graph_part_kernel"
KB = "standalone__molecular_angular_gemnet__graph_kernel"

E = 400000
T = 6400000
NWG = int(os.environ.get("NWG", "256"))
NCH = NWG
NB = NWG
UNITS = T // 64
CH = -(-UNITS // NCH) * 64
NBIG = UNITS - (CH // 64 - 1) * NCH if UNITS % NCH else NCH
BINE = -(-(-(-E // NB)) // 4) * 4
TP = CH * NCH
assert T % 64 == 0 and NBIG * CH + (NCH - NBIG) * (CH - 64) == T and 24576 < CH - 64 * (NBIG < NCH) and CH <= 25600
KS = 8

WS_RECA = 256
WS_RECC = WS_RECA + TP * 4
WS_TT = WS_RECA + TP * 6
WS_STATS = WS_TT + NCH * 1024

A_HIST = 0
A_C = 8192
A_A = A_C + -(-CH * 2 // 16) * 16
A_SCR = A_A + -(-CH * 4 // 16) * 16
A_LDS = A_SCR + 128

ROWB = 80
B_FLAG = 130048
B_LDS = 131072

out = []
def e(s=""):
    out.append(s)
def lab(s):
    out.append(s + ":")

DPP = "row_mask:0xf bank_mask:0xf"

def srd(reg, lo, hi, size, stride=0):
    e(f"  s_mov_b32 s{reg}, s{lo}")
    e(f"  s_and_b32 s{reg+1}, s{hi}, 0xffff")
    if stride:
        e(f"  s_or_b32 s{reg+1}, s{reg+1}, {stride << 16:#x}")
    e(f"  s_mov_b32 s{reg+2}, {size}")
    e(f"  s_mov_b32 s{reg+3}, 0x20000")

def srd_off(reg, lo, hi, off_sreg, size, const=0, stride=0):
    e(f"  s_add_u32 s{reg}, s{lo}, s{off_sreg}")
    e(f"  s_addc_u32 s{reg+1}, s{hi}, 0")
    if const:
        e(f"  s_add_u32 s{reg}, s{reg}, {const}")
        e(f"  s_addc_u32 s{reg+1}, s{reg+1}, 0")
    e(f"  s_and_b32 s{reg+1}, s{reg+1}, 0xffff")
    if stride:
        e(f"  s_or_b32 s{reg+1}, s{reg+1}, {stride << 16:#x}")
    e(f"  s_mov_b32 s{reg+2}, {size}")
    e(f"  s_mov_b32 s{reg+3}, 0x20000")

STAMP = os.environ.get("STAMP", "")
stamp_n = [0]
def stamp(kern, name):
    if STAMP != kern:
        return
    k = stamp_n[0]; stamp_n[0] += 1
    assert k < 16
    e(f"  s_memrealtime s[84:85]")
    e("  s_waitcnt lgkmcnt(0)")
    e(f"  s_mov_b32 s{86+k}, s84")
    if k == 0:
        e("  s_memtime s[84:85]")
        e("  s_waitcnt lgkmcnt(0)")
        e("  s_mov_b32 s101, s84")
    print("stamp", k, name)
def stamp_dump(kern, wsreg, wavereg):
    if STAMP != kern:
        return
    e("  s_memtime s[84:85]")
    e("  s_waitcnt lgkmcnt(0)")
    e("  s_sub_u32 s101, s84, s101")
    e(f"  s_cmp_eq_u32 s{wavereg}, {int(os.environ.get('STAMPW', '0'))}")
    e(f"  s_cbranch_scc0 L{kern}_nodump")
    e(f"  s_lshl_b32 s84, s2, 6")
    e(f"  s_add_u32 s84, s84, {128<<20}")
    e(f"  s_add_u32 s102-18, s{wsreg}, s84".replace("s102-18", "s84"))
    e(f"  s_addc_u32 s85, s{wsreg+1}, 0")
    e("  v_mov_b32 v60, 0")
    for k in range(16):
        e(f"  v_mov_b32 v61, s{86+k}")
        e(f"  global_store_dword v60, v61, s[84:85] offset:{4*k}")
    lab(f"L{kern}_nodump")

def wave_scan_add(v):
    for sh in (1, 2, 4, 8):
        e("  s_nop 1")
        e(f"  v_add_u32_dpp v{v}, v{v}, v{v} row_shr:{sh} {DPP}")
    e("  s_nop 1")
    e(f"  v_add_u32_dpp v{v}, v{v}, v{v} row_bcast:15 row_mask:0xa bank_mask:0xf")
    e("  s_nop 1")
    e(f"  v_add_u32_dpp v{v}, v{v}, v{v} row_bcast:31 row_mask:0xc bank_mask:0xf")

def wave_max(vs):
    steps = [f"row_shr:{sh} {DPP}" for sh in (1, 2, 4, 8)] + \
            ["row_bcast:15 row_mask:0xa bank_mask:0xf", "row_bcast:31 row_mask:0xc bank_mask:0xf"]
    for st in steps:
        e("  s_nop 1")
        for v in vs:
            e(f"  v_max_u32_dpp v{v}, v{v}, v{v} {st}")

class VmQ:
    def __init__(self):
        self.q = []
    def issue(self, tag):
        self.q.append(tag)
        assert len(self.q) <= 63, "vmcnt overflow"
    def wait(self, tag):
        if tag not in self.q:
            return
        idx = max(i for i, t in enumerate(self.q) if t == tag)
        n = len(self.q) - 1 - idx
        assert n <= 63
        e(f"  s_waitcnt vmcnt({n})")
        self.q = self.q[idx + 1:]
    def drain(self):
        e("  s_waitcnt vmcnt(0)")
        self.q = []

def kernel_a():
    I0, O0, AN0, RK0, TB0 = 8, 34, 60, 74, 100
    vOne, vF = 2, 3
    t0, t1, t2, t3, t4, t5 = 116, 117, 118, 119, 120, 121
    e(f".globl {KA}")
    e(".p2align 8")
    e(f".type {KA},@function")
    lab(KA)
    e(f"  s_cmp_ge_u32 s2, {NCH}")
    e("  s_cbranch_scc1 LA_end")
    e("  s_load_dwordx4 s[4:7], s[0:1], 0")
    e("  s_load_dwordx2 s[8:9], s[0:1], 16      ; idx_out")
    e("  s_load_dwordx2 s[10:11], s[0:1], 32    ; angle")
    e("  s_load_dwordx2 s[12:13], s[0:1], 48    ; ang_freq")
    e("  s_load_dwordx2 s[14:15], s[0:1], 104   ; ws")
    e("  v_lshrrev_b32 v1, 6, v0")
    e("  v_lshlrev_b32 v4, 4, v0                ; t*16")
    e("  v_readfirstlane_b32 s50, v1")
    e("  v_lshlrev_b32 v5, 3, v0                ; t*8")
    e("  v_lshlrev_b32 v6, 2, v0                ; t*4")
    e("  v_lshlrev_b32 v7, 1, v0                ; t*2")
    e(f"  v_mov_b32 v{vOne}, 1")
    e(f"  v_mov_b32 v{t0}, 0")
    e(f"  v_mov_b32 v{t1}, 0")
    e(f"  s_mul_i32 s46, s2, {CH//64 - 1 if NBIG < NCH else CH//64}")
    if NBIG < NCH:
        e(f"  s_min_u32 s47, s2, {NBIG}")
        e("  s_add_u32 s46, s46, s47")
    e("  s_lshl_b32 s48, s46, 8")
    e("  s_lshl_b32 s49, s46, 7")
    e(f"  s_mov_b32 s59, {CH - 64 if NBIG < NCH else CH}")
    if NBIG < NCH:
        e(f"  s_cmp_lt_u32 s2, {NBIG}")
        e(f"  s_cselect_b32 s59, {CH}, s59")
    e(f"  s_mul_i32 s64, s2, {CH*4}")
    e(f"  s_mul_i32 s65, s2, {CH*2}")
    e("  s_lshl_b32 s51, s2, 10")
    e("  s_lshl_b32 s52, s2, 3")
    e("  s_waitcnt lgkmcnt(0)")
    srd_off(16, 6, 7, 48, CH * 4)
    srd_off(20, 8, 9, 48, CH * 4)
    srd_off(24, 10, 11, 49, CH * 2)
    e("  s_lshl_b32 s18, s59, 2")
    e("  s_lshl_b32 s22, s59, 2")
    e("  s_lshl_b32 s26, s59, 1")
    vm = VmQ()
    APIPE = int(os.environ.get("APIPE", "7"))
    e(f"  ds_write_b64 v5, v[{t0}:{t1}] offset:{A_HIST}")
    e(f"  v_and_b32 v{t2}, 15, v0")
    e(f"  v_lshlrev_b32 v{t2}, 3, v{t2}")
    e(f"  v_add_u32 v{t2}, {A_SCR}, v{t2}")
    e(f"  ds_write_b64 v{t2}, v[{t0}:{t1}]")
    e(f"  global_load_ushort v{vF}, v{t0}, s[12:13]")
    vm.issue("F")
    stamp("A", "start")
    def loads(u):
        e(f"  s_mov_b32 s53, {u*16384}")
        e(f"  s_mov_b32 s54, {u*8192}")
        if u < 6:
            e(f"  buffer_load_dwordx4 v[{I0+4*u}:{I0+4*u+3}], v4, s[16:19], s53 offen{AIN}")
            e(f"  buffer_load_dwordx4 v[{O0+4*u}:{O0+4*u+3}], v4, s[20:23], s53 offen{AIN}")
            e(f"  buffer_load_dwordx2 v[{AN0+2*u}:{AN0+2*u+1}], v5, s[24:27], s54 offen{AIN}")
        else:
            e(f"  buffer_load_dword v{I0+24}, v6, s[16:19], s53 offen{AIN}")
            e(f"  buffer_load_dword v{O0+24}, v6, s[20:23], s53 offen{AIN}")
            e(f"  buffer_load_ushort v{AN0+12}, v7, s[24:27], s54 offen{AIN}")
        for _ in range(3):
            vm.issue(f"L{u}")
    APRIO = int(os.environ.get("APRIO", "1"))
    e("  s_waitcnt lgkmcnt(0)")
    e("  s_barrier")
    if APRIO:
        e("  s_setprio 3")
    for u in range(min(APIPE, 7)):
        loads(u)
    if APRIO:
        e("  s_setprio 0")
    e(f"  s_mul_i32 s47, s2, {BINE*32}")
    srd_off(28, 4, 5, 47, BINE * 32)
    e(f"  s_sub_u32 s47, {E*32}, s47")
    e(f"  s_min_u32 s30, s47, {BINE*32}")
    srd_off(32, 14, 15, 64, CH * 4, WS_RECA)
    srd_off(36, 14, 15, 65, CH * 2, WS_RECC)
    e("  s_lshl_b32 s34, s59, 2")
    e("  s_lshl_b32 s38, s59, 1")
    e("  s_sub_u32 s59, s59, 24576")
    srd_off(40, 14, 15, 51, 1024, WS_TT)
    srd_off(44, 14, 15, 52, 8, WS_STATS)
    assert (((2**32 + BINE - 1)//BINE) * BINE - 2**32) * E < 2**32
    e(f"  s_mov_b32 s55, {(2**32 + BINE - 1)//BINE}")
    e(f"  s_mov_b32 s56, {(2**32 * KS)//E - 1}")
    e(f"  s_mov_b32 s57, {-BINE}")

    def rec(r):
        I, O, R = I0 + r, O0 + r, RK0 + r
        e(f"  v_mul_hi_u32_u24 v{t0}, s55, v{O}           ; bin")
        e(f"  v_mul_hi_u32_u24 v{t1}, s56, v{I}           ; i range")
        e(f"  v_mad_i32_i24 v{t2}, v{t0}, s57, v{O}       ; o local")
        e(f"  v_lshlrev_b32 v{t1}, 2, v{t1}")
        e(f"  v_lshl_add_u32 v{O}, v{t0}, 5, v{t1}        ; key*4")
        e(f"  v_lshl_or_b32 v{I}, v{t2}, 19, v{I}")
        e(f"  ds_add_rtn_u32 v{R}, v{O}, v{vOne} offset:{A_HIST}")
        e(f"  v_not_b32 v{I}, v{I}")

    def cospair(a):
        x, y = t3, t4
        e(f"  v_lshlrev_b32 v{x}, 16, v{a}")
        e(f"  v_and_b32 v{y}, 0xffff0000, v{a}")
        e(f"  v_mul_f32 v{x}, v{vF}, v{x}")
        e(f"  v_mul_f32 v{y}, v{vF}, v{y}")
        e(f"  v_cvt_pk_bf16_f32 v{t5}, v{x}, v{y}")
        e(f"  v_lshlrev_b32 v{x}, 16, v{t5}")
        e(f"  v_and_b32 v{y}, 0xffff0000, v{t5}")
        e(f"  v_mul_f32 v{x}, 0.15915494, v{x}")
        e(f"  v_mul_f32 v{y}, 0.15915494, v{y}")
        e(f"  v_fract_f32 v{x}, v{x}")
        e(f"  v_fract_f32 v{y}, v{y}")
        e(f"  v_cos_f32 v{x}, v{x}")
        e(f"  v_cos_f32 v{y}, v{y}")
        e("  s_nop 0")
        e(f"  v_cvt_pk_bf16_f32 v{a}, v{x}, v{y}")

    if "A" in TOUCH:
        e(f"  v_mov_b32 v{t3}, 0")
        for r in (32, 36, 40, 44):
            e(f"  buffer_load_dword v127, v{t3}, s[{r}:{r+3}], 0 offen")
            vm.issue("touch")
    stamp("A", "loads issued")
    for u in range(7):
        vm.wait(f"L{u}")
        if u in (0, 3, 6):
            stamp("A", f"group {u} arrived")
        if u + APIPE < 7:
            loads(u + APIPE)
        if u == 0:
            e(f"  v_lshlrev_b32 v{vF}, 16, v{vF}")
        if u < 6:
            for r in range(4):
                rec(4 * u + r)
            cospair(AN0 + 2 * u)
            cospair(AN0 + 2 * u + 1)
        else:
            e(f"  v_cmp_gt_u32 vcc, s59, v0")
            e("  s_and_saveexec_b64 s[62:63], vcc")
            e("  s_cbranch_execz LA_r24")
            rec(24)
            cospair(AN0 + 12)
            lab("LA_r24")
            e("  s_mov_b64 exec, s[62:63]")
    for u in range(4):
        e(f"  s_mov_b32 s53, {u*16384}")
        e(f"  buffer_load_dwordx4 v[{TB0+4*u}:{TB0+4*u+3}], v4, s[28:31], s53 offen{ATAB}")
    e("  s_waitcnt lgkmcnt(0)")
    e("  s_barrier")
    stamp("A", "hist barrier")
    e(f"  ds_read_b64 v[{t0}:{t1}], v5 offset:{A_HIST}")
    e("  s_waitcnt lgkmcnt(0)")
    e(f"  v_add_u32 v{t2}, v{t0}, v{t1}")
    e(f"  v_mov_b32 v{t3}, v{t2}")
    wave_scan_add(t3)
    e(f"  s_lshl_b32 s58, s50, 2")
    e(f"  s_add_u32 s58, s58, {A_SCR}")
    e(f"  v_mov_b32 v{t4}, s58")
    e("  s_mov_b32 exec_lo, 0")
    e("  s_mov_b32 exec_hi, 0x80000000")
    e(f"  ds_write_b32 v{t4}, v{t3}")
    e("  s_mov_b64 exec, -1")
    e("  s_waitcnt lgkmcnt(0)")
    e("  s_barrier")
    e(f"  v_and_b32 v{t4}, 15, v0")
    e(f"  v_lshlrev_b32 v{t4}, 2, v{t4}")
    e(f"  v_add_u32 v{t4}, {A_SCR}, v{t4}")
    e(f"  ds_read_b32 v{t4}, v{t4}")
    e("  s_waitcnt lgkmcnt(0)")
    e(f"  v_mov_b32 v{t5}, v{t4}")
    for sh in (1, 2, 4, 8):
        e("  s_nop 1")
        e(f"  v_add_u32_dpp v{t5}, v{t5}, v{t5} row_shr:{sh} {DPP}")
    e(f"  v_sub_u32 v{t5}, v{t5}, v{t4}")
    e("  s_nop 0")
    e(f"  v_readlane_b32 s58, v{t5}, s50")
    e(f"  v_sub_u32 v{t3}, v{t3}, v{t2}")
    e("  s_nop 0")
    e(f"  v_add_u32 v{t2}, s58, v{t3}         ; start0")
    e(f"  v_add_u32 v{t3}, v{t2}, v{t0}       ; start1")
    e(f"  ds_write_b64 v5, v[{t2}:{t3}] offset:{A_HIST}")
    e(f"  v_and_b32 v{t4}, 3, v0")
    e(f"  v_cmp_eq_u32 vcc, 0, v{t4}")
    e("  s_and_saveexec_b64 s[60:61], vcc")
    e(f"  buffer_store_dword v{t2}, v0, s[40:43], 0 offen")
    e("  s_mov_b64 exec, s[60:61]")
    e("  s_waitcnt lgkmcnt(0)")
    e("  s_barrier")
    stamp("A", "scan done")
    groups = [range(0, 8), range(8, 16), range(16, 24), range(24, 25)]
    for g in groups:
        if g[0] == 24:
            e(f"  v_cmp_gt_u32 vcc, s59, v0")
            e("  s_and_saveexec_b64 s[62:63], vcc")
            e("  s_cbranch_execz LA_s24")
        for r in g:
            e(f"  ds_read_b32 v{O0+r}, v{O0+r} offset:{A_HIST}")
        e("  s_waitcnt lgkmcnt(0)")
        for r in g:
            e(f"  v_add_u32 v{O0+r}, v{O0+r}, v{RK0+r}")
            e(f"  v_lshlrev_b32 v{RK0+r}, 2, v{O0+r}")
            e(f"  v_lshlrev_b32 v{O0+r}, 1, v{O0+r}")
            e(f"  ds_write_b32 v{RK0+r}, v{I0+r} offset:{A_A}")
            op = "ds_write_b16" if r % 2 == 0 else "ds_write_b16_d16_hi"
            e(f"  {op} v{O0+r}, v{AN0+r//2} offset:{A_C}")
        if g[0] == 24:
            lab("LA_s24")
            e("  s_mov_b64 exec, s[62:63]")
    stamp("A", "scatter issued")
    gM, gR = 122, 123
    e(f"  v_mov_b32 v{gM}, 0")
    e(f"  v_mov_b32 v{gR}, 0")
    e("  s_mov_b32 s58, 0x7fff7fff")
    e("  s_waitcnt vmcnt(0)")
    for u in range(4):
        b = TB0 + 4 * u
        for k in range(4):
            e(f"  v_and_b32 v{b+k}, s58, v{b+k}")
        e(f"  v_pk_max_u16 v{b}, v{b}, v{b+1}")
        e(f"  v_pk_max_u16 v{b+2}, v{b+2}, v{b+3}")
        e(f"  v_pk_max_u16 v{b}, v{b}, v{b+2}")
        e(f"  v_lshrrev_b32 v{b+1}, 16, v{b}")
        e(f"  v_and_b32 v{b}, 0xffff, v{b}")
        e(f"  v_max_u32 v{b}, v{b}, v{b+1}")
        e("  s_nop 1")
        e(f"  v_max_u32_dpp v{b}, v{b}, v{b} quad_perm:[1,0,3,2] {DPP}")
        e(f"  v_max_u32 v{gM}, v{gM}, v{b}")
        e(f"  v_sub_u32 v{b}, 0x8000, v{b}")
        e(f"  v_and_b32 v{b}, 0x7fff, v{b}")
        e(f"  v_max_u32 v{gR}, v{gR}, v{b}")
    wave_max([gM, gR])
    e(f"  v_mov_b32 v{t4}, {A_SCR + 64}")
    e("  s_mov_b32 exec_lo, 0")
    e("  s_mov_b32 exec_hi, 0x80000000")
    e(f"  ds_max_u32 v{t4}, v{gM}")
    e(f"  ds_max_u32 v{t4}, v{gR} offset:4")
    e("  s_mov_b64 exec, -1")
    e("  s_waitcnt lgkmcnt(0)")
    e("  s_barrier")
    stamp("A", "scatter barrier")
    d = 8
    for u in range(6):
        e(f"  v_add_u32 v{t0}, {u*16384}, v4")
        e(f"  ds_read_b128 v[{d+4*u}:{d+4*u+3}], v{t0} offset:{A_A}")
    for u in range(3):
        e(f"  v_add_u32 v{t0}, {u*16384}, v4")
        e(f"  ds_read_b128 v[{d+24+4*u}:{d+24+4*u+3}], v{t0} offset:{A_C}")
    e(f"  v_mov_b32 v{t4}, {A_SCR + 64}")
    e(f"  ds_read_b64 v[{t2}:{t3}], v{t4}")
    for u in range(6):
        e(f"  s_mov_b32 s53, {u*16384}")
        e(f"  s_waitcnt lgkmcnt({9-u})")
        e(f"  buffer_store_dwordx4 v[{d+4*u}:{d+4*u+3}], v4, s[32:35], s53 offen{AST}")
    for u in range(3):
        e(f"  s_mov_b32 s53, {u*16384}")
        e(f"  s_waitcnt lgkmcnt({3-u})")
        e(f"  buffer_store_dwordx4 v[{d+24+4*u}:{d+24+4*u+3}], v4, s[36:39], s53 offen{AST}")
    stamp("A", "stores issued")
    if STAMP == "A":
        e("  s_waitcnt vmcnt(0)")
    stamp("A", "stores done")
    stamp_dump("A", 14, 50)
    e(f"  s_cmp_lt_u32 s50, {-(-(CH*4 - 6*16384) // 1024)}")
    e("  s_cbranch_scc0 LA_t1")
    e(f"  v_add_u32 v{t0}, {6*16384}, v4")
    e(f"  ds_read_b128 v[60:63], v{t0} offset:{A_A}")
    e(f"  s_mov_b32 s53, {6*16384}")
    e("  s_waitcnt lgkmcnt(0)")
    e(f"  buffer_store_dwordx4 v[60:63], v4, s[32:35], s53 offen{AST}")
    lab("LA_t1")
    e(f"  s_cmp_lt_u32 s50, {-(-(CH*2 - 3*16384) // 1024)}")
    e("  s_cbranch_scc0 LA_t2")
    e(f"  v_add_u32 v{t0}, {3*16384}, v4")
    e(f"  ds_read_b128 v[64:67], v{t0} offset:{A_C}")
    e(f"  s_mov_b32 s53, {3*16384}")
    e("  s_waitcnt lgkmcnt(0)")
    e(f"  buffer_store_dwordx4 v[64:67], v4, s[36:39], s53 offen{AST}")
    lab("LA_t2")
    e("  s_cmp_eq_u32 s50, 15")
    e("  s_cbranch_scc0 LA_end")
    e("  s_waitcnt lgkmcnt(0)")
    e(f"  v_mov_b32 v{t0}, 0")
    e("  s_mov_b32 exec_lo, 1")
    e("  s_mov_b32 exec_hi, 0")
    e(f"  buffer_store_dwordx2 v[{t2}:{t3}], v{t0}, s[44:47], 0 offen")
    lab("LA_end")
    e("  s_endpgm")

def kernel_b():
    vH8, vIA, vIB, vCB, vOne = 1, 2, 4, 6, 7
    G0 = 8
    OA, CH_ = 40, 44
    P0 = 48
    t0, t1, t2, t3, t4, t5, t6, t7, t8 = range(56, 65)
    BS, LN = 65, 69
    XZ = 65
    CU = 73
    vL16 = 77
    WDS = 78
    RCP, RA0 = 80, 96
    def RA(s, j): return RA0 + 4 * j + s
    def RCp(s, j): return RCP + 4 * (j // 2) + s
    RBF, CEN, MR = 96, 70, 110
    WTR = [110, 111, 112, 113, 114, 115, 71, 72, 73, 74, 75, 76]
    WD, WU, WS, WR = 80, 82, 84, 86
    sW, sMag, sSc, sInv, sMode, sMsk, sN80, sTail, sPerm = 50, 53, 54, 55, 56, 57, 58, 59, 60
    sOv = 66
    vm = VmQ()
    e(f".globl {KB}")
    e(".p2align 8")
    e(f".type {KB},@function")
    lab(KB)
    e(f"  s_cmp_ge_u32 s2, {NB}")
    e("  s_cbranch_scc1 LB_end")
    if XMAP:
        e("  s_and_b32 s3, s2, 7")
        e("  s_lshr_b32 s2, s2, 3")
        e(f"  s_mul_i32 s4, s3, {NB//8}")
        if NB % 8:
            e(f"  s_min_u32 s3, s3, {NB%8}")
            e("  s_add_u32 s2, s2, s3")
        e("  s_add_u32 s2, s2, s4")
    e("  s_load_dwordx2 s[78:79], s[0:1], 104    ; ws")
    e("  s_load_dwordx2 s[68:69], s[0:1], 0      ; m")
    e("  s_load_dwordx2 s[70:71], s[0:1], 24     ; dist")
    e("  s_load_dwordx2 s[40:41], s[0:1], 40     ; centers")
    e("  s_load_dwordx4 s[44:47], s[0:1], 56")
    e("  s_load_dwordx4 s[72:75], s[0:1], 72")
    e("  s_load_dwordx2 s[76:77], s[0:1], 88     ; out")
    e("  v_lshrrev_b32 v8, 6, v0")
    e(f"  v_and_b32 v{vL16}, 15, v0")
    e(f"  v_readfirstlane_b32 s{sW}, v8")
    e(f"  v_and_b32 v9, 1, v0")
    e(f"  v_lshlrev_b32 v{vH8}, 3, v9")
    e(f"  v_lshlrev_b32 v{vIA+1}, 4, v9")
    e(f"  v_lshlrev_b32 v{vIB+1}, 4, v9")
    e(f"  v_mov_b32 v{vCB}, {2047*ROWB}")
    e(f"  v_mov_b32 v{vOne}, 1")
    e(f"  s_mul_i32 s80, s2, {BINE*32}")
    e(f"  s_mul_i32 s81, s2, {BINE*2}")
    e(f"  s_mov_b32 s{sMode}, 0")
    e(f"  s_mov_b32 s{sMsk}, 0x7ffff")
    e(f"  s_mov_b32 s{sN80}, {-ROWB}")
    e(f"  s_mov_b32 s{sPerm}, 0x05040100")
    e("  s_waitcnt lgkmcnt(0)")
    e(f"  s_add_u32 s82, s78, {WS_TT}")
    e("  s_addc_u32 s83, s79, 0")
    srd(16, 82, 83, NCH * 1024)
    e(f"  s_add_u32 s82, s78, {WS_STATS}")
    e("  s_addc_u32 s83, s79, 0")
    srd(20, 82, 83, NCH * 8)
    e(f"  s_add_u32 s82, s78, {WS_RECA - 4}")
    e("  s_addc_u32 s83, s79, 0")
    srd(4, 82, 83, TP + 1, 4)
    e(f"  s_add_u32 s82, s78, {WS_RECC - 2}")
    e("  s_addc_u32 s83, s79, 0")
    srd(8, 82, 83, TP + 1, 2)
    srd(12, 68, 69, E, 32)
    srd_off(24, 68, 69, 80, BINE * 32)
    srd_off(28, 76, 77, 80, BINE * 32)
    srd_off(32, 70, 71, 81, BINE * 2)
    e(f"  s_sub_u32 s82, {E*32}, s80")
    e(f"  s_min_u32 s26, s82, {BINE*32}")
    e("  s_mov_b32 s30, s26")
    e("  s_lshr_b32 s34, s26, 4")
    lab("LB_start")
    stamp("B", "start")
    ST0 = 48
    def run_table_loads():
        g = t0
        e(f"  v_and_b32 v{t1}, 63, v0")
        e(f"  v_lshrrev_b32 v{g}, 4, v{t1}            ; g = lane>>4")
        e(f"  s_lshl_b32 s80, s{sW}, 4")
        e(f"  v_add_u32 v{t1}, s80, v{g}              ; 16w+g")
        e(f"  s_lshl_b32 s81, s2, 2")
        e(f"  v_lshlrev_b32 v{t2}, 10, v{t1}")
        e(f"  v_add_u32 v{t2}, s81, v{t2}")
        for s in range(4):
            e(f"  v_add_u32 v{t3}, {s*4096}, v{t2}")
            e(f"  buffer_load_dwordx2 v[{G0+2*s}:{G0+2*s+1}], v{t3}, s[16:19], 0 offen")
            vm.issue("T")
    rp_n = [0]
    def run_params():
        rp_n[0] += 1
        e(f"  s_mov_b32 s80, {CH}")
        for s in range(4):
            e(f"  v_add_u32 v{t3}, {4*s}, v{t1}")
            e(f"  v_mad_u32_u24 v{t3}, v{t3}, s80, 1")
            e(f"  v_add_u32 v{BS+s}, v{t3}, v{G0+2*s}")
            if NB == 256:
                e(f"  s_cmp_eq_u32 s2, {NB-1}")
                e(f"  s_cbranch_scc0 LB_rp{rp_n[0]}_{s}")
                e(f"  v_add_u32 v{t4}, {4*s}, v{t1}")
                e(f"  v_cmp_gt_u32 vcc, {NBIG}, v{t4}")
                e(f"  v_mov_b32 v{t4}, {CH}")
                e(f"  v_mov_b32 v{G0+2*s+1}, {CH-64}")
                e(f"  v_cndmask_b32 v{G0+2*s+1}, v{G0+2*s+1}, v{t4}, vcc")
                lab(f"LB_rp{rp_n[0]}_{s}")
            e(f"  v_sub_u32 v{LN+s}, v{G0+2*s+1}, v{G0+2*s}")
    run_table_loads()
    e(f"  v_and_b32 v{t3}, 63, v0")
    e(f"  v_lshlrev_b32 v{t3}, 3, v{t3}")
    for s in range(4):
        e(f"  buffer_load_dwordx2 v[{ST0+2*s}:{ST0+2*s+1}], v{t3}, s[20:23], 0 offen offset:{s*512}")
        vm.issue("ST")
    if "B" in TOUCH:
        e(f"  v_mov_b32 v{t3}, 0")
        for r in (28,):
            e(f"  buffer_load_dword v79, v{t3}, s[{r}:{r+3}], 0 offen")
            vm.issue("touch")
    ZR = 40
    for k in range(4):
        e(f"  v_mov_b32 v{ZR+k}, 0")
    e(f"  v_lshlrev_b32 v{t3}, 4, v0")
    for u in range(8):
        if u == 4:
            e(f"  v_add_u32 v{t3}, 0x10000, v{t3}")
        e(f"  ds_write_b128 v{t3}, v[{ZR}:{ZR+3}] offset:{(u%4)*16384}")
    vm.wait("T")
    stamp("B", "T arrived")
    run_params()
    e(f"  v_max_u32 v{t3}, v{LN}, v{LN+1}")
    e(f"  v_max3_u32 v{t3}, v{t3}, v{LN+2}, v{LN+3}")
    e(f"  v_cmp_lt_u32 vcc, 0x80, v{t3}")
    e(f"  s_cmp_lg_u64 vcc, 0")
    e(f"  s_cselect_b32 s{sTail}, 1, 0")
    def LZ(s, j): return RCp(s, j) if j % 2 == 0 else G0 + 8 + 4 * (j // 2) + s
    if EARLYBAR:
        e("  s_waitcnt lgkmcnt(0)")
        e("  s_barrier")
    for s in range(4):
        lp, lo, hi = t2, t4, t6
        e(f"  v_min_u32 v{lp}, 0x80, v{LN+s}          ; len'")
        e(f"  v_mov_b32 v{lo}, v{vL16}")
        e(f"  v_lshlrev_b32 v{lp}, 16, v{lp}")
        def msk(j):
            return f"s[{84+2*j}:{85+2*j}]" if (BURST and not STAMP) else "vcc"
        def lds(j):
            e(f"  s_mov_b64 exec, {msk(j)}")
            e(f"  buffer_load_ushort v{LZ(s,j)}, v{RA(s,j)}, s[8:11], 0 idxen{BREC}")
            vm.issue(f"C{s}_{j}")
            e(f"  buffer_load_dword v{RA(s,j)}, v{RA(s,j)}, s[4:7], 0 idxen{BREC}")
            vm.issue(f"A{s}_{j}")
        for j in range(8):
            e(f"  v_mul_hi_u32_u24 v{hi}, {(j+1) << 13:#x}, v{lp}     ; ((j+1)*len') >> 3")
            e(f"  v_cmp_lt_u32 {msk(j)}, v{lo}, v{hi}")
            e(f"  v_add_u32 v{t7}, v{BS+s}, v{lo}")
            e(f"  v_add_u32 v{lo}, v{hi}, v{vL16}")
            e(f"  v_cndmask_b32 v{RA(s,j)}, 0, v{t7}, {msk(j)}")
            if not (BURST and not STAMP):
                lds(j)
                e("  s_mov_b64 exec, -1")
        if BURST and not STAMP:
            for j in range(8):
                lds(j)
            e("  s_mov_b64 exec, -1")
        if s == 2:
            vm.wait("A0_7")
    stamp("B", "rec loads issued")
    a, b = ST0, ST0 + 1
    e(f"  v_max3_u32 v{a}, v{ST0}, v{ST0+2}, v{ST0+4}")
    e(f"  v_max3_u32 v{b}, v{ST0+1}, v{ST0+3}, v{ST0+5}")
    e(f"  v_max_u32 v{a}, v{a}, v{ST0+6}")
    e(f"  v_max_u32 v{b}, v{b}, v{ST0+7}")
    wave_max([a, b])
    e("  s_nop 0")
    e(f"  v_readlane_b32 s80, v{a}, 63")
    e(f"  v_readlane_b32 s81, v{b}, 63")
    e("  s_nop 0")
    e("  s_lshr_b32 s82, s80, 7")
    e("  s_sub_u32 s81, 0x8000, s81")
    e("  s_lshr_b32 s81, s81, 7")
    e("  s_sub_u32 s83, s82, s81")
    e(f"  s_cmp_eq_u32 s{sMode}, 2")
    e("  s_cbranch_scc1 LB_float")
    e("  s_cmp_ge_u32 s80, 0x7f80")
    e("  s_cbranch_scc1 LB_float")
    e("  s_cmp_lt_u32 s82, 32")
    e("  s_cbranch_scc1 LB_float")
    e("  s_cmp_gt_u32 s82, 200")
    e("  s_cbranch_scc1 LB_float")
    e("  s_cmp_gt_i32 s83, 10")
    e("  s_cbranch_scc1 LB_float")
    e(f"  s_mov_b32 s{sMag}, 0x4b400000")
    e("  s_sub_u32 s83, 275, s82")
    e(f"  s_lshl_b32 s{sSc}, s83, 23")
    e("  s_sub_u32 s83, s82, 21")
    e(f"  s_lshl_b32 s{sInv}, s83, 23")
    e("  s_branch LB_fast")
    lab("LB_float")
    e(f"  s_mov_b32 s{sMode}, 2")
    e(f"  s_mov_b32 s{sMag}, 0")
    e(f"  s_mov_b32 s{sSc}, 1.0")
    e(f"  s_mov_b32 s{sInv}, 1.0")
    e(f"  s_mov_b32 s{sTail}, 1")
    e("  s_waitcnt vmcnt(0) lgkmcnt(0)")
    e("  s_barrier")
    e("  s_branch LB_generic")
    lab("LB_fast")
    for s in range(4):
        for jj in range(4):
            vm.wait(f"C{s}_{2*jj+1}")
            e(f"  v_perm_b32 v{RCp(s,2*jj)}, v{LZ(s,2*jj+1)}, v{RCp(s,2*jj)}, s{sPerm}")
    vm.drain()
    stamp("B", "records arrived")

    def dec_idx(ra, dst):
        e(f"  v_bfi_b32 v{dst}, v{ra}, 0, s{sMsk}")
    def dec_rest(ra, rc, hi_half, s):
        e(f"  v_bfe_u32 v{t7}, v{ra}, 19, 11")
        if hi_half:
            e(f"  v_and_b32 v{t8}, 0xffff0000, v{rc}")
        else:
            e(f"  v_lshlrev_b32 v{t8}, 16, v{rc}")
        e(f"  v_mad_i32_i24 v{OA+s}, v{t7}, s{sN80}, v{vCB}")
        e(f"  v_mul_f32 v{CH_+s}, s{sSc}, v{t8}")
        e(f"  ds_add_u32 v{OA+s}, v{vOne} offset:64")
    def gather(s, h, src, tag):
        g0 = G0 + 8 * s + 4 * h
        vi = vIA if h == 0 else vIB
        qp = "[0,0,2,2]" if h == 0 else "[1,1,3,3]"
        e(f"  v_mov_b32_dpp v{vi}, v{src} quad_perm:{qp} {DPP}")
        if "nogather" in ABL:
            e(f"  v_mov_b32 v{vi}, -1")
        e(f"  buffer_load_dwordx4 v[{g0}:{g0+3}], v[{vi}:{vi+1}], s[12:15], 0 idxen offen")
        vm.issue(tag)
    def consume(s, h, isfloat):
        qp = "[0,0,2,2]" if h == 0 else "[1,1,3,3]"
        g0 = G0 + 8 * s + 4 * h
        ad, ch, cl = t0 + 3 * h, t1 + 3 * h, t2 + 3 * h
        e(f"  v_mov_b32_dpp v{ch}, v{CH_+s} quad_perm:{qp} {DPP}")
        e(f"  v_add_u32_dpp v{ad}, v{OA+s}, v{vH8} quad_perm:{qp} {DPP}")
        e(f"  v_lshrrev_b32 v{cl}, 16, v{ch}")
        for k in range(4):
            e(f"  v_dot2_f32_bf16 v{P0+2*k+1}, v{g0+k}, v{ch}, s{sMag}")
            e(f"  v_dot2_f32_bf16 v{P0+2*k}, v{g0+k}, v{cl}, s{sMag}")
            if "noatom" in ABL:
                continue
            if isfloat:
                e(f"  ds_add_f32 v{ad}, v{P0+2*k} offset:{16*k}")
                e(f"  ds_add_f32 v{ad}, v{P0+2*k+1} offset:{16*k+4}")
            else:
                e(f"  ds_add_u64 v{ad}, v[{P0+2*k}:{P0+2*k+1}] offset:{16*k}")
    if not EARLYBAR:
        e("  s_waitcnt lgkmcnt(0)")
        e("  s_barrier")
    stamp("B", "after barrier")
    tI = t6
    for s in range(4):
        dec_idx(RA(s, 0), tI)
        dec_rest(RA(s, 0), RCp(s, 0), False, s)
        gather(s, 0, tI, f"g0_{s}_0")
        gather(s, 1, tI, f"g0_{s}_1")

    def epi_loads1():
        gg, nn = t7, vL16
        e(f"  v_and_b32 v{t8}, 63, v0")
        e(f"  v_lshrrev_b32 v{gg}, 4, v{t8}")
        e(f"  v_lshlrev_b32 v{t8}, 6, v{gg}")
        e(f"  v_lshl_add_u32 v{t8}, v{nn}, 1, v{t8}     ; 64g + 2n")
        for k, off in enumerate((0, 32, 256, 288)):
            e(f"  global_load_ushort v{WTR[k]}, v{t8}, s[72:73] offset:{off}"); vm.issue("E1")
        for k in range(2):
            e(f"  global_load_ushort v{WTR[8+k]}, v{t8}, s[44:45] offset:{32*k}"); vm.issue("E1")
            e(f"  global_load_ushort v{WTR[10+k]}, v{t8}, s[46:47] offset:{32*k}"); vm.issue("E1")
        e(f"  v_lshlrev_b32 v{t8}, 7, v{gg}")
        e(f"  v_lshl_add_u32 v{t8}, v{nn}, 1, v{t8}     ; 128g + 2n")
        for k in range(4):
            e(f"  global_load_ushort v{WTR[4+k]}, v{t8}, s[74:75] offset:{32*k}"); vm.issue("E1")
        e(f"  v_lshlrev_b32 v{t8}, 2, v{gg}")
        e(f"  global_load_dword v{CEN}, v{t8}, s[40:41]"); vm.issue("E1")
        e(f"  s_lshl_b32 s80, s{sW}, 5")
        e(f"  v_lshl_add_u32 v{t8}, v{nn}, 1, s80")
        for u in range(7):
            e(f"  buffer_load_ushort v{RBF+2*u}, v{t8}, s[32:35], 0 offen offset:{u*512}"); vm.issue("E1")
            e(f"  v_mov_b32 v{RBF+2*u+1}, 0")
    def epi_loads2():
        gg, nn = t7, vL16
        e(f"  v_and_b32 v{t8}, 63, v0")
        e(f"  v_lshrrev_b32 v{gg}, 4, v{t8}")
        e(f"  s_lshl_b32 s80, s{sW}, 9")
        e(f"  v_lshlrev_b32 v{t8}, 5, v{nn}")
        e(f"  v_lshl_add_u32 v{t8}, v{gg}, 3, v{t8}")
        e(f"  v_add_u32 v{t8}, s80, v{t8}")
        for u in range(7):
            e(f"  s_mov_b32 s81, {u*8192}")
            e(f"  buffer_load_dwordx2 v[{MR+2*u}:{MR+2*u+1}], v{t8}, s[24:27], s81 offen{BM}"); vm.issue("E2")
    def epi_prep_w():
        e(f"  v_lshl_or_b32 v{WD}, v{WTR[1]}, 16, v{WTR[0]}")
        e(f"  v_lshl_or_b32 v{WD+1}, v{WTR[3]}, 16, v{WTR[2]}")
        e(f"  v_lshl_or_b32 v{WU}, v{WTR[5]}, 16, v{WTR[4]}")
        e(f"  v_lshl_or_b32 v{WU+1}, v{WTR[7]}, 16, v{WTR[6]}")
        e(f"  v_lshl_or_b32 v{WR}, v{WTR[9]}, 16, v{WTR[8]}")
        e(f"  v_lshl_or_b32 v{WS}, v{WTR[11]}, 16, v{WTR[10]}")
        e(f"  v_mov_b32 v{WR+1}, 0")
        e(f"  v_mov_b32 v{WS+1}, 0")
        c0, c1, x, y, p = XZ, XZ + 1, XZ + 2, XZ + 3, XZ + 4
        for k in range(2):
            e(f"  v_lshlrev_b32 v{x}, 16, v{WD+k}")
            e(f"  v_and_b32 v{y}, 0xffff0000, v{WD+k}")
            e(f"  v_mul_f32 v{x}, s{sInv}, v{x}")
            e(f"  v_mul_f32 v{y}, s{sInv}, v{y}")
            e(f"  v_cvt_pk_bf16_f32 v{WDS+k}, v{x}, v{y}")
        e(f"  v_lshlrev_b32 v{c0}, 16, v{CEN}")
        e(f"  v_and_b32 v{c1}, 0xffff0000, v{CEN}")
    def epi_prep_rbf(u):
        c0, c1, x, y, p = XZ, XZ + 1, XZ + 2, XZ + 3, XZ + 4
        r = RBF + 2 * u
        e("  s_mov_b32 s80, 0xc1200000           ; -10.0")
        e("  s_mov_b32 s81, 0x3fb8aa3b           ; log2(e)")
        e(f"  v_lshlrev_b32 v{r}, 16, v{r}")
        e(f"  v_sub_f32 v{x}, v{r}, v{c0}")
        e(f"  v_sub_f32 v{y}, v{r}, v{c1}")
        for op in ("sq", "m10", "exp"):
            e(f"  v_cvt_pk_bf16_f32 v{p}, v{x}, v{y}")
            e(f"  v_lshlrev_b32 v{x}, 16, v{p}")
            e(f"  v_and_b32 v{y}, 0xffff0000, v{p}")
            if op == "sq":
                e(f"  v_mul_f32 v{x}, v{x}, v{x}")
                e(f"  v_mul_f32 v{y}, v{y}, v{y}")
            elif op == "m10":
                e(f"  v_mul_f32 v{x}, s80, v{x}")
                e(f"  v_mul_f32 v{y}, s80, v{y}")
            else:
                e(f"  v_mul_f32 v{x}, s81, v{x}")
                e(f"  v_mul_f32 v{y}, s81, v{y}")
                e(f"  v_exp_f32 v{x}, v{x}")
                e(f"  v_exp_f32 v{y}, v{y}")
                e("  s_nop 0")
        e(f"  v_cvt_pk_bf16_f32 v{r}, v{x}, v{y}")
    def epi_prep():
        epi_prep_w()
        for u in range(7):
            epi_prep_rbf(u)

    LASTBAR = int(os.environ.get("LASTBAR", "6"))
    FIRSTBAR = int(os.environ.get("FIRSTBAR", "0"))
    for j in range(8):
        if "nobar" not in ABL and FIRSTBAR <= j <= LASTBAR and str(j) in os.environ.get("BARSET", "01234567"):
            e("  s_barrier")
        if j in (0, 1, 2, 4, 6, 7):
            stamp("B", f"phase {j} begin")
        for s in range(4):
            last = (j == 7)
            if s and s % BARN == 0 and not last:
                e("  s_barrier")
            if not last:
                dec_idx(RA(s, j + 1), tI)
            vm.wait(f"g{j}_{s}_0")
            consume(s, 0, False)
            if not last:
                gather(s, 0, tI, f"g{j+1}_{s}_0")
            vm.wait(f"g{j}_{s}_1")
            consume(s, 1, False)
            if not last:
                gather(s, 1, tI, f"g{j+1}_{s}_1")
                dec_rest(RA(s, j + 1), RCp(s, j + 1), (j + 1) % 2 == 1, s)
            step = 4 * j + s
            if step == 15:
                epi_loads1()
            if SPREAD:
                if step == 19:
                    vm.wait("E1")
                    epi_prep_w()
                if 20 <= step <= 26:
                    epi_prep_rbf(step - 20)
                if step == 27:
                    epi_loads2()
            else:
                if step == 20:
                    vm.wait("E1")
                    epi_prep()
                if step == 23:
                    epi_loads2()
    stamp("B", "main done")
    e(f"  s_cmp_eq_u32 s{sTail}, 0")
    e("  s_cbranch_scc1 LB_epi")
    lab("LB_generic")
    q_main = list(vm.q)
    e("  s_waitcnt vmcnt(0)")
    run_table_loads()
    e("  s_waitcnt vmcnt(0)")
    run_params()
    for s in range(4):
        e(f"  v_min_u32 v{CU+s}, 0x80, v{LN+s}")
        e(f"  s_cmp_eq_u32 s{sMode}, 2")
        e(f"  s_cbranch_scc0 LB_gen{s}_c")
        e(f"  v_mov_b32 v{CU+s}, 0")
        lab(f"LB_gen{s}_c")
    for s in range(4):
        lab(f"LB_gen{s}")
        e(f"  v_add_u32 v{t0}, v{CU+s}, v{vL16}")
        e(f"  v_cmp_lt_u32 vcc, v{t0}, v{LN+s}")
        e(f"  s_cbranch_vccz LB_gen{s}_done")
        e(f"  v_add_u32 v{t0}, v{BS+s}, v{t0}")
        e(f"  v_add_u32 v{CU+s}, 16, v{CU+s}")
        e(f"  v_cndmask_b32 v{t0}, -1, v{t0}, vcc")
        e(f"  buffer_load_dword v{G0+8}, v{t0}, s[4:7], 0 idxen")
        e(f"  buffer_load_ushort v{G0+9}, v{t0}, s[8:11], 0 idxen")
        e("  s_waitcnt vmcnt(0)")
        dec_idx(G0 + 8, tI)
        dec_rest(G0 + 8, G0 + 9, False, 0)
        gather(0, 0, tI, "x")
        gather(0, 1, tI, "x")
        e("  s_waitcnt vmcnt(0)")
        e(f"  s_cmp_eq_u32 s{sMode}, 2")
        e(f"  s_cbranch_scc1 LB_gen{s}_f")
        consume(0, 0, False)
        consume(0, 1, False)
        e(f"  s_branch LB_gen{s}")
        lab(f"LB_gen{s}_f")
        consume(0, 0, True)
        consume(0, 1, True)
        e(f"  s_branch LB_gen{s}")
        lab(f"LB_gen{s}_done")
    e(f"  s_cmp_eq_u32 s{sMode}, 2")
    e("  s_cbranch_scc0 LB_epi")
    epi_loads1()
    e("  s_waitcnt vmcnt(0)")
    epi_prep()
    epi_loads2()
    lab("LB_epi")
    vm.q = []
    e("  s_waitcnt lgkmcnt(0)")
    e("  s_barrier")
    stamp("B", "final barrier")
    g = t0
    e(f"  v_and_b32 v{t1}, 63, v0")
    e(f"  v_lshrrev_b32 v{g}, 4, v{t1}")
    e(f"  s_lshl_b32 s80, s{sW}, 4")
    e(f"  v_add_u32 v{t1}, s80, v{vL16}")
    e(f"  v_mul_u32_u24 v{t1}, {ROWB}, v{t1}")
    e(f"  v_lshl_add_u32 v{t2}, v{g}, 4, v{t1}")
    e(f"  v_add_u32 v{t3}, {4*256*ROWB}, v{t1}")
    e(f"  v_add_u32 v{t4}, {4*256*ROWB}, v{t2}")
    A_ = lambda u: 8 + 12 * (u % 4)
    G_ = lambda u: 8 + 12 * (u % 4) + 4
    R_ = lambda u: 8 + 12 * (u % 4) + 8
    PKS = (66, 68)
    X0, vMx = 70, 71
    NTILE = -(-BINE // 16)
    W6 = NTILE - 96
    def tile_reads(u):
        ra, rc = (t2, t1) if u < 4 else (t4, t3)
        e(f"  ds_read_b128 v[{A_(u)}:{A_(u)+3}], v{ra} offset:{(u%4)*256*ROWB}")
        e(f"  ds_read_b32 v{G_(u)}, v{rc} offset:{(u%4)*256*ROWB+64}")
    def tile_stage1(u):
        a, gg, rr = A_(u), G_(u), R_(u)
        PK = PKS[u % 2]
        e(f"  v_max_u32 v{vMx}, v{vMx}, v{gg}")
        e(f"  s_cbranch_scc1 LB_e{u}_f")
        e(f"  v_mul_u32_u24 v{gg}, 0x12d, v{gg}")
        e(f"  v_lshlrev_b32 v{gg+1}, 22, v{gg}")
        for k in (0, 2):
            e(f"  v_sub_u32 v{a+k}, v{a+k}, v{gg+1}")
            e(f"  v_sub_u32 v{a+k+1}, v{a+k+1}, v{gg+1}")
            e(f"  v_ashrrev_i32 v{gg+2}, 22, v{a+k}")
            e(f"  v_add_u32 v{gg+2}, v{gg+2}, v{gg}")
            e(f"  v_ashrrev_i32 v{gg+2}, 10, v{gg+2}")
            e(f"  v_sub_u32 v{a+k+1}, v{a+k+1}, v{gg+2}")
        for k in range(4):
            e(f"  v_cvt_f32_i32 v{a+k}, v{a+k}")
        lab(f"LB_e{u}_f")
        e(f"  v_cvt_pk_bf16_f32 v{PK}, v{a}, v{a+1}")
        e(f"  v_cvt_pk_bf16_f32 v{PK+1}, v{a+2}, v{a+3}")
        e(f"  v_mfma_f32_16x16x16_bf16 v[{gg}:{gg+3}], v[{WS}:{WS+1}], v[{RBF+2*u}:{RBF+2*u+1}], 0")
        e(f"  v_mfma_f32_16x16x16_bf16 v[{rr}:{rr+3}], v[{WR}:{WR+1}], v[{RBF+2*u}:{RBF+2*u+1}], 0")
        e(f"  v_mfma_f32_16x16x16_bf16 v[{a}:{a+3}], v[{WDS}:{WDS+1}], v[{PK}:{PK+1}], 0")
    def tile_stage2(u):
        a, gg = A_(u), G_(u)
        PK = PKS[u % 2]
        for k in range(4):
            e(f"  v_mul_f32 v{a+k}, v{a+k}, v{gg+k}")
        e(f"  v_cvt_pk_bf16_f32 v{PK}, v{a}, v{a+1}")
        e(f"  v_cvt_pk_bf16_f32 v{PK+1}, v{a+2}, v{a+3}")
        e("  s_nop 1")
        e(f"  v_mfma_f32_16x16x16_bf16 v[{gg}:{gg+3}], v[{WU}:{WU+1}], v[{PK}:{PK+1}], 0")
    def tile_stage3(u):
        a, gg, rr = A_(u), G_(u), R_(u)
        m0, m1 = MR + 2 * u, MR + 2 * u + 1
        e(f"  v_lshlrev_b32 v{a}, 16, v{m0}")
        e(f"  v_and_b32 v{a+1}, 0xffff0000, v{m0}")
        e(f"  v_lshlrev_b32 v{a+2}, 16, v{m1}")
        e(f"  v_and_b32 v{a+3}, 0xffff0000, v{m1}")
        for k in range(4):
            e(f"  v_fmac_f32 v{a+k}, v{gg+k}, v{rr+k}")
        e(f"  v_cvt_pk_bf16_f32 v{m0}, v{a}, v{a+1}")
        e(f"  v_cvt_pk_bf16_f32 v{m1}, v{a+2}, v{a+3}")
        e(f"  s_mov_b32 s81, {u*8192}")
        e(f"  buffer_store_dwordx2 v[{m0}:{m1}], v{t6}, s[28:31], s81 offen{BOUT}")
    def guarded(u, fn, tag):
        if u == 6:
            e(f"  s_cmp_ge_u32 s{sW}, {W6}")
            e(f"  s_cbranch_scc1 LB_skip6{tag}")
            if tag == "b":
                e(f"  s_cmp_eq_u32 s{sMode}, 2")
        fn(u)
        if u == 6:
            lab(f"LB_skip6{tag}")
    for u in (0, 1, 2, 3):
        tile_reads(u)
    e(f"  s_lshl_b32 s80, s{sW}, 9")
    e(f"  v_lshlrev_b32 v{t6}, 5, v{vL16}")
    e(f"  v_lshl_add_u32 v{t6}, v{g}, 3, v{t6}")
    e(f"  v_add_u32 v{t6}, s80, v{t6}")
    e(f"  v_mov_b32 v{vMx}, 0")
    for gi, grp in enumerate(((0, 1, 2, 3), (4, 5, 6))):
        if gi:
            for u in grp:
                guarded(u, tile_reads, "a")
        e("  s_waitcnt lgkmcnt(0)")
        e(f"  s_cmp_eq_u32 s{sMode}, 2")
        for u in grp:
            guarded(u, tile_stage1, "b")
        e("  s_nop 7")
        for u in grp:
            guarded(u, tile_stage2, "c")
        if gi == 0:
            e("  s_waitcnt vmcnt(0)              ; m rows")
        e("  s_nop 7")
        for u in grp:
            guarded(u, tile_stage3, "d")
    e(f"  v_cmp_lt_u32 s[{sOv}:{sOv+1}], 0x1ff, v{vMx}" if False else f"  v_cmp_lt_u32 vcc, 0x1ff, v{vMx}")
    e(f"  s_mov_b64 s[{sOv}:{sOv+1}], vcc")
    stamp("B", "epilogue done")
    stamp_dump("B", 78, sW)
    e(f"  s_cmp_eq_u32 s{sMode}, 2")
    e("  s_cbranch_scc1 LB_end")
    e(f"  s_cmp_eq_u64 s[{sOv}:{sOv+1}], 0")
    e("  s_cbranch_scc1 LB_noov")
    e(f"  v_mov_b32 v{t3}, {B_FLAG}")
    e(f"  ds_write_b32 v{t3}, v{vOne}")
    lab("LB_noov")
    e("  s_waitcnt lgkmcnt(0)")
    e("  s_barrier")
    e(f"  v_mov_b32 v{t3}, {B_FLAG}")
    e(f"  ds_read_b32 v{t3}, v{t3}")
    e("  s_waitcnt lgkmcnt(0)")
    e(f"  v_readfirstlane_b32 s80, v{t3}")
    e("  s_cmp_eq_u32 s80, 0")
    e("  s_cbranch_scc1 LB_end")
    e("  s_waitcnt vmcnt(0)")
    e("  s_barrier")
    e(f"  s_mov_b32 s{sMode}, 2")
    e("  s_branch LB_start")
    lab("LB_end")
    e("  s_endpgm")

def descriptor(name, vgpr, sgpr):
    e(".p2align 6")
    e(f".amdhsa_kernel {name}")
    e(f"  .amdhsa_next_free_vgpr {vgpr}")
    e(f"  .amdhsa_next_free_sgpr {sgpr}")
    e(f"  .amdhsa_accum_offset {vgpr}")
    e("  .amdhsa_group_segment_fixed_size 0")
    e("  .amdhsa_kernarg_size 112")
    e("  .amdhsa_user_sgpr_count 2")
    e("  .amdhsa_user_sgpr_kernarg_segment_ptr 1")
    e("  .amdhsa_system_sgpr_workgroup_id_x 1")
    e("  .amdhsa_float_denorm_mode_32 3")
    e(".end_amdhsa_kernel")

header = open("standalone__molecular_angular_gemnet__graph.s.ref").read().split("; Override launch")[0]
e(header.rstrip())
for _k in os.environ.get("LIST", "AB"):
    if _k == "A":
        e(f"; @launch kernel={KA} grid=({NCH},1,1) block=(1024,1,1) lds={A_LDS}")
    elif _k == "e":
        e(f"; @launch kernel=empty_kernel grid=(1,1,1) block=(64,1,1) lds=0")
    elif _k == "E":
        e(f"; @launch kernel=empty_kernel grid=(250,1,1) block=(1024,1,1) lds=131072")
    else:
        e(f"; @launch kernel={KB} grid=({NB},1,1) block=(1024,1,1) lds={B_LDS}")
e('.amdgcn_target "amdgcn-amd-amdhsa--gfx950"')
e(".text")
kernel_a()
kernel_b()
if set(os.environ.get("LIST", "")) & set("eE"):
    e(".globl empty_kernel")
    e(".p2align 8")
    e(".type empty_kernel,@function")
    lab("empty_kernel")
    e("  s_endpgm")
e('.section .rodata,"a"')
if set(os.environ.get("LIST", "")) & set("eE"):
    descriptor("empty_kernel", 128, 102)
descriptor(KA, 128, 102)
descriptor(KB, 128, 102)
dst = sys.argv[1] if len(sys.argv) > 1 else "standalone__molecular_angular_gemnet__graph.s"
open(dst, "w").write("\n".join(out) + "\n")
print("wrote", dst, len(out), "lines")
```

```python
import sys, os
DBG = os.environ.get("DBG", "")
ABL = os.environ.get("ABL", "").split(",")
def pol(name, default=""):
    v = os.environ.get(name, default)
    return (" " + v.replace("+", " ")) if v else ""
PF = int(os.environ.get("PF", "0"))
PFLEAD = int(os.environ.get("PFLEAD", "8"))
BARN = int(os.environ.get("BARN", "4"))
SPREAD = int(os.environ.get("SPREAD", "1"))
AOPT = os.environ.get("AOPT", "bmnd")
TOUCH = os.environ.get("TOUCH", "")
EARLYBAR = int(os.environ.get("EARLYBAR", "0"))
BURST = int(os.environ.get("BURST", "0"))
XMAP = int(os.environ.get("XMAP", "1"))
AIN = pol("AIN", "nt"); ATAB = pol("ATAB"); AST = pol("AST", "sc0+sc1"); BREC = pol("BREC"); BOUT = pol("BOUT", "nt"); BM = pol("BM")

KA = "standalone__molecular_angular_gemnet__graph_part_kernel"
KB = "standalone__molecular_angular_gemnet__graph_kernel"

E = 400000
T = 6400000
NWG = int(os.environ.get("NWG", "256"))
NCH = NWG
NB = NWG
UNITS = T // 64
CH = -(-UNITS // NCH) * 64
NBIG = UNITS - (CH // 64 - 1) * NCH if UNITS % NCH else NCH
BINE = -(-(-(-E // NB)) // 4) * 4
TP = CH * NCH
assert T % 64 == 0 and NBIG * CH + (NCH - NBIG) * (CH - 64) == T and 24576 < CH - 64 * (NBIG < NCH) and CH <= 25600
KS = 8

WS_RECA = 256
WS_RECC = WS_RECA + TP * 4
WS_TT = WS_RECA + TP * 6
WS_STATS = WS_TT + NCH * 1024

A_HIST = 0
A_C = 8192
A_A = A_C + -(-CH * 2 // 16) * 16
A_SCR = A_A + -(-CH * 4 // 16) * 16
A_LDS = A_SCR + 128

ROWB = 80
B_FLAG = 130048
B_LDS = 131072

out = []
def e(s=""):
    out.append(s)
def lab(s):
    out.append(s + ":")

DPP = "row_mask:0xf bank_mask:0xf"

def srd(reg, lo, hi, size, stride=0):
    e(f"  s_mov_b32 s{reg}, s{lo}")
    e(f"  s_and_b32 s{reg+1}, s{hi}, 0xffff")
    if stride:
        e(f"  s_or_b32 s{reg+1}, s{reg+1}, {stride << 16:#x}")
    e(f"  s_mov_b32 s{reg+2}, {size}")
    e(f"  s_mov_b32 s{reg+3}, 0x20000")

def srd_off(reg, lo, hi, off_sreg, size, const=0, stride=0):
    e(f"  s_add_u32 s{reg}, s{lo}, s{off_sreg}")
    e(f"  s_addc_u32 s{reg+1}, s{hi}, 0")
    if const:
        e(f"  s_add_u32 s{reg}, s{reg}, {const}")
        e(f"  s_addc_u32 s{reg+1}, s{reg+1}, 0")
    e(f"  s_and_b32 s{reg+1}, s{reg+1}, 0xffff")
    if stride:
        e(f"  s_or_b32 s{reg+1}, s{reg+1}, {stride << 16:#x}")
    e(f"  s_mov_b32 s{reg+2}, {size}")
    e(f"  s_mov_b32 s{reg+3}, 0x20000")

STAMP = os.environ.get("STAMP", "")
stamp_n = [0]
def stamp(kern, name):
    if STAMP != kern:
        return
    k = stamp_n[0]; stamp_n[0] += 1
    assert k < 16
    e(f"  s_memrealtime s[84:85]")
    e("  s_waitcnt lgkmcnt(0)")
    e(f"  s_mov_b32 s{86+k}, s84")
    if k == 0:
        e("  s_memtime s[84:85]")
        e("  s_waitcnt lgkmcnt(0)")
        e("  s_mov_b32 s101, s84")
    print("stamp", k, name)
def stamp_dump(kern, wsreg, wavereg):
    if STAMP != kern:
        return
    e("  s_memtime s[84:85]")
    e("  s_waitcnt lgkmcnt(0)")
    e("  s_sub_u32 s101, s84, s101")
    e(f"  s_cmp_eq_u32 s{wavereg}, {int(os.environ.get('STAMPW', '0'))}")
    e(f"  s_cbranch_scc0 L{kern}_nodump")
    e(f"  s_lshl_b32 s84, s2, 6")
    e(f"  s_add_u32 s84, s84, {128<<20}")
    e(f"  s_add_u32 s102-18, s{wsreg}, s84".replace("s102-18", "s84"))
    e(f"  s_addc_u32 s85, s{wsreg+1}, 0")
    e("  v_mov_b32 v60, 0")
    for k in range(16):
        e(f"  v_mov_b32 v61, s{86+k}")
        e(f"  global_store_dword v60, v61, s[84:85] offset:{4*k}")
    lab(f"L{kern}_nodump")

def wave_scan_add(v):
    for sh in (1, 2, 4, 8):
        e("  s_nop 1")
        e(f"  v_add_u32_dpp v{v}, v{v}, v{v} row_shr:{sh} {DPP}")
    e("  s_nop 1")
    e(f"  v_add_u32_dpp v{v}, v{v}, v{v} row_bcast:15 row_mask:0xa bank_mask:0xf")
    e("  s_nop 1")
    e(f"  v_add_u32_dpp v{v}, v{v}, v{v} row_bcast:31 row_mask:0xc bank_mask:0xf")

def wave_max(vs):
    steps = [f"row_shr:{sh} {DPP}" for sh in (1, 2, 4, 8)] + \
            ["row_bcast:15 row_mask:0xa bank_mask:0xf", "row_bcast:31 row_mask:0xc bank_mask:0xf"]
    for st in steps:
        e("  s_nop 1")
        for v in vs:
            e(f"  v_max_u32_dpp v{v}, v{v}, v{v} {st}")

class VmQ:
    def __init__(self):
        self.q = []
    def issue(self, tag):
        self.q.append(tag)
        assert len(self.q) <= 63, "vmcnt overflow"
    def wait(self, tag):
        if tag not in self.q:
            return
        idx = max(i for i, t in enumerate(self.q) if t == tag)
        n = len(self.q) - 1 - idx
        assert n <= 63
        e(f"  s_waitcnt vmcnt({n})")
        self.q = self.q[idx + 1:]
    def drain(self):
        e("  s_waitcnt vmcnt(0)")
        self.q = []

def kernel_a():
    I0, O0, AN0, RK0, TB0 = 8, 34, 60, 74, 100
    vOne, vF = 2, 3
    t0, t1, t2, t3, t4, t5 = 116, 117, 118, 119, 120, 121
    e(f".globl {KA}")
    e(".p2align 8")
    e(f".type {KA},@function")
    lab(KA)
    e(f"  s_cmp_ge_u32 s2, {NCH}")
    e("  s_cbranch_scc1 LA_end")
    e("  s_load_dwordx4 s[4:7], s[0:1], 0")
    e("  s_load_dwordx2 s[8:9], s[0:1], 16      ; idx_out")
    e("  s_load_dwordx2 s[10:11], s[0:1], 32    ; angle")
    e("  s_load_dwordx2 s[12:13], s[0:1], 48    ; ang_freq")
    e("  s_load_dwordx2 s[14:15], s[0:1], 104   ; ws")
    e("  v_lshrrev_b32 v1, 6, v0")
    e("  v_lshlrev_b32 v4, 4, v0                ; t*16")
    e("  v_readfirstlane_b32 s50, v1")
    e("  v_lshlrev_b32 v5, 3, v0                ; t*8")
    e("  v_lshlrev_b32 v6, 2, v0                ; t*4")
    e("  v_lshlrev_b32 v7, 1, v0                ; t*2")
    e(f"  v_mov_b32 v{vOne}, {2 if 'd' in AOPT else 1}")
    e(f"  v_mov_b32 v{t0}, 0")
    e(f"  v_mov_b32 v{t1}, 0")
    e(f"  s_mul_i32 s46, s2, {CH//64 - 1 if NBIG < NCH else CH//64}")
    if NBIG < NCH:
        e(f"  s_min_u32 s47, s2, {NBIG}")
        e("  s_add_u32 s46, s46, s47")
    e("  s_lshl_b32 s48, s46, 8")
    e("  s_lshl_b32 s49, s46, 7")
    e(f"  s_mov_b32 s59, {CH - 64 if NBIG < NCH else CH}")
    if NBIG < NCH:
        e(f"  s_cmp_lt_u32 s2, {NBIG}")
        e(f"  s_cselect_b32 s59, {CH}, s59")
    e(f"  s_mul_i32 s64, s2, {CH*4}")
    e(f"  s_mul_i32 s65, s2, {CH*2}")
    e("  s_lshl_b32 s51, s2, 10")
    e("  s_lshl_b32 s52, s2, 3")
    e("  s_waitcnt lgkmcnt(0)")
    srd_off(16, 6, 7, 48, CH * 4)
    srd_off(20, 8, 9, 48, CH * 4)
    srd_off(24, 10, 11, 49, CH * 2)
    e("  s_lshl_b32 s18, s59, 2")
    e("  s_lshl_b32 s22, s59, 2")
    e("  s_lshl_b32 s26, s59, 1")
    vm = VmQ()
    APIPE = int(os.environ.get("APIPE", "7"))
    e(f"  ds_write_b64 v5, v[{t0}:{t1}] offset:{A_HIST}")
    e(f"  v_and_b32 v{t2}, 15, v0")
    e(f"  v_lshlrev_b32 v{t2}, 3, v{t2}")
    e(f"  v_add_u32 v{t2}, {A_SCR}, v{t2}")
    e(f"  ds_write_b64 v{t2}, v[{t0}:{t1}]")
    e(f"  global_load_ushort v{vF}, v{t0}, s[12:13]")
    vm.issue("F")
    stamp("A", "start")
    def loads(u):
        e(f"  s_mov_b32 s53, {u*16384}")
        e(f"  s_mov_b32 s54, {u*8192}")
        if u < 6:
            e(f"  buffer_load_dwordx4 v[{I0+4*u}:{I0+4*u+3}], v4, s[16:19], s53 offen{AIN}")
            e(f"  buffer_load_dwordx4 v[{O0+4*u}:{O0+4*u+3}], v4, s[20:23], s53 offen{AIN}")
            e(f"  buffer_load_dwordx2 v[{AN0+2*u}:{AN0+2*u+1}], v5, s[24:27], s54 offen{AIN}")
        else:
            e(f"  buffer_load_dword v{I0+24}, v6, s[16:19], s53 offen{AIN}")
            e(f"  buffer_load_dword v{O0+24}, v6, s[20:23], s53 offen{AIN}")
            e(f"  buffer_load_ushort v{AN0+12}, v7, s[24:27], s54 offen{AIN}")
        for _ in range(3):
            vm.issue(f"L{u}")
    APRIO = int(os.environ.get("APRIO", "1"))
    NPRE = 2 if 'b' in AOPT else 0
    if APRIO:
        e("  s_setprio 3")
    for u in range(NPRE):
        loads(u)
    e("  s_waitcnt lgkmcnt(0)")
    e("  s_barrier")
    for u in range(NPRE, min(APIPE, 7)):
        loads(u)
    if APRIO:
        e("  s_setprio 0")
    e(f"  s_mul_i32 s47, s2, {BINE*32}")
    srd_off(28, 4, 5, 47, BINE * 32)
    e(f"  s_sub_u32 s47, {E*32}, s47")
    e(f"  s_min_u32 s30, s47, {BINE*32}")
    srd_off(32, 14, 15, 64, CH * 4, WS_RECA)
    srd_off(36, 14, 15, 65, CH * 2, WS_RECC)
    e("  s_lshl_b32 s34, s59, 2")
    e("  s_lshl_b32 s38, s59, 1")
    e("  s_sub_u32 s59, s59, 24576")
    srd_off(40, 14, 15, 51, 1024, WS_TT)
    srd_off(44, 14, 15, 52, 8, WS_STATS)
    assert (((2**32 + BINE - 1)//BINE) * BINE - 2**32) * E < 2**32
    e(f"  s_mov_b32 s55, {(2**32 + BINE - 1)//BINE}")
    e(f"  s_mov_b32 s56, {(2**32 * KS)//E - 1}")
    e(f"  s_mov_b32 s57, {-BINE}")

    def rec(r):
        I, O, R = I0 + r, O0 + r, RK0 + r
        e(f"  v_mul_hi_u32_u24 v{t0}, s55, v{O}           ; bin")
        e(f"  v_mul_hi_u32_u24 v{t1}, s56, v{I}           ; i range")
        e(f"  v_mad_i32_i24 v{t2}, v{t0}, s57, v{O}       ; o local")
        e(f"  v_lshlrev_b32 v{t1}, 2, v{t1}")
        e(f"  v_lshl_add_u32 v{O}, v{t0}, 5, v{t1}        ; key*4")
        e(f"  v_lshl_or_b32 v{I}, v{t2}, 19, v{I}")
        e(f"  ds_add_rtn_u32 v{R}, v{O}, v{vOne} offset:{A_HIST}")
        e(f"  v_not_b32 v{I}, v{I}")

    def cospair(a):
        x, y = t3, t4
        e(f"  v_lshlrev_b32 v{x}, 16, v{a}")
        e(f"  v_and_b32 v{y}, 0xffff0000, v{a}")
        e(f"  v_mul_f32 v{x}, v{vF}, v{x}")
        e(f"  v_mul_f32 v{y}, v{vF}, v{y}")
        e(f"  v_cvt_pk_bf16_f32 v{t5}, v{x}, v{y}")
        e(f"  v_lshlrev_b32 v{x}, 16, v{t5}")
        e(f"  v_and_b32 v{y}, 0xffff0000, v{t5}")
        e(f"  v_mul_f32 v{x}, 0.15915494, v{x}")
        e(f"  v_mul_f32 v{y}, 0.15915494, v{y}")
        e(f"  v_fract_f32 v{x}, v{x}")
        e(f"  v_fract_f32 v{y}, v{y}")
        e(f"  v_cos_f32 v{x}, v{x}")
        e(f"  v_cos_f32 v{y}, v{y}")
        e("  s_nop 0")
        e(f"  v_cvt_pk_bf16_f32 v{a}, v{x}, v{y}")
        e(f"  v_and_b32 v{x}, 0x7fff7fff, v{a}")
        e(f"  v_pk_max_u16 v{gC}, v{gC}, v{x}")

    gC = 124
    e(f"  v_mov_b32 v{gC}, 0")
    if "A" in TOUCH:
        e(f"  v_mov_b32 v{t3}, 0")
        for r in (32, 36, 40, 44):
            e(f"  buffer_load_dword v127, v{t3}, s[{r}:{r+3}], 0 offen")
            vm.issue("touch")
    stamp("A", "loads issued")
    ABAR = int(os.environ.get("ABAR", "0"))
    for u in range(7):
        if ABAR == 2 and u + APIPE < 7:
            e("  s_setprio 3")
            loads(u + APIPE)
            e("  s_setprio 0")
            e("  s_barrier")
        vm.wait(f"L{u}")
        if u in (0, 3, 6):
            stamp("A", f"group {u} arrived")
        if ABAR != 2 and u + APIPE < 7:
            if ABAR == 1:
                e("  s_setprio 3")
            loads(u + APIPE)
            if ABAR == 1:
                e("  s_setprio 0")
                e("  s_barrier")
        if u == 0:
            e(f"  v_lshlrev_b32 v{vF}, 16, v{vF}")
        if u < 6:
            for r in range(4):
                rec(4 * u + r)
            cospair(AN0 + 2 * u)
            cospair(AN0 + 2 * u + 1)
        else:
            e(f"  v_cmp_gt_u32 vcc, s59, v0")
            e("  s_and_saveexec_b64 s[62:63], vcc")
            e("  s_cbranch_execz LA_r24")
            rec(24)
            cospair(AN0 + 12)
            lab("LA_r24")
            e("  s_mov_b64 exec, s[62:63]")
    for u in range(4):
        e(f"  s_mov_b32 s53, {u*16384}")
        e(f"  buffer_load_dwordx4 v[{TB0+4*u}:{TB0+4*u+3}], v4, s[28:31], s53 offen{ATAB}")
    e("  s_waitcnt lgkmcnt(0)")
    e("  s_barrier")
    stamp("A", "hist barrier")
    e(f"  ds_read_b64 v[{t0}:{t1}], v5 offset:{A_HIST}")
    e("  s_waitcnt lgkmcnt(0)")
    e(f"  v_add_u32 v{t2}, v{t0}, v{t1}")
    e(f"  v_mov_b32 v{t3}, v{t2}")
    wave_scan_add(t3)
    e(f"  s_lshl_b32 s58, s50, 2")
    e(f"  s_add_u32 s58, s58, {A_SCR}")
    e(f"  v_mov_b32 v{t4}, s58")
    e("  s_mov_b32 exec_lo, 0")
    e("  s_mov_b32 exec_hi, 0x80000000")
    e(f"  ds_write_b32 v{t4}, v{t3}")
    e("  s_mov_b64 exec, -1")
    e("  s_waitcnt lgkmcnt(0)")
    e("  s_barrier")
    e(f"  v_and_b32 v{t4}, 15, v0")
    e(f"  v_lshlrev_b32 v{t4}, 2, v{t4}")
    e(f"  v_add_u32 v{t4}, {A_SCR}, v{t4}")
    e(f"  ds_read_b32 v{t4}, v{t4}")
    e("  s_waitcnt lgkmcnt(0)")
    e(f"  v_mov_b32 v{t5}, v{t4}")
    for sh in (1, 2, 4, 8):
        e("  s_nop 1")
        e(f"  v_add_u32_dpp v{t5}, v{t5}, v{t5} row_shr:{sh} {DPP}")
    e(f"  v_sub_u32 v{t5}, v{t5}, v{t4}")
    e("  s_nop 0")
    e(f"  v_readlane_b32 s58, v{t5}, s50")
    e(f"  v_sub_u32 v{t3}, v{t3}, v{t2}")
    e("  s_nop 0")
    e(f"  v_add_u32 v{t2}, s58, v{t3}         ; start0")
    e(f"  v_add_u32 v{t3}, v{t2}, v{t0}       ; start1")
    e(f"  ds_write_b64 v5, v[{t2}:{t3}] offset:{A_HIST}")
    e(f"  v_and_b32 v{t4}, 3, v0")
    e(f"  v_cmp_eq_u32 vcc, 0, v{t4}")
    e("  s_and_saveexec_b64 s[60:61], vcc")
    if 'd' in AOPT:
        e(f"  v_lshrrev_b32 v{t2}, 1, v{t2}")
    e(f"  buffer_store_dword v{t2}, v0, s[40:43], 0 offen")
    e("  s_mov_b64 exec, s[60:61]")
    e("  s_waitcnt lgkmcnt(0)")
    e("  s_barrier")
    stamp("A", "scan done")
    def put(r):
        e(f"  v_add_u32 v{O0+r}, v{O0+r}, v{RK0+r}")
        if 'd' in AOPT:
            e(f"  v_lshlrev_b32 v{RK0+r}, 1, v{O0+r}")
        else:
            e(f"  v_lshlrev_b32 v{RK0+r}, 2, v{O0+r}")
            e(f"  v_lshlrev_b32 v{O0+r}, 1, v{O0+r}")
        e(f"  ds_write_b32 v{RK0+r}, v{I0+r} offset:{A_A}")
        op = "ds_write_b16" if r % 2 == 0 else "ds_write_b16_d16_hi"
        e(f"  {op} v{O0+r}, v{AN0+r//2} offset:{A_C}")
    if 'm' in AOPT:
        for r in range(24):
            e(f"  ds_read_b32 v{O0+r}, v{O0+r} offset:{A_HIST}")
        e(f"  v_cmp_gt_u32 vcc, s59, v0")
        e("  s_and_saveexec_b64 s[62:63], vcc")
        e("  s_cbranch_execz LA_s24")
        e(f"  ds_read_b32 v{O0+24}, v{O0+24} offset:{A_HIST}")
        e("  s_waitcnt lgkmcnt(0)")
        put(24)
        lab("LA_s24")
        e("  s_mov_b64 exec, s[62:63]")
        e("  s_waitcnt lgkmcnt(0)")
        for r in range(24):
            put(r)
    else:
        groups = [range(0, 8), range(8, 16), range(16, 24), range(24, 25)]
        for g in groups:
            if g[0] == 24:
                e(f"  v_cmp_gt_u32 vcc, s59, v0")
                e("  s_and_saveexec_b64 s[62:63], vcc")
                e("  s_cbranch_execz LA_s24")
            for r in g:
                e(f"  ds_read_b32 v{O0+r}, v{O0+r} offset:{A_HIST}")
            e("  s_waitcnt lgkmcnt(0)")
            for r in g:
                put(r)
            if g[0] == 24:
                lab("LA_s24")
                e("  s_mov_b64 exec, s[62:63]")
    stamp("A", "scatter issued")
    def table_stats():
        gM, gR = 122, 123
        e(f"  v_mov_b32 v{gM}, 0")
        e(f"  v_mov_b32 v{gR}, 0")
        e("  s_mov_b32 s58, 0x7fff7fff")
        if 'n' not in AOPT:
            e("  s_waitcnt vmcnt(0)")
        for u in range(4):
            b = TB0 + 4 * u
            for k in range(4):
                e(f"  v_and_b32 v{b+k}, s58, v{b+k}")
            e(f"  v_pk_max_u16 v{b}, v{b}, v{b+1}")
            e(f"  v_pk_max_u16 v{b+2}, v{b+2}, v{b+3}")
            e(f"  v_pk_max_u16 v{b}, v{b}, v{b+2}")
            e(f"  v_lshrrev_b32 v{b+1}, 16, v{b}")
            e(f"  v_and_b32 v{b}, 0xffff, v{b}")
            e(f"  v_max_u32 v{b}, v{b}, v{b+1}")
            e("  s_nop 1")
            e(f"  v_max_u32_dpp v{b}, v{b}, v{b} quad_perm:[1,0,3,2] {DPP}")
            e(f"  v_max_u32 v{gM}, v{gM}, v{b}")
            e(f"  v_sub_u32 v{b}, 0x8000, v{b}")
            e(f"  v_and_b32 v{b}, 0x7fff, v{b}")
            e(f"  v_max_u32 v{gR}, v{gR}, v{b}")
        e(f"  v_lshrrev_b32 v{t5}, 16, v{gC}")
        e(f"  v_and_b32 v{gC}, 0xffff, v{gC}")
        e(f"  v_max_u32 v{gC}, v{gC}, v{t5}")
        e(f"  v_cmp_lt_u32 vcc, 0x3f80, v{gC}")
        e(f"  v_mov_b32 v{t5}, 0x7fff")
        e("  s_nop 0")
        e(f"  v_cndmask_b32 v{t5}, 0, v{t5}, vcc")
        e(f"  v_max_u32 v{gM}, v{gM}, v{t5}")
        wave_max([gM, gR])
        e(f"  v_mov_b32 v{t4}, {A_SCR + 64}")
        e("  s_mov_b32 exec_lo, 0")
        e("  s_mov_b32 exec_hi, 0x80000000")
        e(f"  ds_max_u32 v{t4}, v{gM}")
        e(f"  ds_max_u32 v{t4}, v{gR} offset:4")
        e("  s_mov_b64 exec, -1")
    if 'n' not in AOPT:
        table_stats()
    e("  s_waitcnt lgkmcnt(0)")
    e("  s_barrier")
    stamp("A", "scatter barrier")
    d = 8
    for u in range(6):
        e(f"  v_add_u32 v{t0}, {u*16384}, v4")
        e(f"  ds_read_b128 v[{d+4*u}:{d+4*u+3}], v{t0} offset:{A_A}")
    for u in range(3):
        e(f"  v_add_u32 v{t0}, {u*16384}, v4")
        e(f"  ds_read_b128 v[{d+24+4*u}:{d+24+4*u+3}], v{t0} offset:{A_C}")
    NX = 0 if 'n' in AOPT else 1
    if NX:
        e(f"  v_mov_b32 v{t4}, {A_SCR + 64}")
        e(f"  ds_read_b64 v[{t2}:{t3}], v{t4}")
    for u in range(6):
        e(f"  s_mov_b32 s53, {u*16384}")
        e(f"  s_waitcnt lgkmcnt({8+NX-u})")
        e(f"  buffer_store_dwordx4 v[{d+4*u}:{d+4*u+3}], v4, s[32:35], s53 offen{AST}")
    for u in range(3):
        e(f"  s_mov_b32 s53, {u*16384}")
        e(f"  s_waitcnt lgkmcnt({2+NX-u})")
        e(f"  buffer_store_dwordx4 v[{d+24+4*u}:{d+24+4*u+3}], v4, s[36:39], s53 offen{AST}")
    stamp("A", "stores issued")
    if STAMP == "A":
        e("  s_waitcnt vmcnt(0)")
    stamp("A", "stores done")
    stamp_dump("A", 14, 50)
    e(f"  s_cmp_lt_u32 s50, {-(-(CH*4 - 6*16384) // 1024)}")
    e("  s_cbranch_scc0 LA_t1")
    e(f"  v_add_u32 v{t0}, {6*16384}, v4")
    e(f"  ds_read_b128 v[60:63], v{t0} offset:{A_A}")
    e(f"  s_mov_b32 s53, {6*16384}")
    e("  s_waitcnt lgkmcnt(0)")
    e(f"  buffer_store_dwordx4 v[60:63], v4, s[32:35], s53 offen{AST}")
    lab("LA_t1")
    e(f"  s_cmp_lt_u32 s50, {-(-(CH*2 - 3*16384) // 1024)}")
    e("  s_cbranch_scc0 LA_t2")
    e(f"  v_add_u32 v{t0}, {3*16384}, v4")
    e(f"  ds_read_b128 v[64:67], v{t0} offset:{A_C}")
    e(f"  s_mov_b32 s53, {3*16384}")
    e("  s_waitcnt lgkmcnt(0)")
    e(f"  buffer_store_dwordx4 v[64:67], v4, s[36:39], s53 offen{AST}")
    lab("LA_t2")
    if 'n' in AOPT:
        e("  s_waitcnt vmcnt(10)")
        table_stats()
        e("  s_waitcnt lgkmcnt(0)")
        e("  s_barrier")
    e("  s_cmp_eq_u32 s50, 15")
    e("  s_cbranch_scc0 LA_end")
    if 'n' in AOPT:
        e(f"  v_mov_b32 v{t4}, {A_SCR + 64}")
        e(f"  ds_read_b64 v[{t2}:{t3}], v{t4}")
    e("  s_waitcnt lgkmcnt(0)")
    e(f"  v_mov_b32 v{t0}, 0")
    e("  s_mov_b32 exec_lo, 1")
    e("  s_mov_b32 exec_hi, 0")
    e(f"  buffer_store_dwordx2 v[{t2}:{t3}], v{t0}, s[44:47], 0 offen")
    lab("LA_end")
    e("  s_endpgm")

def kernel_b():
    vH8, vIA, vIB, vCB, vOne = 1, 2, 4, 6, 7
    G0 = 8
    OA, CH_ = 40, 44
    P0 = 48
    t0, t1, t2, t3, t4, t5, t6, t7, t8 = range(56, 65)
    BS, LN = 65, 69
    XZ = 65
    CU = 73
    vL16 = 77
    WDS = 78
    RCP, RA0 = 80, 96
    def RA(s, j): return RA0 + 4 * j + s
    def RCp(s, j): return RCP + 4 * (j // 2) + s
    RBF, CEN, MR = 96, 70, 110
    WTR = [110, 111, 112, 113, 114, 115, 71, 72, 73, 74, 75, 76]
    WD, WU, WS, WR = 80, 82, 84, 86
    sW, sMag, sSc, sInv, sMode, sMsk, sN80, sTail, sPerm = 50, 53, 54, 55, 56, 57, 58, 59, 60
    sOv = 66
    vm = VmQ()
    e(f".globl {KB}")
    e(".p2align 8")
    e(f".type {KB},@function")
    lab(KB)
    e(f"  s_cmp_ge_u32 s2, {NB}")
    e("  s_cbranch_scc1 LB_end")
    if XMAP:
        e("  s_and_b32 s3, s2, 7")
        e("  s_lshr_b32 s2, s2, 3")
        e(f"  s_mul_i32 s4, s3, {NB//8}")
        if NB % 8:
            e(f"  s_min_u32 s3, s3, {NB%8}")
            e("  s_add_u32 s2, s2, s3")
        e("  s_add_u32 s2, s2, s4")
    e("  s_load_dwordx2 s[78:79], s[0:1], 104    ; ws")
    e("  s_load_dwordx2 s[68:69], s[0:1], 0      ; m")
    e("  s_load_dwordx2 s[70:71], s[0:1], 24     ; dist")
    e("  s_load_dwordx2 s[40:41], s[0:1], 40     ; centers")
    e("  s_load_dwordx4 s[44:47], s[0:1], 56")
    e("  s_load_dwordx4 s[72:75], s[0:1], 72")
    e("  s_load_dwordx2 s[76:77], s[0:1], 88     ; out")
    e("  v_lshrrev_b32 v8, 6, v0")
    e(f"  v_and_b32 v{vL16}, 15, v0")
    e(f"  v_readfirstlane_b32 s{sW}, v8")
    e(f"  v_and_b32 v9, 1, v0")
    e(f"  v_lshlrev_b32 v{vH8}, 3, v9")
    e(f"  v_lshlrev_b32 v{vIA+1}, 4, v9")
    e(f"  v_lshlrev_b32 v{vIB+1}, 4, v9")
    e(f"  v_mov_b32 v{vCB}, {2047*ROWB}")
    e(f"  v_mov_b32 v{vOne}, 1")
    e(f"  s_mul_i32 s80, s2, {BINE*32}")
    e(f"  s_mul_i32 s81, s2, {BINE*2}")
    e(f"  s_mov_b32 s{sMode}, 0")
    e(f"  s_mov_b32 s{sMsk}, 0x7ffff")
    e(f"  s_mov_b32 s{sN80}, {-ROWB}")
    e(f"  s_mov_b32 s{sPerm}, 0x05040100")
    e("  s_waitcnt lgkmcnt(0)")
    e(f"  s_add_u32 s82, s78, {WS_TT}")
    e("  s_addc_u32 s83, s79, 0")
    srd(16, 82, 83, NCH * 1024)
    e(f"  s_add_u32 s82, s78, {WS_STATS}")
    e("  s_addc_u32 s83, s79, 0")
    srd(20, 82, 83, NCH * 8)
    e(f"  s_add_u32 s82, s78, {WS_RECA - 4}")
    e("  s_addc_u32 s83, s79, 0")
    srd(4, 82, 83, TP + 1, 4)
    e(f"  s_add_u32 s82, s78, {WS_RECC - 2}")
    e("  s_addc_u32 s83, s79, 0")
    srd(8, 82, 83, TP + 1, 2)
    srd(12, 68, 69, E, 32)
    srd_off(24, 68, 69, 80, BINE * 32)
    srd_off(28, 76, 77, 80, BINE * 32)
    srd_off(32, 70, 71, 81, BINE * 2)
    e(f"  s_sub_u32 s82, {E*32}, s80")
    e(f"  s_min_u32 s26, s82, {BINE*32}")
    e("  s_mov_b32 s30, s26")
    e("  s_lshr_b32 s34, s26, 4")
    lab("LB_start")
    BPRIO = int(os.environ.get("BPRIO", "1"))
    if BPRIO:
        e("  s_setprio 3")
    stamp("B", "start")
    ST0 = 48
    def run_table_loads():
        g = t0
        e(f"  v_and_b32 v{t1}, 63, v0")
        e(f"  v_lshrrev_b32 v{g}, 4, v{t1}            ; g = lane>>4")
        e(f"  s_lshl_b32 s80, s{sW}, 4")
        e(f"  v_add_u32 v{t1}, s80, v{g}              ; 16w+g")
        e(f"  s_lshl_b32 s81, s2, 2")
        e(f"  v_lshlrev_b32 v{t2}, 10, v{t1}")
        e(f"  v_add_u32 v{t2}, s81, v{t2}")
        for s in range(4):
            e(f"  v_add_u32 v{t3}, {s*4096}, v{t2}")
            e(f"  buffer_load_dwordx2 v[{G0+2*s}:{G0+2*s+1}], v{t3}, s[16:19], 0 offen")
            vm.issue("T")
    rp_n = [0]
    def run_params():
        rp_n[0] += 1
        e(f"  s_mov_b32 s80, {CH}")
        for s in range(4):
            e(f"  v_add_u32 v{t3}, {4*s}, v{t1}")
            e(f"  v_mad_u32_u24 v{t3}, v{t3}, s80, 1")
            e(f"  v_add_u32 v{BS+s}, v{t3}, v{G0+2*s}")
            if NB == 256:
                e(f"  s_cmp_eq_u32 s2, {NB-1}")
                e(f"  s_cbranch_scc0 LB_rp{rp_n[0]}_{s}")
                e(f"  v_add_u32 v{t4}, {4*s}, v{t1}")
                e(f"  v_cmp_gt_u32 vcc, {NBIG}, v{t4}")
                e(f"  v_mov_b32 v{t4}, {CH}")
                e(f"  v_mov_b32 v{G0+2*s+1}, {CH-64}")
                e(f"  v_cndmask_b32 v{G0+2*s+1}, v{G0+2*s+1}, v{t4}, vcc")
                lab(f"LB_rp{rp_n[0]}_{s}")
            e(f"  v_sub_u32 v{LN+s}, v{G0+2*s+1}, v{G0+2*s}")
    run_table_loads()
    e(f"  v_and_b32 v{t3}, 63, v0")
    e(f"  v_lshlrev_b32 v{t3}, 3, v{t3}")
    for s in range(4):
        e(f"  buffer_load_dwordx2 v[{ST0+2*s}:{ST0+2*s+1}], v{t3}, s[20:23], 0 offen offset:{s*512}")
        vm.issue("ST")
    if "B" in TOUCH:
        e(f"  v_mov_b32 v{t3}, 0")
        for r in (28,):
            e(f"  buffer_load_dword v79, v{t3}, s[{r}:{r+3}], 0 offen")
            vm.issue("touch")
    ZR = 40
    for k in range(4):
        e(f"  v_mov_b32 v{ZR+k}, 0")
    e(f"  v_lshlrev_b32 v{t3}, 4, v0")
    for u in range(8):
        if u == 4:
            e(f"  v_add_u32 v{t3}, 0x10000, v{t3}")
        e(f"  ds_write_b128 v{t3}, v[{ZR}:{ZR+3}] offset:{(u%4)*16384}")
    vm.wait("T")
    stamp("B", "T arrived")
    run_params()
    e(f"  v_max_u32 v{t3}, v{LN}, v{LN+1}")
    e(f"  v_max3_u32 v{t3}, v{t3}, v{LN+2}, v{LN+3}")
    e(f"  v_cmp_lt_u32 vcc, 0x80, v{t3}")
    e(f"  s_cmp_lg_u64 vcc, 0")
    e(f"  s_cselect_b32 s{sTail}, 1, 0")
    def LZ(s, j): return RCp(s, j) if j % 2 == 0 else G0 + 8 + 4 * (j // 2) + s
    if EARLYBAR:
        e("  s_waitcnt lgkmcnt(0)")
        e("  s_barrier")
    for s in range(4):
        lp, lo, hi = t2, t4, t6
        e(f"  v_min_u32 v{lp}, 0x80, v{LN+s}          ; len'")
        e(f"  v_mov_b32 v{lo}, v{vL16}")
        e(f"  v_lshlrev_b32 v{lp}, 16, v{lp}")
        def msk(j):
            return f"s[{84+2*j}:{85+2*j}]" if (BURST and not STAMP) else "vcc"
        def lds(j):
            e(f"  s_mov_b64 exec, {msk(j)}")
            e(f"  buffer_load_ushort v{LZ(s,j)}, v{RA(s,j)}, s[8:11], 0 idxen{BREC}")
            vm.issue(f"C{s}_{j}")
            e(f"  buffer_load_dword v{RA(s,j)}, v{RA(s,j)}, s[4:7], 0 idxen{BREC}")
            vm.issue(f"A{s}_{j}")
        for j in range(8):
            e(f"  v_mul_hi_u32_u24 v{hi}, {(j+1) << 13:#x}, v{lp}     ; ((j+1)*len') >> 3")
            e(f"  v_cmp_lt_u32 {msk(j)}, v{lo}, v{hi}")
            e(f"  v_add_u32 v{t7}, v{BS+s}, v{lo}")
            e(f"  v_add_u32 v{lo}, v{hi}, v{vL16}")
            e(f"  v_cndmask_b32 v{RA(s,j)}, 0, v{t7}, {msk(j)}")
            if not (BURST and not STAMP):
                lds(j)
                e("  s_mov_b64 exec, -1")
        if BURST and not STAMP:
            for j in range(8):
                lds(j)
            e("  s_mov_b64 exec, -1")
        if s == 2:
            vm.wait("A0_7")
    if BPRIO:
        e("  s_setprio 0")
    stamp("B", "rec loads issued")
    a, b = ST0, ST0 + 1
    e(f"  v_max3_u32 v{a}, v{ST0}, v{ST0+2}, v{ST0+4}")
    e(f"  v_max3_u32 v{b}, v{ST0+1}, v{ST0+3}, v{ST0+5}")
    e(f"  v_max_u32 v{a}, v{a}, v{ST0+6}")
    e(f"  v_max_u32 v{b}, v{b}, v{ST0+7}")
    wave_max([a, b])
    e("  s_nop 0")
    e(f"  v_readlane_b32 s80, v{a}, 63")
    e(f"  v_readlane_b32 s81, v{b}, 63")
    e("  s_nop 0")
    e("  s_lshr_b32 s82, s80, 7")
    e("  s_sub_u32 s81, 0x8000, s81")
    e("  s_lshr_b32 s81, s81, 7")
    e("  s_sub_u32 s83, s82, s81")
    e(f"  s_cmp_eq_u32 s{sMode}, 2")
    e("  s_cbranch_scc1 LB_float")
    e("  s_cmp_ge_u32 s80, 0x7f80")
    e("  s_cbranch_scc1 LB_float")
    e("  s_cmp_lt_u32 s82, 32")
    e("  s_cbranch_scc1 LB_float")
    e("  s_cmp_gt_u32 s82, 200")
    e("  s_cbranch_scc1 LB_float")
    e("  s_cmp_gt_i32 s83, 10")
    e("  s_cbranch_scc1 LB_float")
    e(f"  s_mov_b32 s{sMag}, 0x4b400000")
    e("  s_sub_u32 s83, 275, s82")
    e(f"  s_lshl_b32 s{sSc}, s83, 23")
    e("  s_sub_u32 s83, s82, 21")
    e(f"  s_lshl_b32 s{sInv}, s83, 23")
    e("  s_branch LB_fast")
    lab("LB_float")
    e(f"  s_mov_b32 s{sMode}, 2")
    e(f"  s_mov_b32 s{sMag}, 0")
    e(f"  s_mov_b32 s{sSc}, 1.0")
    e(f"  s_mov_b32 s{sInv}, 1.0")
    e(f"  s_mov_b32 s{sTail}, 1")
    e("  s_waitcnt vmcnt(0) lgkmcnt(0)")
    e("  s_barrier")
    e("  s_branch LB_generic")
    lab("LB_fast")
    for s in range(4):
        for jj in range(4):
            vm.wait(f"C{s}_{2*jj+1}")
            e(f"  v_perm_b32 v{RCp(s,2*jj)}, v{LZ(s,2*jj+1)}, v{RCp(s,2*jj)}, s{sPerm}")
    vm.drain()
    stamp("B", "records arrived")

    def dec_idx(ra, dst):
        e(f"  v_bfi_b32 v{dst}, v{ra}, 0, s{sMsk}")
    def dec_rest(ra, rc, hi_half, s):
        e(f"  v_bfe_u32 v{t7}, v{ra}, 19, 11")
        if hi_half:
            e(f"  v_and_b32 v{t8}, 0xffff0000, v{rc}")
        else:
            e(f"  v_lshlrev_b32 v{t8}, 16, v{rc}")
        e(f"  v_mad_i32_i24 v{OA+s}, v{t7}, s{sN80}, v{vCB}")
        e(f"  v_mul_f32 v{CH_+s}, s{sSc}, v{t8}")
        e(f"  ds_add_u32 v{OA+s}, v{vOne} offset:64")
    def gather(s, h, src, tag):
        g0 = G0 + 8 * s + 4 * h
        vi = vIA if h == 0 else vIB
        qp = "[0,0,2,2]" if h == 0 else "[1,1,3,3]"
        e(f"  v_mov_b32_dpp v{vi}, v{src} quad_perm:{qp} {DPP}")
        if "nogather" in ABL:
            e(f"  v_mov_b32 v{vi}, -1")
        e(f"  buffer_load_dwordx4 v[{g0}:{g0+3}], v[{vi}:{vi+1}], s[12:15], 0 idxen offen")
        vm.issue(tag)
    def consume(s, h, isfloat):
        qp = "[0,0,2,2]" if h == 0 else "[1,1,3,3]"
        g0 = G0 + 8 * s + 4 * h
        ad, ch, cl = t0 + 3 * h, t1 + 3 * h, t2 + 3 * h
        e(f"  v_mov_b32_dpp v{ch}, v{CH_+s} quad_perm:{qp} {DPP}")
        e(f"  v_add_u32_dpp v{ad}, v{OA+s}, v{vH8} quad_perm:{qp} {DPP}")
        e(f"  v_lshrrev_b32 v{cl}, 16, v{ch}")
        for k in range(4):
            e(f"  v_dot2_f32_bf16 v{P0+2*k+1}, v{g0+k}, v{ch}, s{sMag}")
            e(f"  v_dot2_f32_bf16 v{P0+2*k}, v{g0+k}, v{cl}, s{sMag}")
            if "noatom" in ABL:
                continue
            if isfloat:
                e(f"  ds_add_f32 v{ad}, v{P0+2*k} offset:{16*k}")
                e(f"  ds_add_f32 v{ad}, v{P0+2*k+1} offset:{16*k+4}")
            else:
                e(f"  ds_add_u64 v{ad}, v[{P0+2*k}:{P0+2*k+1}] offset:{16*k}")
    if not EARLYBAR:
        e("  s_waitcnt lgkmcnt(0)")
        e("  s_barrier")
    stamp("B", "after barrier")
    tI = t6
    for s in range(4):
        dec_idx(RA(s, 0), tI)
        dec_rest(RA(s, 0), RCp(s, 0), False, s)
        gather(s, 0, tI, f"g0_{s}_0")
        gather(s, 1, tI, f"g0_{s}_1")

    def epi_loads1():
        gg, nn = t7, vL16
        e(f"  v_and_b32 v{t8}, 63, v0")
        e(f"  v_lshrrev_b32 v{gg}, 4, v{t8}")
        e(f"  v_lshlrev_b32 v{t8}, 6, v{gg}")
        e(f"  v_lshl_add_u32 v{t8}, v{nn}, 1, v{t8}     ; 64g + 2n")
        for k, off in enumerate((0, 32, 256, 288)):
            e(f"  global_load_ushort v{WTR[k]}, v{t8}, s[72:73] offset:{off}"); vm.issue("E1")
        for k in range(2):
            e(f"  global_load_ushort v{WTR[8+k]}, v{t8}, s[44:45] offset:{32*k}"); vm.issue("E1")
            e(f"  global_load_ushort v{WTR[10+k]}, v{t8}, s[46:47] offset:{32*k}"); vm.issue("E1")
        e(f"  v_lshlrev_b32 v{t8}, 7, v{gg}")
        e(f"  v_lshl_add_u32 v{t8}, v{nn}, 1, v{t8}     ; 128g + 2n")
        for k in range(4):
            e(f"  global_load_ushort v{WTR[4+k]}, v{t8}, s[74:75] offset:{32*k}"); vm.issue("E1")
        e(f"  v_lshlrev_b32 v{t8}, 2, v{gg}")
        e(f"  global_load_dword v{CEN}, v{t8}, s[40:41]"); vm.issue("E1")
        e(f"  s_lshl_b32 s80, s{sW}, 5")
        e(f"  v_lshl_add_u32 v{t8}, v{nn}, 1, s80")
        for u in range(7):
            e(f"  buffer_load_ushort v{RBF+2*u}, v{t8}, s[32:35], 0 offen offset:{u*512}"); vm.issue("E1")
            e(f"  v_mov_b32 v{RBF+2*u+1}, 0")
    def epi_loads2():
        gg, nn = t7, vL16
        e(f"  v_and_b32 v{t8}, 63, v0")
        e(f"  v_lshrrev_b32 v{gg}, 4, v{t8}")
        e(f"  s_lshl_b32 s80, s{sW}, 9")
        e(f"  v_lshlrev_b32 v{t8}, 5, v{nn}")
        e(f"  v_lshl_add_u32 v{t8}, v{gg}, 3, v{t8}")
        e(f"  v_add_u32 v{t8}, s80, v{t8}")
        for u in range(7):
            e(f"  s_mov_b32 s81, {u*8192}")
            e(f"  buffer_load_dwordx2 v[{MR+2*u}:{MR+2*u+1}], v{t8}, s[24:27], s81 offen{BM}"); vm.issue("E2")
    def epi_prep_w():
        e(f"  v_lshl_or_b32 v{WD}, v{WTR[1]}, 16, v{WTR[0]}")
        e(f"  v_lshl_or_b32 v{WD+1}, v{WTR[3]}, 16, v{WTR[2]}")
        e(f"  v_lshl_or_b32 v{WU}, v{WTR[5]}, 16, v{WTR[4]}")
        e(f"  v_lshl_or_b32 v{WU+1}, v{WTR[7]}, 16, v{WTR[6]}")
        e(f"  v_lshl_or_b32 v{WR}, v{WTR[9]}, 16, v{WTR[8]}")
        e(f"  v_lshl_or_b32 v{WS}, v{WTR[11]}, 16, v{WTR[10]}")
        e(f"  v_mov_b32 v{WR+1}, 0")
        e(f"  v_mov_b32 v{WS+1}, 0")
        c0, c1, x, y, p = XZ, XZ + 1, XZ + 2, XZ + 3, XZ + 4
        for k in range(2):
            e(f"  v_lshlrev_b32 v{x}, 16, v{WD+k}")
            e(f"  v_and_b32 v{y}, 0xffff0000, v{WD+k}")
            e(f"  v_mul_f32 v{x}, s{sInv}, v{x}")
            e(f"  v_mul_f32 v{y}, s{sInv}, v{y}")
            e(f"  v_cvt_pk_bf16_f32 v{WDS+k}, v{x}, v{y}")
        e(f"  v_lshlrev_b32 v{c0}, 16, v{CEN}")
        e(f"  v_and_b32 v{c1}, 0xffff0000, v{CEN}")
    def epi_prep_rbf(u):
        c0, c1, x, y, p = XZ, XZ + 1, XZ + 2, XZ + 3, XZ + 4
        r = RBF + 2 * u
        e("  s_mov_b32 s80, 0xc1200000           ; -10.0")
        e("  s_mov_b32 s81, 0x3fb8aa3b           ; log2(e)")
        e(f"  v_lshlrev_b32 v{r}, 16, v{r}")
        e(f"  v_sub_f32 v{x}, v{r}, v{c0}")
        e(f"  v_sub_f32 v{y}, v{r}, v{c1}")
        for op in ("sq", "m10", "exp"):
            e(f"  v_cvt_pk_bf16_f32 v{p}, v{x}, v{y}")
            e(f"  v_lshlrev_b32 v{x}, 16, v{p}")
            e(f"  v_and_b32 v{y}, 0xffff0000, v{p}")
            if op == "sq":
                e(f"  v_mul_f32 v{x}, v{x}, v{x}")
                e(f"  v_mul_f32 v{y}, v{y}, v{y}")
            elif op == "m10":
                e(f"  v_mul_f32 v{x}, s80, v{x}")
                e(f"  v_mul_f32 v{y}, s80, v{y}")
            else:
                e(f"  v_mul_f32 v{x}, s81, v{x}")
                e(f"  v_mul_f32 v{y}, s81, v{y}")
                e(f"  v_exp_f32 v{x}, v{x}")
                e(f"  v_exp_f32 v{y}, v{y}")
                e("  s_nop 0")
        e(f"  v_cvt_pk_bf16_f32 v{r}, v{x}, v{y}")
    def epi_prep():
        epi_prep_w()
        for u in range(7):
            epi_prep_rbf(u)

    LASTBAR = int(os.environ.get("LASTBAR", "6"))
    FIRSTBAR = int(os.environ.get("FIRSTBAR", "0"))
    for j in range(8):
        BARPOS = int(os.environ.get("BARPOS", "0"))
        dobar = "nobar" not in ABL and FIRSTBAR <= j <= LASTBAR and str(j) in os.environ.get("BARSET", "01234567")
        if dobar and BARPOS == 0:
            e("  s_barrier")
        if j in (0, 1, 2, 4, 6, 7):
            stamp("B", f"phase {j} begin")
        for s in range(4):
            last = (j == 7)
            if s and s % BARN == 0 and not last:
                e("  s_barrier")
            if not last:
                dec_idx(RA(s, j + 1), tI)
            vm.wait(f"g{j}_{s}_0")
            consume(s, 0, False)
            if not last:
                gather(s, 0, tI, f"g{j+1}_{s}_0")
            if dobar and BARPOS == 1 and s == 0:
                e("  s_barrier")
            vm.wait(f"g{j}_{s}_1")
            consume(s, 1, False)
            if not last:
                gather(s, 1, tI, f"g{j+1}_{s}_1")
                if dobar and BARPOS == 2 and s == 0:
                    e("  s_barrier")
                dec_rest(RA(s, j + 1), RCp(s, j + 1), (j + 1) % 2 == 1, s)
            step = 4 * j + s
            if step == 15:
                epi_loads1()
            if SPREAD:
                if step == 19:
                    vm.wait("E1")
                    epi_prep_w()
                if 20 <= step <= 26:
                    epi_prep_rbf(step - 20)
                if step == 27:
                    epi_loads2()
            else:
                if step == 20:
                    vm.wait("E1")
                    epi_prep()
                if step == 23:
                    epi_loads2()
    stamp("B", "main done")
    e(f"  s_cmp_eq_u32 s{sTail}, 0")
    e("  s_cbranch_scc1 LB_epi")
    lab("LB_generic")
    q_main = list(vm.q)
    e("  s_waitcnt vmcnt(0)")
    run_table_loads()
    e("  s_waitcnt vmcnt(0)")
    run_params()
    for s in range(4):
        e(f"  v_min_u32 v{CU+s}, 0x80, v{LN+s}")
        e(f"  s_cmp_eq_u32 s{sMode}, 2")
        e(f"  s_cbranch_scc0 LB_gen{s}_c")
        e(f"  v_mov_b32 v{CU+s}, 0")
        lab(f"LB_gen{s}_c")
    for s in range(4):
        lab(f"LB_gen{s}")
        e(f"  v_add_u32 v{t0}, v{CU+s}, v{vL16}")
        e(f"  v_cmp_lt_u32 vcc, v{t0}, v{LN+s}")
        e(f"  s_cbranch_vccz LB_gen{s}_done")
        e(f"  v_add_u32 v{t0}, v{BS+s}, v{t0}")
        e(f"  v_add_u32 v{CU+s}, 16, v{CU+s}")
        e(f"  v_cndmask_b32 v{t0}, -1, v{t0}, vcc")
        e(f"  buffer_load_dword v{G0+8}, v{t0}, s[4:7], 0 idxen")
        e(f"  buffer_load_ushort v{G0+9}, v{t0}, s[8:11], 0 idxen")
        e("  s_waitcnt vmcnt(0)")
        dec_idx(G0 + 8, tI)
        dec_rest(G0 + 8, G0 + 9, False, 0)
        gather(0, 0, tI, "x")
        gather(0, 1, tI, "x")
        e("  s_waitcnt vmcnt(0)")
        e(f"  s_cmp_eq_u32 s{sMode}, 2")
        e(f"  s_cbranch_scc1 LB_gen{s}_f")
        consume(0, 0, False)
        consume(0, 1, False)
        e(f"  s_branch LB_gen{s}")
        lab(f"LB_gen{s}_f")
        consume(0, 0, True)
        consume(0, 1, True)
        e(f"  s_branch LB_gen{s}")
        lab(f"LB_gen{s}_done")
    e(f"  s_cmp_eq_u32 s{sMode}, 2")
    e("  s_cbranch_scc0 LB_epi")
    epi_loads1()
    e("  s_waitcnt vmcnt(0)")
    epi_prep()
    epi_loads2()
    lab("LB_epi")
    vm.q = []
    e("  s_waitcnt lgkmcnt(0)")
    e("  s_barrier")
    stamp("B", "final barrier")
    g = t0
    e(f"  v_and_b32 v{t1}, 63, v0")
    e(f"  v_lshrrev_b32 v{g}, 4, v{t1}")
    e(f"  s_lshl_b32 s80, s{sW}, 4")
    e(f"  v_add_u32 v{t1}, s80, v{vL16}")
    e(f"  v_mul_u32_u24 v{t1}, {ROWB}, v{t1}")
    e(f"  v_lshl_add_u32 v{t2}, v{g}, 4, v{t1}")
    e(f"  v_add_u32 v{t3}, {4*256*ROWB}, v{t1}")
    e(f"  v_add_u32 v{t4}, {4*256*ROWB}, v{t2}")
    A_ = lambda u: 8 + 12 * (u % 4)
    G_ = lambda u: 8 + 12 * (u % 4) + 4
    R_ = lambda u: 8 + 12 * (u % 4) + 8
    PKS = (66, 68)
    X0, vMx = 70, 71
    NTILE = -(-BINE // 16)
    W6 = NTILE - 96
    def tile_reads(u):
        ra, rc = (t2, t1) if u < 4 else (t4, t3)
        e(f"  ds_read_b128 v[{A_(u)}:{A_(u)+3}], v{ra} offset:{(u%4)*256*ROWB}")
        e(f"  ds_read_b32 v{G_(u)}, v{rc} offset:{(u%4)*256*ROWB+64}")
    def tile_stage1(u):
        a, gg, rr = A_(u), G_(u), R_(u)
        PK = PKS[u % 2]
        e(f"  v_max_u32 v{vMx}, v{vMx}, v{gg}")
        e(f"  s_cbranch_scc1 LB_e{u}_f")
        e(f"  v_mul_u32_u24 v{gg}, 0x12d, v{gg}")
        e(f"  v_lshlrev_b32 v{gg+1}, 22, v{gg}")
        for k in (0, 2):
            e(f"  v_sub_u32 v{a+k}, v{a+k}, v{gg+1}")
            e(f"  v_sub_u32 v{a+k+1}, v{a+k+1}, v{gg+1}")
            e(f"  v_ashrrev_i32 v{gg+2}, 22, v{a+k}")
            e(f"  v_add_u32 v{gg+2}, v{gg+2}, v{gg}")
            e(f"  v_ashrrev_i32 v{gg+2}, 10, v{gg+2}")
            e(f"  v_sub_u32 v{a+k+1}, v{a+k+1}, v{gg+2}")
        for k in range(4):
            e(f"  v_cvt_f32_i32 v{a+k}, v{a+k}")
        lab(f"LB_e{u}_f")
        e(f"  v_cvt_pk_bf16_f32 v{PK}, v{a}, v{a+1}")
        e(f"  v_cvt_pk_bf16_f32 v{PK+1}, v{a+2}, v{a+3}")
        e(f"  v_mfma_f32_16x16x16_bf16 v[{gg}:{gg+3}], v[{WS}:{WS+1}], v[{RBF+2*u}:{RBF+2*u+1}], 0")
        e(f"  v_mfma_f32_16x16x16_bf16 v[{rr}:{rr+3}], v[{WR}:{WR+1}], v[{RBF+2*u}:{RBF+2*u+1}], 0")
        e(f"  v_mfma_f32_16x16x16_bf16 v[{a}:{a+3}], v[{WDS}:{WDS+1}], v[{PK}:{PK+1}], 0")
    def tile_stage2(u):
        a, gg = A_(u), G_(u)
        PK = PKS[u % 2]
        for k in range(4):
            e(f"  v_mul_f32 v{a+k}, v{a+k}, v{gg+k}")
        e(f"  v_cvt_pk_bf16_f32 v{PK}, v{a}, v{a+1}")
        e(f"  v_cvt_pk_bf16_f32 v{PK+1}, v{a+2}, v{a+3}")
        e("  s_nop 1")
        e(f"  v_mfma_f32_16x16x16_bf16 v[{gg}:{gg+3}], v[{WU}:{WU+1}], v[{PK}:{PK+1}], 0")
    def tile_stage3(u):
        a, gg, rr = A_(u), G_(u), R_(u)
        m0, m1 = MR + 2 * u, MR + 2 * u + 1
        e(f"  v_lshlrev_b32 v{a}, 16, v{m0}")
        e(f"  v_and_b32 v{a+1}, 0xffff0000, v{m0}")
        e(f"  v_lshlrev_b32 v{a+2}, 16, v{m1}")
        e(f"  v_and_b32 v{a+3}, 0xffff0000, v{m1}")
        for k in range(4):
            e(f"  v_fmac_f32 v{a+k}, v{gg+k}, v{rr+k}")
        e(f"  v_cvt_pk_bf16_f32 v{m0}, v{a}, v{a+1}")
        e(f"  v_cvt_pk_bf16_f32 v{m1}, v{a+2}, v{a+3}")
        e(f"  s_mov_b32 s81, {u*8192}")
        e(f"  buffer_store_dwordx2 v[{m0}:{m1}], v{t6}, s[28:31], s81 offen{BOUT}")
    def guarded(u, fn, tag):
        if u == 6:
            e(f"  s_cmp_ge_u32 s{sW}, {W6}")
            e(f"  s_cbranch_scc1 LB_skip6{tag}")
            if tag == "b":
                e(f"  s_cmp_eq_u32 s{sMode}, 2")
        fn(u)
        if u == 6:
            lab(f"LB_skip6{tag}")
    for u in (0, 1, 2, 3):
        tile_reads(u)
    e(f"  s_lshl_b32 s80, s{sW}, 9")
    e(f"  v_lshlrev_b32 v{t6}, 5, v{vL16}")
    e(f"  v_lshl_add_u32 v{t6}, v{g}, 3, v{t6}")
    e(f"  v_add_u32 v{t6}, s80, v{t6}")
    e(f"  v_mov_b32 v{vMx}, 0")
    for gi, grp in enumerate(((0, 1, 2, 3), (4, 5, 6))):
        if gi:
            for u in grp:
                guarded(u, tile_reads, "a")
        e("  s_waitcnt lgkmcnt(0)")
        e(f"  s_cmp_eq_u32 s{sMode}, 2")
        for u in grp:
            guarded(u, tile_stage1, "b")
        e("  s_nop 7")
        for u in grp:
            guarded(u, tile_stage2, "c")
        if gi == 0:
            e("  s_waitcnt vmcnt(0)              ; m rows")
        e("  s_nop 7")
        for u in grp:
            guarded(u, tile_stage3, "d")
    e(f"  v_cmp_lt_u32 s[{sOv}:{sOv+1}], 0x1ff, v{vMx}" if False else f"  v_cmp_lt_u32 vcc, 0x1ff, v{vMx}")
    e(f"  s_mov_b64 s[{sOv}:{sOv+1}], vcc")
    stamp("B", "epilogue done")
    stamp_dump("B", 78, sW)
    e(f"  s_cmp_eq_u32 s{sMode}, 2")
    e("  s_cbranch_scc1 LB_end")
    e(f"  s_cmp_eq_u64 s[{sOv}:{sOv+1}], 0")
    e("  s_cbranch_scc1 LB_noov")
    e(f"  v_mov_b32 v{t3}, {B_FLAG}")
    e(f"  ds_write_b32 v{t3}, v{vOne}")
    lab("LB_noov")
    e("  s_waitcnt lgkmcnt(0)")
    e("  s_barrier")
    e(f"  v_mov_b32 v{t3}, {B_FLAG}")
    e(f"  ds_read_b32 v{t3}, v{t3}")
    e("  s_waitcnt lgkmcnt(0)")
    e(f"  v_readfirstlane_b32 s80, v{t3}")
    e("  s_cmp_eq_u32 s80, 0")
    e("  s_cbranch_scc1 LB_end")
    e("  s_waitcnt vmcnt(0)")
    e("  s_barrier")
    e(f"  s_mov_b32 s{sMode}, 2")
    e("  s_branch LB_start")
    lab("LB_end")
    e("  s_endpgm")

def descriptor(name, vgpr, sgpr):
    e(".p2align 6")
    e(f".amdhsa_kernel {name}")
    e(f"  .amdhsa_next_free_vgpr {vgpr}")
    e(f"  .amdhsa_next_free_sgpr {sgpr}")
    e(f"  .amdhsa_accum_offset {vgpr}")
    e("  .amdhsa_group_segment_fixed_size 0")
    e("  .amdhsa_kernarg_size 112")
    e("  .amdhsa_user_sgpr_count 2")
    e("  .amdhsa_user_sgpr_kernarg_segment_ptr 1")
    e("  .amdhsa_system_sgpr_workgroup_id_x 1")
    e("  .amdhsa_float_denorm_mode_32 3")
    e(".end_amdhsa_kernel")

header = open("standalone__molecular_angular_gemnet__graph.s.ref").read().split("; Override launch")[0]
e(header.rstrip())
for _l in """
; Algorithm (L = 1, so sbf @ w_sbf = cos(f*angle[t]) * (rbf[o] @ w_sbf) and the per-triplet layer factors out of the sum):
;   S[o]   = sum over triplets t with idx_out[t] = o of cos(f*angle[t]) * m[idx_in[t]]
;   out[o] = m[o] + (((S[o] @ w_down) * (rbf[o] @ w_sbf)) @ w_up) * (rbf[o] @ w_rbf)
; Launch 1 (part): each workgroup counting-sorts one chunk of ~25000 triplets in LDS by (output bin, source range) and
;   writes 6-byte records (source row, local output row, bf16 cosine) plus a table of run starts to d_ws.  It also
;   reads its slice of m (into the last-level cache) and reports max |m| and the smallest non-zero row maximum.
; Launch 2 (main): one workgroup per bin of 1564 output edges.  Every wave keeps the records of its 16 runs in
;   registers and walks them in 8 phases of ascending source rows (all workgroups sweep m together, so the gathers
;   hit L2), accumulates cos * m in LDS and finishes with the edge-level layers on the matrix cores.
;   Accumulation: products of two bf16 values are exact in f32; they are rounded to a 22-bit fixed-point grid scaled to
;   max |m| and added with 64-bit integer LDS atomics (two features each; LDS f32 atomics are serialised per lane).
;   If the rows of m span more than 2^10 in magnitude, m or a cosine is not finite, or an edge has more than 511
;   triplets, the bin is accumulated with f32 LDS atomics instead.
""".strip().split("\n"):
    e(_l)
for _k in os.environ.get("LIST", "AB"):
    if _k == "A":
        e(f"; @launch kernel={KA} grid=({NCH},1,1) block=(1024,1,1) lds={A_LDS}")
    elif _k == "e":
        e(f"; @launch kernel=empty_kernel grid=(1,1,1) block=(64,1,1) lds=0")
    elif _k == "E":
        e(f"; @launch kernel=empty_kernel grid=(250,1,1) block=(1024,1,1) lds=131072")
    else:
        e(f"; @launch kernel={KB} grid=({NB},1,1) block=(1024,1,1) lds={B_LDS}")
e('.amdgcn_target "amdgcn-amd-amdhsa--gfx950"')
e(".text")
kernel_a()
kernel_b()
if set(os.environ.get("LIST", "")) & set("eE"):
    e(".globl empty_kernel")
    e(".p2align 8")
    e(".type empty_kernel,@function")
    lab("empty_kernel")
    e("  s_endpgm")
e('.section .rodata,"a"')
if set(os.environ.get("LIST", "")) & set("eE"):
    descriptor("empty_kernel", 128, 102)
descriptor(KA, 128, 102)
descriptor(KB, 128, 102)
dst = sys.argv[1] if len(sys.argv) > 1 else "standalone__molecular_angular_gemnet__graph.s"
open(dst, "w").write("\n".join(out) + "\n")
print("wrote", dst, len(out), "lines")
```

```python
import sys, os
DBG = os.environ.get("DBG", "")
ABL = os.environ.get("ABL", "").split(",")
def pol(name, default=""):
    v = os.environ.get(name, default)
    return (" " + v.replace("+", " ")) if v else ""
PF = int(os.environ.get("PF", "0"))
PFLEAD = int(os.environ.get("PFLEAD", "8"))
BARN = int(os.environ.get("BARN", "4"))
SPREAD = int(os.environ.get("SPREAD", "1"))
AOPT = os.environ.get("AOPT", "bmnd")
TOUCH = os.environ.get("TOUCH", "")
EARLYBAR = int(os.environ.get("EARLYBAR", "0"))
BURST = int(os.environ.get("BURST", "0"))
XMAP = int(os.environ.get("XMAP", "1"))
ATT = pol("ATT"); AIN = pol("AIN", "nt"); ATAB = pol("ATAB"); AST = pol("AST", "sc0+sc1"); BREC = pol("BREC"); BOUT = pol("BOUT", "nt"); BM = pol("BM")

KA = "standalone__molecular_angular_gemnet__graph_part_kernel"
KB = "standalone__molecular_angular_gemnet__graph_kernel"

E = 400000
T = 6400000
NWG = int(os.environ.get("NWG", "256"))
NCH = NWG
NB = NWG
UNITS = T // 64
CH = -(-UNITS // NCH) * 64
NBIG = UNITS - (CH // 64 - 1) * NCH if UNITS % NCH else NCH
BINE = -(-(-(-E // NB)) // 4) * 4
TP = CH * NCH
assert T % 64 == 0 and NBIG * CH + (NCH - NBIG) * (CH - 64) == T and 24576 < CH - 64 * (NBIG < NCH) and CH <= 25600
KS = 8

WS_RECA = 256
WS_RECC = WS_RECA + TP * 4
WS_TT = WS_RECA + TP * 6
WS_STATS = WS_TT + NCH * 1024

A_HIST = 0
A_C = 8192
A_A = A_C + -(-CH * 2 // 16) * 16
A_SCR = A_A + -(-CH * 4 // 16) * 16
A_LDS = A_SCR + 128

ROWB = 80
B_FLAG = 130048
B_LDS = 131072

out = []
def e(s=""):
    out.append(s)
def lab(s):
    out.append(s + ":")

DPP = "row_mask:0xf bank_mask:0xf"

def srd(reg, lo, hi, size, stride=0):
    e(f"  s_mov_b32 s{reg}, s{lo}")
    e(f"  s_and_b32 s{reg+1}, s{hi}, 0xffff")
    if stride:
        e(f"  s_or_b32 s{reg+1}, s{reg+1}, {stride << 16:#x}")
    e(f"  s_mov_b32 s{reg+2}, {size}")
    e(f"  s_mov_b32 s{reg+3}, 0x20000")

def srd_off(reg, lo, hi, off_sreg, size, const=0, stride=0):
    e(f"  s_add_u32 s{reg}, s{lo}, s{off_sreg}")
    e(f"  s_addc_u32 s{reg+1}, s{hi}, 0")
    if const:
        e(f"  s_add_u32 s{reg}, s{reg}, {const}")
        e(f"  s_addc_u32 s{reg+1}, s{reg+1}, 0")
    e(f"  s_and_b32 s{reg+1}, s{reg+1}, 0xffff")
    if stride:
        e(f"  s_or_b32 s{reg+1}, s{reg+1}, {stride << 16:#x}")
    e(f"  s_mov_b32 s{reg+2}, {size}")
    e(f"  s_mov_b32 s{reg+3}, 0x20000")

STAMP = os.environ.get("STAMP", "")
stamp_n = [0]
def stamp(kern, name):
    if STAMP != kern:
        return
    k = stamp_n[0]; stamp_n[0] += 1
    assert k < 16
    e(f"  s_memrealtime s[84:85]")
    e("  s_waitcnt lgkmcnt(0)")
    e(f"  s_mov_b32 s{86+k}, s84")
    if k == 0:
        e("  s_memtime s[84:85]")
        e("  s_waitcnt lgkmcnt(0)")
        e("  s_mov_b32 s101, s84")
    print("stamp", k, name)
def stamp_dump(kern, wsreg, wavereg):
    if STAMP != kern:
        return
    e("  s_memtime s[84:85]")
    e("  s_waitcnt lgkmcnt(0)")
    e("  s_sub_u32 s101, s84, s101")
    e(f"  s_cmp_eq_u32 s{wavereg}, {int(os.environ.get('STAMPW', '0'))}")
    e(f"  s_cbranch_scc0 L{kern}_nodump")
    e(f"  s_lshl_b32 s84, s2, 6")
    e(f"  s_add_u32 s84, s84, {128<<20}")
    e(f"  s_add_u32 s102-18, s{wsreg}, s84".replace("s102-18", "s84"))
    e(f"  s_addc_u32 s85, s{wsreg+1}, 0")
    e("  v_mov_b32 v60, 0")
    for k in range(16):
        e(f"  v_mov_b32 v61, s{86+k}")
        e(f"  global_store_dword v60, v61, s[84:85] offset:{4*k}")
    lab(f"L{kern}_nodump")

def wave_scan_add(v):
    for sh in (1, 2, 4, 8):
        e("  s_nop 1")
        e(f"  v_add_u32_dpp v{v}, v{v}, v{v} row_shr:{sh} {DPP}")
    e("  s_nop 1")
    e(f"  v_add_u32_dpp v{v}, v{v}, v{v} row_bcast:15 row_mask:0xa bank_mask:0xf")
    e("  s_nop 1")
    e(f"  v_add_u32_dpp v{v}, v{v}, v{v} row_bcast:31 row_mask:0xc bank_mask:0xf")

def wave_max(vs):
    steps = [f"row_shr:{sh} {DPP}" for sh in (1, 2, 4, 8)] + \
            ["row_bcast:15 row_mask:0xa bank_mask:0xf", "row_bcast:31 row_mask:0xc bank_mask:0xf"]
    for st in steps:
        e("  s_nop 1")
        for v in vs:
            e(f"  v_max_u32_dpp v{v}, v{v}, v{v} {st}")

class VmQ:
    def __init__(self):
        self.q = []
    def issue(self, tag):
        self.q.append(tag)
        assert len(self.q) <= 63, "vmcnt overflow"
    def wait(self, tag):
        if tag not in self.q:
            return
        idx = max(i for i, t in enumerate(self.q) if t == tag)
        n = len(self.q) - 1 - idx
        assert n <= 63
        e(f"  s_waitcnt vmcnt({n})")
        self.q = self.q[idx + 1:]
    def drain(self):
        e("  s_waitcnt vmcnt(0)")
        self.q = []

def kernel_a():
    I0, O0, AN0, RK0, TB0 = 8, 34, 60, 74, 100
    vOne, vF = 2, 3
    t0, t1, t2, t3, t4, t5 = 116, 117, 118, 119, 120, 121
    e(f".globl {KA}")
    e(".p2align 8")
    e(f".type {KA},@function")
    lab(KA)
    e(f"  s_cmp_ge_u32 s2, {NCH}")
    e("  s_cbranch_scc1 LA_end")
    e("  s_load_dwordx4 s[4:7], s[0:1], 0")
    e("  s_load_dwordx2 s[8:9], s[0:1], 16      ; idx_out")
    e("  s_load_dwordx2 s[10:11], s[0:1], 32    ; angle")
    e("  s_load_dwordx2 s[12:13], s[0:1], 48    ; ang_freq")
    e("  s_load_dwordx2 s[14:15], s[0:1], 104   ; ws")
    e("  v_lshrrev_b32 v1, 6, v0")
    e("  v_lshlrev_b32 v4, 4, v0                ; t*16")
    e("  v_readfirstlane_b32 s50, v1")
    e("  v_lshlrev_b32 v5, 3, v0                ; t*8")
    e("  v_lshlrev_b32 v6, 2, v0                ; t*4")
    e("  v_lshlrev_b32 v7, 1, v0                ; t*2")
    e(f"  v_mov_b32 v{vOne}, {2 if 'd' in AOPT else 1}")
    e(f"  v_mov_b32 v{t0}, 0")
    e(f"  v_mov_b32 v{t1}, 0")
    e(f"  s_mul_i32 s46, s2, {CH//64 - 1 if NBIG < NCH else CH//64}")
    if NBIG < NCH:
        e(f"  s_min_u32 s47, s2, {NBIG}")
        e("  s_add_u32 s46, s46, s47")
    e("  s_lshl_b32 s48, s46, 8")
    e("  s_lshl_b32 s49, s46, 7")
    e(f"  s_mov_b32 s59, {CH - 64 if NBIG < NCH else CH}")
    if NBIG < NCH:
        e(f"  s_cmp_lt_u32 s2, {NBIG}")
        e(f"  s_cselect_b32 s59, {CH}, s59")
    e(f"  s_mul_i32 s64, s2, {CH*4}")
    e(f"  s_mul_i32 s65, s2, {CH*2}")
    e("  s_lshl_b32 s51, s2, 10")
    e("  s_lshl_b32 s52, s2, 3")
    e("  s_waitcnt lgkmcnt(0)")
    srd_off(16, 6, 7, 48, CH * 4)
    srd_off(20, 8, 9, 48, CH * 4)
    srd_off(24, 10, 11, 49, CH * 2)
    e("  s_lshl_b32 s18, s59, 2")
    e("  s_lshl_b32 s22, s59, 2")
    e("  s_lshl_b32 s26, s59, 1")
    vm = VmQ()
    APIPE = int(os.environ.get("APIPE", "7"))
    e(f"  ds_write_b64 v5, v[{t0}:{t1}] offset:{A_HIST}")
    e(f"  v_and_b32 v{t2}, 15, v0")
    e(f"  v_lshlrev_b32 v{t2}, 3, v{t2}")
    e(f"  v_add_u32 v{t2}, {A_SCR}, v{t2}")
    e(f"  ds_write_b64 v{t2}, v[{t0}:{t1}]")
    e(f"  global_load_ushort v{vF}, v{t0}, s[12:13]")
    vm.issue("F")
    stamp("A", "start")
    def loads(u):
        e(f"  s_mov_b32 s53, {u*16384}")
        e(f"  s_mov_b32 s54, {u*8192}")
        if u < 6:
            e(f"  buffer_load_dwordx4 v[{I0+4*u}:{I0+4*u+3}], v4, s[16:19], s53 offen{AIN}")
            e(f"  buffer_load_dwordx4 v[{O0+4*u}:{O0+4*u+3}], v4, s[20:23], s53 offen{AIN}")
            e(f"  buffer_load_dwordx2 v[{AN0+2*u}:{AN0+2*u+1}], v5, s[24:27], s54 offen{AIN}")
        else:
            e(f"  buffer_load_dword v{I0+24}, v6, s[16:19], s53 offen{AIN}")
            e(f"  buffer_load_dword v{O0+24}, v6, s[20:23], s53 offen{AIN}")
            e(f"  buffer_load_ushort v{AN0+12}, v7, s[24:27], s54 offen{AIN}")
        for _ in range(3):
            vm.issue(f"L{u}")
    APRIO = int(os.environ.get("APRIO", "1"))
    NPRE = 2 if 'b' in AOPT else 0
    if APRIO:
        e("  s_setprio 3")
    for u in range(NPRE):
        loads(u)
    e("  s_waitcnt lgkmcnt(0)")
    e("  s_barrier")
    for u in range(NPRE, min(APIPE, 7)):
        loads(u)
    if APRIO:
        e("  s_setprio 0")
    e(f"  s_mul_i32 s47, s2, {BINE*32}")
    srd_off(28, 4, 5, 47, BINE * 32)
    e(f"  s_sub_u32 s47, {E*32}, s47")
    e(f"  s_min_u32 s30, s47, {BINE*32}")
    srd_off(32, 14, 15, 64, CH * 4, WS_RECA)
    srd_off(36, 14, 15, 65, CH * 2, WS_RECC)
    e("  s_lshl_b32 s34, s59, 2")
    e("  s_lshl_b32 s38, s59, 1")
    e("  s_sub_u32 s59, s59, 24576")
    srd_off(40, 14, 15, 51, 1024, WS_TT)
    srd_off(44, 14, 15, 52, 8, WS_STATS)
    assert (((2**32 + BINE - 1)//BINE) * BINE - 2**32) * E < 2**32
    e(f"  s_mov_b32 s55, {(2**32 + BINE - 1)//BINE}")
    e(f"  s_mov_b32 s56, {(2**32 * KS)//E - 1}")
    e(f"  s_mov_b32 s57, {-BINE}")

    def rec(r):
        I, O, R = I0 + r, O0 + r, RK0 + r
        e(f"  v_mul_hi_u32_u24 v{t0}, s55, v{O}           ; bin")
        e(f"  v_mul_hi_u32_u24 v{t1}, s56, v{I}           ; i range")
        e(f"  v_mad_i32_i24 v{t2}, v{t0}, s57, v{O}       ; o local")
        e(f"  v_lshlrev_b32 v{t1}, 2, v{t1}")
        e(f"  v_lshl_add_u32 v{O}, v{t0}, 5, v{t1}        ; key*4")
        e(f"  v_lshl_or_b32 v{I}, v{t2}, 19, v{I}")
        e(f"  ds_add_rtn_u32 v{R}, v{O}, v{vOne} offset:{A_HIST}")
        e(f"  v_not_b32 v{I}, v{I}")

    def cospair(a):
        x, y = t3, t4
        e(f"  v_lshlrev_b32 v{x}, 16, v{a}")
        e(f"  v_and_b32 v{y}, 0xffff0000, v{a}")
        e(f"  v_mul_f32 v{x}, v{vF}, v{x}")
        e(f"  v_mul_f32 v{y}, v{vF}, v{y}")
        e(f"  v_cvt_pk_bf16_f32 v{t5}, v{x}, v{y}")
        e(f"  v_lshlrev_b32 v{x}, 16, v{t5}")
        e(f"  v_and_b32 v{y}, 0xffff0000, v{t5}")
        e(f"  v_mul_f32 v{x}, 0.15915494, v{x}")
        e(f"  v_mul_f32 v{y}, 0.15915494, v{y}")
        e(f"  v_fract_f32 v{x}, v{x}")
        e(f"  v_fract_f32 v{y}, v{y}")
        e(f"  v_cos_f32 v{x}, v{x}")
        e(f"  v_cos_f32 v{y}, v{y}")
        e("  s_nop 0")
        e(f"  v_cvt_pk_bf16_f32 v{a}, v{x}, v{y}")
        e(f"  v_and_b32 v{x}, 0x7fff7fff, v{a}")
        e(f"  v_pk_max_u16 v{gC}, v{gC}, v{x}")

    gC = 124
    e(f"  v_mov_b32 v{gC}, 0")
    if "A" in TOUCH:
        e(f"  v_mov_b32 v{t3}, 0")
        for r in (32, 36, 40, 44):
            e(f"  buffer_load_dword v127, v{t3}, s[{r}:{r+3}], 0 offen")
            vm.issue("touch")
    stamp("A", "loads issued")
    ABAR = int(os.environ.get("ABAR", "0"))
    for u in range(7):
        if ABAR == 2 and u + APIPE < 7:
            e("  s_setprio 3")
            loads(u + APIPE)
            e("  s_setprio 0")
            e("  s_barrier")
        vm.wait(f"L{u}")
        if u in (0, 3, 6):
            stamp("A", f"group {u} arrived")
        if ABAR != 2 and u + APIPE < 7:
            if ABAR == 1:
                e("  s_setprio 3")
            loads(u + APIPE)
            if ABAR == 1:
                e("  s_setprio 0")
                e("  s_barrier")
        if u == 0:
            e(f"  v_lshlrev_b32 v{vF}, 16, v{vF}")
        if u < 6:
            for r in range(4):
                rec(4 * u + r)
            cospair(AN0 + 2 * u)
            cospair(AN0 + 2 * u + 1)
        else:
            e(f"  v_cmp_gt_u32 vcc, s59, v0")
            e("  s_and_saveexec_b64 s[62:63], vcc")
            e("  s_cbranch_execz LA_r24")
            rec(24)
            cospair(AN0 + 12)
            lab("LA_r24")
            e("  s_mov_b64 exec, s[62:63]")
    for u in range(4):
        e(f"  s_mov_b32 s53, {u*16384}")
        e(f"  buffer_load_dwordx4 v[{TB0+4*u}:{TB0+4*u+3}], v4, s[28:31], s53 offen{ATAB}")
    e("  s_waitcnt lgkmcnt(0)")
    e("  s_barrier")
    stamp("A", "hist barrier")
    e(f"  ds_read_b64 v[{t0}:{t1}], v5 offset:{A_HIST}")
    e("  s_waitcnt lgkmcnt(0)")
    e(f"  v_add_u32 v{t2}, v{t0}, v{t1}")
    e(f"  v_mov_b32 v{t3}, v{t2}")
    wave_scan_add(t3)
    e(f"  s_lshl_b32 s58, s50, 2")
    e(f"  s_add_u32 s58, s58, {A_SCR}")
    e(f"  v_mov_b32 v{t4}, s58")
    e("  s_mov_b32 exec_lo, 0")
    e("  s_mov_b32 exec_hi, 0x80000000")
    e(f"  ds_write_b32 v{t4}, v{t3}")
    e("  s_mov_b64 exec, -1")
    e("  s_waitcnt lgkmcnt(0)")
    e("  s_barrier")
    e(f"  v_and_b32 v{t4}, 15, v0")
    e(f"  v_lshlrev_b32 v{t4}, 2, v{t4}")
    e(f"  v_add_u32 v{t4}, {A_SCR}, v{t4}")
    e(f"  ds_read_b32 v{t4}, v{t4}")
    e("  s_waitcnt lgkmcnt(0)")
    e(f"  v_mov_b32 v{t5}, v{t4}")
    for sh in (1, 2, 4, 8):
        e("  s_nop 1")
        e(f"  v_add_u32_dpp v{t5}, v{t5}, v{t5} row_shr:{sh} {DPP}")
    e(f"  v_sub_u32 v{t5}, v{t5}, v{t4}")
    e("  s_nop 0")
    e(f"  v_readlane_b32 s58, v{t5}, s50")
    e(f"  v_sub_u32 v{t3}, v{t3}, v{t2}")
    e("  s_nop 0")
    e(f"  v_add_u32 v{t2}, s58, v{t3}         ; start0")
    e(f"  v_add_u32 v{t3}, v{t2}, v{t0}       ; start1")
    e(f"  ds_write_b64 v5, v[{t2}:{t3}] offset:{A_HIST}")
    e(f"  v_and_b32 v{t4}, 3, v0")
    e(f"  v_cmp_eq_u32 vcc, 0, v{t4}")
    e("  s_and_saveexec_b64 s[60:61], vcc")
    if 'd' in AOPT:
        e(f"  v_lshrrev_b32 v{t2}, 1, v{t2}")
    e(f"  buffer_store_dword v{t2}, v0, s[40:43], 0 offen{ATT}")
    e("  s_mov_b64 exec, s[60:61]")
    e("  s_waitcnt lgkmcnt(0)")
    e("  s_barrier")
    stamp("A", "scan done")
    def put(r):
        e(f"  v_add_u32 v{O0+r}, v{O0+r}, v{RK0+r}")
        if 'd' in AOPT:
            e(f"  v_lshlrev_b32 v{RK0+r}, 1, v{O0+r}")
        else:
            e(f"  v_lshlrev_b32 v{RK0+r}, 2, v{O0+r}")
            e(f"  v_lshlrev_b32 v{O0+r}, 1, v{O0+r}")
        e(f"  ds_write_b32 v{RK0+r}, v{I0+r} offset:{A_A}")
        op = "ds_write_b16" if r % 2 == 0 else "ds_write_b16_d16_hi"
        e(f"  {op} v{O0+r}, v{AN0+r//2} offset:{A_C}")
    if 'm' in AOPT:
        for r in range(24):
            e(f"  ds_read_b32 v{O0+r}, v{O0+r} offset:{A_HIST}")
        e(f"  v_cmp_gt_u32 vcc, s59, v0")
        e("  s_and_saveexec_b64 s[62:63], vcc")
        e("  s_cbranch_execz LA_s24")
        e(f"  ds_read_b32 v{O0+24}, v{O0+24} offset:{A_HIST}")
        e("  s_waitcnt lgkmcnt(0)")
        put(24)
        lab("LA_s24")
        e("  s_mov_b64 exec, s[62:63]")
        e("  s_waitcnt lgkmcnt(0)")
        for r in range(24):
            put(r)
    else:
        groups = [range(0, 8), range(8, 16), range(16, 24), range(24, 25)]
        for g in groups:
            if g[0] == 24:
                e(f"  v_cmp_gt_u32 vcc, s59, v0")
                e("  s_and_saveexec_b64 s[62:63], vcc")
                e("  s_cbranch_execz LA_s24")
            for r in g:
                e(f"  ds_read_b32 v{O0+r}, v{O0+r} offset:{A_HIST}")
            e("  s_waitcnt lgkmcnt(0)")
            for r in g:
                put(r)
            if g[0] == 24:
                lab("LA_s24")
                e("  s_mov_b64 exec, s[62:63]")
    stamp("A", "scatter issued")
    def table_stats():
        gM, gR = 122, 123
        e(f"  v_mov_b32 v{gM}, 0")
        e(f"  v_mov_b32 v{gR}, 0")
        e("  s_mov_b32 s58, 0x7fff7fff")
        if 'n' not in AOPT:
            e("  s_waitcnt vmcnt(0)")
        for u in range(4):
            b = TB0 + 4 * u
            for k in range(4):
                e(f"  v_and_b32 v{b+k}, s58, v{b+k}")
            e(f"  v_pk_max_u16 v{b}, v{b}, v{b+1}")
            e(f"  v_pk_max_u16 v{b+2}, v{b+2}, v{b+3}")
            e(f"  v_pk_max_u16 v{b}, v{b}, v{b+2}")
            e(f"  v_lshrrev_b32 v{b+1}, 16, v{b}")
            e(f"  v_and_b32 v{b}, 0xffff, v{b}")
            e(f"  v_max_u32 v{b}, v{b}, v{b+1}")
            e("  s_nop 1")
            e(f"  v_max_u32_dpp v{b}, v{b}, v{b} quad_perm:[1,0,3,2] {DPP}")
            e(f"  v_max_u32 v{gM}, v{gM}, v{b}")
            e(f"  v_sub_u32 v{b}, 0x8000, v{b}")
            e(f"  v_and_b32 v{b}, 0x7fff, v{b}")
            e(f"  v_max_u32 v{gR}, v{gR}, v{b}")
        e(f"  v_lshrrev_b32 v{t5}, 16, v{gC}")
        e(f"  v_and_b32 v{gC}, 0xffff, v{gC}")
        e(f"  v_max_u32 v{gC}, v{gC}, v{t5}")
        e(f"  v_cmp_lt_u32 vcc, 0x3f80, v{gC}")
        e(f"  v_mov_b32 v{t5}, 0x7fff")
        e("  s_nop 0")
        e(f"  v_cndmask_b32 v{t5}, 0, v{t5}, vcc")
        e(f"  v_max_u32 v{gM}, v{gM}, v{t5}")
        wave_max([gM, gR])
        e(f"  v_mov_b32 v{t4}, {A_SCR + 64}")
        e("  s_mov_b32 exec_lo, 0")
        e("  s_mov_b32 exec_hi, 0x80000000")
        e(f"  ds_max_u32 v{t4}, v{gM}")
        e(f"  ds_max_u32 v{t4}, v{gR} offset:4")
        e("  s_mov_b64 exec, -1")
    if 'n' not in AOPT:
        table_stats()
    e("  s_waitcnt lgkmcnt(0)")
    e("  s_barrier")
    stamp("A", "scatter barrier")
    d = 8
    for u in range(6):
        e(f"  v_add_u32 v{t0}, {u*16384}, v4")
        e(f"  ds_read_b128 v[{d+4*u}:{d+4*u+3}], v{t0} offset:{A_A}")
    for u in range(3):
        e(f"  v_add_u32 v{t0}, {u*16384}, v4")
        e(f"  ds_read_b128 v[{d+24+4*u}:{d+24+4*u+3}], v{t0} offset:{A_C}")
    NX = 0 if 'n' in AOPT else 1
    if NX:
        e(f"  v_mov_b32 v{t4}, {A_SCR + 64}")
        e(f"  ds_read_b64 v[{t2}:{t3}], v{t4}")
    for u in range(6):
        e(f"  s_mov_b32 s53, {u*16384}")
        e(f"  s_waitcnt lgkmcnt({8+NX-u})")
        e(f"  buffer_store_dwordx4 v[{d+4*u}:{d+4*u+3}], v4, s[32:35], s53 offen{AST}")
    for u in range(3):
        e(f"  s_mov_b32 s53, {u*16384}")
        e(f"  s_waitcnt lgkmcnt({2+NX-u})")
        e(f"  buffer_store_dwordx4 v[{d+24+4*u}:{d+24+4*u+3}], v4, s[36:39], s53 offen{AST}")
    stamp("A", "stores issued")
    if STAMP == "A":
        e("  s_waitcnt vmcnt(0)")
    stamp("A", "stores done")
    stamp_dump("A", 14, 50)
    e(f"  s_cmp_lt_u32 s50, {-(-(CH*4 - 6*16384) // 1024)}")
    e("  s_cbranch_scc0 LA_t1")
    e(f"  v_add_u32 v{t0}, {6*16384}, v4")
    e(f"  ds_read_b128 v[60:63], v{t0} offset:{A_A}")
    e(f"  s_mov_b32 s53, {6*16384}")
    e("  s_waitcnt lgkmcnt(0)")
    e(f"  buffer_store_dwordx4 v[60:63], v4, s[32:35], s53 offen{AST}")
    lab("LA_t1")
    e(f"  s_cmp_lt_u32 s50, {-(-(CH*2 - 3*16384) // 1024)}")
    e("  s_cbranch_scc0 LA_t2")
    e(f"  v_add_u32 v{t0}, {3*16384}, v4")
    e(f"  ds_read_b128 v[64:67], v{t0} offset:{A_C}")
    e(f"  s_mov_b32 s53, {3*16384}")
    e("  s_waitcnt lgkmcnt(0)")
    e(f"  buffer_store_dwordx4 v[64:67], v4, s[36:39], s53 offen{AST}")
    lab("LA_t2")
    if 'n' in AOPT:
        e("  s_waitcnt vmcnt(10)")
        table_stats()
        e("  s_waitcnt lgkmcnt(0)")
        e("  s_barrier")
    e("  s_cmp_eq_u32 s50, 15")
    e("  s_cbranch_scc0 LA_end")
    if 'n' in AOPT:
        e(f"  v_mov_b32 v{t4}, {A_SCR + 64}")
        e(f"  ds_read_b64 v[{t2}:{t3}], v{t4}")
    e("  s_waitcnt lgkmcnt(0)")
    e(f"  v_mov_b32 v{t0}, 0")
    e("  s_mov_b32 exec_lo, 1")
    e("  s_mov_b32 exec_hi, 0")
    e(f"  buffer_store_dwordx2 v[{t2}:{t3}], v{t0}, s[44:47], 0 offen{ATT}")
    lab("LA_end")
    e("  s_endpgm")

def kernel_b():
    vH8, vIA, vIB, vCB, vOne = 1, 2, 4, 6, 7
    G0 = 8
    OA, CH_ = 40, 44
    P0 = 48
    t0, t1, t2, t3, t4, t5, t6, t7, t8 = range(56, 65)
    BS, LN = 65, 69
    XZ = 65
    CU = 73
    vL16 = 77
    WDS = 78
    RCP, RA0 = 80, 96
    def RA(s, j): return RA0 + 4 * j + s
    def RCp(s, j): return RCP + 4 * (j // 2) + s
    RBF, CEN, MR = 96, 70, 110
    WTR = [110, 111, 112, 113, 114, 115, 71, 72, 73, 74, 75, 76]
    WD, WU, WS, WR = 80, 82, 84, 86
    sW, sMag, sSc, sInv, sMode, sMsk, sN80, sTail, sPerm = 50, 53, 54, 55, 56, 57, 58, 59, 60
    sOv = 66
    vm = VmQ()
    e(f".globl {KB}")
    e(".p2align 8")
    e(f".type {KB},@function")
    lab(KB)
    e(f"  s_cmp_ge_u32 s2, {NB}")
    e("  s_cbranch_scc1 LB_end")
    if XMAP:
        e("  s_and_b32 s3, s2, 7")
        e("  s_lshr_b32 s2, s2, 3")
        e(f"  s_mul_i32 s4, s3, {NB//8}")
        if NB % 8:
            e(f"  s_min_u32 s3, s3, {NB%8}")
            e("  s_add_u32 s2, s2, s3")
        e("  s_add_u32 s2, s2, s4")
    e("  s_load_dwordx2 s[78:79], s[0:1], 104    ; ws")
    e("  s_load_dwordx2 s[68:69], s[0:1], 0      ; m")
    e("  s_load_dwordx2 s[70:71], s[0:1], 24     ; dist")
    e("  s_load_dwordx2 s[40:41], s[0:1], 40     ; centers")
    e("  s_load_dwordx4 s[44:47], s[0:1], 56")
    e("  s_load_dwordx4 s[72:75], s[0:1], 72")
    e("  s_load_dwordx2 s[76:77], s[0:1], 88     ; out")
    e("  v_lshrrev_b32 v8, 6, v0")
    e(f"  v_and_b32 v{vL16}, 15, v0")
    e(f"  v_readfirstlane_b32 s{sW}, v8")
    e(f"  v_and_b32 v9, 1, v0")
    e(f"  v_lshlrev_b32 v{vH8}, 3, v9")
    e(f"  v_lshlrev_b32 v{vIA+1}, 4, v9")
    e(f"  v_lshlrev_b32 v{vIB+1}, 4, v9")
    e(f"  v_mov_b32 v{vCB}, {2047*ROWB}")
    e(f"  v_mov_b32 v{vOne}, 1")
    e(f"  s_mul_i32 s80, s2, {BINE*32}")
    e(f"  s_mul_i32 s81, s2, {BINE*2}")
    e(f"  s_mov_b32 s{sMode}, 0")
    e(f"  s_mov_b32 s{sMsk}, 0x7ffff")
    e(f"  s_mov_b32 s{sN80}, {-ROWB}")
    e(f"  s_mov_b32 s{sPerm}, 0x05040100")
    e("  s_waitcnt lgkmcnt(0)")
    e(f"  s_add_u32 s82, s78, {WS_TT}")
    e("  s_addc_u32 s83, s79, 0")
    srd(16, 82, 83, NCH * 1024)
    e(f"  s_add_u32 s82, s78, {WS_STATS}")
    e("  s_addc_u32 s83, s79, 0")
    srd(20, 82, 83, NCH * 8)
    e(f"  s_add_u32 s82, s78, {WS_RECA - 4}")
    e("  s_addc_u32 s83, s79, 0")
    srd(4, 82, 83, TP + 1, 4)
    e(f"  s_add_u32 s82, s78, {WS_RECC - 2}")
    e("  s_addc_u32 s83, s79, 0")
    srd(8, 82, 83, TP + 1, 2)
    srd(12, 68, 69, E, 32)
    srd_off(24, 68, 69, 80, BINE * 32)
    srd_off(28, 76, 77, 80, BINE * 32)
    srd_off(32, 70, 71, 81, BINE * 2)
    e(f"  s_sub_u32 s82, {E*32}, s80")
    e(f"  s_min_u32 s26, s82, {BINE*32}")
    e("  s_mov_b32 s30, s26")
    e("  s_lshr_b32 s34, s26, 4")
    lab("LB_start")
    BPRIO = int(os.environ.get("BPRIO", "1"))
    if BPRIO:
        e("  s_setprio 3")
    stamp("B", "start")
    ST0 = 48
    def run_table_loads():
        g = t0
        e(f"  v_and_b32 v{t1}, 63, v0")
        e(f"  v_lshrrev_b32 v{g}, 4, v{t1}            ; g = lane>>4")
        e(f"  s_lshl_b32 s80, s{sW}, 4")
        e(f"  v_add_u32 v{t1}, s80, v{g}              ; 16w+g")
        e(f"  s_lshl_b32 s81, s2, 2")
        e(f"  v_lshlrev_b32 v{t2}, 10, v{t1}")
        e(f"  v_add_u32 v{t2}, s81, v{t2}")
        for s in range(4):
            e(f"  v_add_u32 v{t3}, {s*4096}, v{t2}")
            e(f"  buffer_load_dwordx2 v[{G0+2*s}:{G0+2*s+1}], v{t3}, s[16:19], 0 offen")
            vm.issue("T")
    rp_n = [0]
    def run_params():
        rp_n[0] += 1
        e(f"  s_mov_b32 s80, {CH}")
        for s in range(4):
            e(f"  v_add_u32 v{t3}, {4*s}, v{t1}")
            e(f"  v_mad_u32_u24 v{t3}, v{t3}, s80, 1")
            e(f"  v_add_u32 v{BS+s}, v{t3}, v{G0+2*s}")
            if NB == 256:
                e(f"  s_cmp_eq_u32 s2, {NB-1}")
                e(f"  s_cbranch_scc0 LB_rp{rp_n[0]}_{s}")
                e(f"  v_add_u32 v{t4}, {4*s}, v{t1}")
                e(f"  v_cmp_gt_u32 vcc, {NBIG}, v{t4}")
                e(f"  v_mov_b32 v{t4}, {CH}")
                e(f"  v_mov_b32 v{G0+2*s+1}, {CH-64}")
                e(f"  v_cndmask_b32 v{G0+2*s+1}, v{G0+2*s+1}, v{t4}, vcc")
                lab(f"LB_rp{rp_n[0]}_{s}")
            e(f"  v_sub_u32 v{LN+s}, v{G0+2*s+1}, v{G0+2*s}")
    run_table_loads()
    e(f"  v_and_b32 v{t3}, 63, v0")
    e(f"  v_lshlrev_b32 v{t3}, 3, v{t3}")
    for s in range(4):
        e(f"  buffer_load_dwordx2 v[{ST0+2*s}:{ST0+2*s+1}], v{t3}, s[20:23], 0 offen offset:{s*512}")
        vm.issue("ST")
    if "B" in TOUCH:
        e(f"  v_mov_b32 v{t3}, 0")
        for r in (28,):
            e(f"  buffer_load_dword v79, v{t3}, s[{r}:{r+3}], 0 offen")
            vm.issue("touch")
    ZR = 40
    for k in range(4):
        e(f"  v_mov_b32 v{ZR+k}, 0")
    e(f"  v_lshlrev_b32 v{t3}, 4, v0")
    for u in range(8):
        if u == 4:
            e(f"  v_add_u32 v{t3}, 0x10000, v{t3}")
        e(f"  ds_write_b128 v{t3}, v[{ZR}:{ZR+3}] offset:{(u%4)*16384}")
    vm.wait("T")
    stamp("B", "T arrived")
    run_params()
    e(f"  v_max_u32 v{t3}, v{LN}, v{LN+1}")
    e(f"  v_max3_u32 v{t3}, v{t3}, v{LN+2}, v{LN+3}")
    e(f"  v_cmp_lt_u32 vcc, 0x80, v{t3}")
    e(f"  s_cmp_lg_u64 vcc, 0")
    e(f"  s_cselect_b32 s{sTail}, 1, 0")
    def LZ(s, j): return RCp(s, j) if j % 2 == 0 else G0 + 8 + 4 * (j // 2) + s
    if EARLYBAR:
        e("  s_waitcnt lgkmcnt(0)")
        e("  s_barrier")
    for s in range(4):
        lp, lo, hi = t2, t4, t6
        e(f"  v_min_u32 v{lp}, 0x80, v{LN+s}          ; len'")
        e(f"  v_mov_b32 v{lo}, v{vL16}")
        e(f"  v_lshlrev_b32 v{lp}, 16, v{lp}")
        def msk(j):
            return f"s[{84+2*j}:{85+2*j}]" if (BURST and not STAMP) else "vcc"
        def lds(j):
            e(f"  s_mov_b64 exec, {msk(j)}")
            e(f"  buffer_load_ushort v{LZ(s,j)}, v{RA(s,j)}, s[8:11], 0 idxen{BREC}")
            vm.issue(f"C{s}_{j}")
            e(f"  buffer_load_dword v{RA(s,j)}, v{RA(s,j)}, s[4:7], 0 idxen{BREC}")
            vm.issue(f"A{s}_{j}")
        for j in range(8):
            e(f"  v_mul_hi_u32_u24 v{hi}, {(j+1) << 13:#x}, v{lp}     ; ((j+1)*len') >> 3")
            e(f"  v_cmp_lt_u32 {msk(j)}, v{lo}, v{hi}")
            e(f"  v_add_u32 v{t7}, v{BS+s}, v{lo}")
            e(f"  v_add_u32 v{lo}, v{hi}, v{vL16}")
            e(f"  v_cndmask_b32 v{RA(s,j)}, 0, v{t7}, {msk(j)}")
            if not (BURST and not STAMP):
                lds(j)
                e("  s_mov_b64 exec, -1")
        if BURST and not STAMP:
            for j in range(8):
                lds(j)
            e("  s_mov_b64 exec, -1")
        if s == 2:
            vm.wait("A0_7")
    if BPRIO:
        e("  s_setprio 0")
    stamp("B", "rec loads issued")
    a, b = ST0, ST0 + 1
    e(f"  v_max3_u32 v{a}, v{ST0}, v{ST0+2}, v{ST0+4}")
    e(f"  v_max3_u32 v{b}, v{ST0+1}, v{ST0+3}, v{ST0+5}")
    e(f"  v_max_u32 v{a}, v{a}, v{ST0+6}")
    e(f"  v_max_u32 v{b}, v{b}, v{ST0+7}")
    wave_max([a, b])
    e("  s_nop 0")
    e(f"  v_readlane_b32 s80, v{a}, 63")
    e(f"  v_readlane_b32 s81, v{b}, 63")
    e("  s_nop 0")
    e("  s_lshr_b32 s82, s80, 7")
    e("  s_sub_u32 s81, 0x8000, s81")
    e("  s_lshr_b32 s81, s81, 7")
    e("  s_sub_u32 s83, s82, s81")
    e(f"  s_cmp_eq_u32 s{sMode}, 2")
    e("  s_cbranch_scc1 LB_float")
    e("  s_cmp_ge_u32 s80, 0x7f80")
    e("  s_cbranch_scc1 LB_float")
    e("  s_cmp_lt_u32 s82, 32")
    e("  s_cbranch_scc1 LB_float")
    e("  s_cmp_gt_u32 s82, 200")
    e("  s_cbranch_scc1 LB_float")
    e("  s_cmp_gt_i32 s83, 10")
    e("  s_cbranch_scc1 LB_float")
    e(f"  s_mov_b32 s{sMag}, 0x4b400000")
    e("  s_sub_u32 s83, 275, s82")
    e(f"  s_lshl_b32 s{sSc}, s83, 23")
    e("  s_sub_u32 s83, s82, 21")
    e(f"  s_lshl_b32 s{sInv}, s83, 23")
    e("  s_branch LB_fast")
    lab("LB_float")
    e(f"  s_mov_b32 s{sMode}, 2")
    e(f"  s_mov_b32 s{sMag}, 0")
    e(f"  s_mov_b32 s{sSc}, 1.0")
    e(f"  s_mov_b32 s{sInv}, 1.0")
    e(f"  s_mov_b32 s{sTail}, 1")
    e("  s_waitcnt vmcnt(0) lgkmcnt(0)")
    e("  s_barrier")
    e("  s_branch LB_generic")
    lab("LB_fast")
    for s in range(4):
        for jj in range(4):
            vm.wait(f"C{s}_{2*jj+1}")
            e(f"  v_perm_b32 v{RCp(s,2*jj)}, v{LZ(s,2*jj+1)}, v{RCp(s,2*jj)}, s{sPerm}")
    vm.drain()
    stamp("B", "records arrived")

    def dec_idx(ra, dst):
        e(f"  v_bfi_b32 v{dst}, v{ra}, 0, s{sMsk}")
    def dec_rest(ra, rc, hi_half, s):
        e(f"  v_bfe_u32 v{t7}, v{ra}, 19, 11")
        if hi_half:
            e(f"  v_and_b32 v{t8}, 0xffff0000, v{rc}")
        else:
            e(f"  v_lshlrev_b32 v{t8}, 16, v{rc}")
        e(f"  v_mad_i32_i24 v{OA+s}, v{t7}, s{sN80}, v{vCB}")
        e(f"  v_mul_f32 v{CH_+s}, s{sSc}, v{t8}")
        e(f"  ds_add_u32 v{OA+s}, v{vOne} offset:64")
    def gather(s, h, src, tag):
        g0 = G0 + 8 * s + 4 * h
        vi = vIA if h == 0 else vIB
        qp = "[0,0,2,2]" if h == 0 else "[1,1,3,3]"
        e(f"  v_mov_b32_dpp v{vi}, v{src} quad_perm:{qp} {DPP}")
        if "nogather" in ABL:
            e(f"  v_mov_b32 v{vi}, -1")
        e(f"  buffer_load_dwordx4 v[{g0}:{g0+3}], v[{vi}:{vi+1}], s[12:15], 0 idxen offen")
        vm.issue(tag)
    def consume(s, h, isfloat):
        qp = "[0,0,2,2]" if h == 0 else "[1,1,3,3]"
        g0 = G0 + 8 * s + 4 * h
        ad, ch, cl = t0 + 3 * h, t1 + 3 * h, t2 + 3 * h
        e(f"  v_mov_b32_dpp v{ch}, v{CH_+s} quad_perm:{qp} {DPP}")
        e(f"  v_add_u32_dpp v{ad}, v{OA+s}, v{vH8} quad_perm:{qp} {DPP}")
        e(f"  v_lshrrev_b32 v{cl}, 16, v{ch}")
        for k in range(4):
            e(f"  v_dot2_f32_bf16 v{P0+2*k+1}, v{g0+k}, v{ch}, s{sMag}")
            e(f"  v_dot2_f32_bf16 v{P0+2*k}, v{g0+k}, v{cl}, s{sMag}")
            if "noatom" in ABL:
                continue
            if isfloat:
                e(f"  ds_add_f32 v{ad}, v{P0+2*k} offset:{16*k}")
                e(f"  ds_add_f32 v{ad}, v{P0+2*k+1} offset:{16*k+4}")
            else:
                e(f"  ds_add_u64 v{ad}, v[{P0+2*k}:{P0+2*k+1}] offset:{16*k}")
    if not EARLYBAR:
        e("  s_waitcnt lgkmcnt(0)")
        e("  s_barrier")
    stamp("B", "after barrier")
    tI = t6
    for s in range(4):
        dec_idx(RA(s, 0), tI)
        dec_rest(RA(s, 0), RCp(s, 0), False, s)
        gather(s, 0, tI, f"g0_{s}_0")
        gather(s, 1, tI, f"g0_{s}_1")

    def epi_loads1():
        gg, nn = t7, vL16
        e(f"  v_and_b32 v{t8}, 63, v0")
        e(f"  v_lshrrev_b32 v{gg}, 4, v{t8}")
        e(f"  v_lshlrev_b32 v{t8}, 6, v{gg}")
        e(f"  v_lshl_add_u32 v{t8}, v{nn}, 1, v{t8}     ; 64g + 2n")
        for k, off in enumerate((0, 32, 256, 288)):
            e(f"  global_load_ushort v{WTR[k]}, v{t8}, s[72:73] offset:{off}"); vm.issue("E1")
        for k in range(2):
            e(f"  global_load_ushort v{WTR[8+k]}, v{t8}, s[44:45] offset:{32*k}"); vm.issue("E1")
            e(f"  global_load_ushort v{WTR[10+k]}, v{t8}, s[46:47] offset:{32*k}"); vm.issue("E1")
        e(f"  v_lshlrev_b32 v{t8}, 7, v{gg}")
        e(f"  v_lshl_add_u32 v{t8}, v{nn}, 1, v{t8}     ; 128g + 2n")
        for k in range(4):
            e(f"  global_load_ushort v{WTR[4+k]}, v{t8}, s[74:75] offset:{32*k}"); vm.issue("E1")
        e(f"  v_lshlrev_b32 v{t8}, 2, v{gg}")
        e(f"  global_load_dword v{CEN}, v{t8}, s[40:41]"); vm.issue("E1")
        e(f"  s_lshl_b32 s80, s{sW}, 5")
        e(f"  v_lshl_add_u32 v{t8}, v{nn}, 1, s80")
        for u in range(7):
            e(f"  buffer_load_ushort v{RBF+2*u}, v{t8}, s[32:35], 0 offen offset:{u*512}"); vm.issue("E1")
            e(f"  v_mov_b32 v{RBF+2*u+1}, 0")
    def epi_loads2():
        gg, nn = t7, vL16
        e(f"  v_and_b32 v{t8}, 63, v0")
        e(f"  v_lshrrev_b32 v{gg}, 4, v{t8}")
        e(f"  s_lshl_b32 s80, s{sW}, 9")
        e(f"  v_lshlrev_b32 v{t8}, 5, v{nn}")
        e(f"  v_lshl_add_u32 v{t8}, v{gg}, 3, v{t8}")
        e(f"  v_add_u32 v{t8}, s80, v{t8}")
        for u in range(7):
            e(f"  s_mov_b32 s81, {u*8192}")
            e(f"  buffer_load_dwordx2 v[{MR+2*u}:{MR+2*u+1}], v{t8}, s[24:27], s81 offen{BM}"); vm.issue("E2")
    def epi_prep_w():
        e(f"  v_lshl_or_b32 v{WD}, v{WTR[1]}, 16, v{WTR[0]}")
        e(f"  v_lshl_or_b32 v{WD+1}, v{WTR[3]}, 16, v{WTR[2]}")
        e(f"  v_lshl_or_b32 v{WU}, v{WTR[5]}, 16, v{WTR[4]}")
        e(f"  v_lshl_or_b32 v{WU+1}, v{WTR[7]}, 16, v{WTR[6]}")
        e(f"  v_lshl_or_b32 v{WR}, v{WTR[9]}, 16, v{WTR[8]}")
        e(f"  v_lshl_or_b32 v{WS}, v{WTR[11]}, 16, v{WTR[10]}")
        e(f"  v_mov_b32 v{WR+1}, 0")
        e(f"  v_mov_b32 v{WS+1}, 0")
        c0, c1, x, y, p = XZ, XZ + 1, XZ + 2, XZ + 3, XZ + 4
        for k in range(2):
            e(f"  v_lshlrev_b32 v{x}, 16, v{WD+k}")
            e(f"  v_and_b32 v{y}, 0xffff0000, v{WD+k}")
            e(f"  v_mul_f32 v{x}, s{sInv}, v{x}")
            e(f"  v_mul_f32 v{y}, s{sInv}, v{y}")
            e(f"  v_cvt_pk_bf16_f32 v{WDS+k}, v{x}, v{y}")
        e(f"  v_lshlrev_b32 v{c0}, 16, v{CEN}")
        e(f"  v_and_b32 v{c1}, 0xffff0000, v{CEN}")
    def epi_prep_rbf(u):
        c0, c1, x, y, p = XZ, XZ + 1, XZ + 2, XZ + 3, XZ + 4
        r = RBF + 2 * u
        e("  s_mov_b32 s80, 0xc1200000           ; -10.0")
        e("  s_mov_b32 s81, 0x3fb8aa3b           ; log2(e)")
        e(f"  v_lshlrev_b32 v{r}, 16, v{r}")
        e(f"  v_sub_f32 v{x}, v{r}, v{c0}")
        e(f"  v_sub_f32 v{y}, v{r}, v{c1}")
        for op in ("sq", "m10", "exp"):
            e(f"  v_cvt_pk_bf16_f32 v{p}, v{x}, v{y}")
            e(f"  v_lshlrev_b32 v{x}, 16, v{p}")
            e(f"  v_and_b32 v{y}, 0xffff0000, v{p}")
            if op == "sq":
                e(f"  v_mul_f32 v{x}, v{x}, v{x}")
                e(f"  v_mul_f32 v{y}, v{y}, v{y}")
            elif op == "m10":
                e(f"  v_mul_f32 v{x}, s80, v{x}")
                e(f"  v_mul_f32 v{y}, s80, v{y}")
            else:
                e(f"  v_mul_f32 v{x}, s81, v{x}")
                e(f"  v_mul_f32 v{y}, s81, v{y}")
                e(f"  v_exp_f32 v{x}, v{x}")
                e(f"  v_exp_f32 v{y}, v{y}")
                e("  s_nop 0")
        e(f"  v_cvt_pk_bf16_f32 v{r}, v{x}, v{y}")
    def epi_prep():
        epi_prep_w()
        for u in range(7):
            epi_prep_rbf(u)

    LASTBAR = int(os.environ.get("LASTBAR", "6"))
    FIRSTBAR = int(os.environ.get("FIRSTBAR", "0"))
    for j in range(8):
        BARPOS = int(os.environ.get("BARPOS", "0"))
        dobar = "nobar" not in ABL and FIRSTBAR <= j <= LASTBAR and str(j) in os.environ.get("BARSET", "01234567")
        if dobar and BARPOS == 0:
            e("  s_barrier")
        if j in (0, 1, 2, 4, 6, 7):
            stamp("B", f"phase {j} begin")
        for s in range(4):
            last = (j == 7)
            if s and s % BARN == 0 and not last:
                e("  s_barrier")
            if not last:
                dec_idx(RA(s, j + 1), tI)
            vm.wait(f"g{j}_{s}_0")
            consume(s, 0, False)
            if not last:
                gather(s, 0, tI, f"g{j+1}_{s}_0")
            if dobar and BARPOS == 1 and s == 0:
                e("  s_barrier")
            vm.wait(f"g{j}_{s}_1")
            consume(s, 1, False)
            if not last:
                gather(s, 1, tI, f"g{j+1}_{s}_1")
                if dobar and BARPOS == 2 and s == 0:
                    e("  s_barrier")
                dec_rest(RA(s, j + 1), RCp(s, j + 1), (j + 1) % 2 == 1, s)
            step = 4 * j + s
            if step == 15:
                epi_loads1()
            if SPREAD:
                if step == 19:
                    vm.wait("E1")
                    epi_prep_w()
                if 20 <= step <= 26:
                    epi_prep_rbf(step - 20)
                if step == 27:
                    epi_loads2()
            else:
                if step == 20:
                    vm.wait("E1")
                    epi_prep()
                if step == 23:
                    epi_loads2()
    stamp("B", "main done")
    e(f"  s_cmp_eq_u32 s{sTail}, 0")
    e("  s_cbranch_scc1 LB_epi")
    if "notail" in ABL:
        e("  s_branch LB_epi")
    lab("LB_generic")
    q_main = list(vm.q)
    e("  s_waitcnt vmcnt(0)")
    run_table_loads()
    e("  s_waitcnt vmcnt(0)")
    run_params()
    for s in range(4):
        e(f"  v_min_u32 v{CU+s}, 0x80, v{LN+s}")
        e(f"  s_cmp_eq_u32 s{sMode}, 2")
        e(f"  s_cbranch_scc0 LB_gen{s}_c")
        e(f"  v_mov_b32 v{CU+s}, 0")
        lab(f"LB_gen{s}_c")
    for s in range(4):
        lab(f"LB_gen{s}")
        e(f"  v_add_u32 v{t0}, v{CU+s}, v{vL16}")
        e(f"  v_cmp_lt_u32 vcc, v{t0}, v{LN+s}")
        e(f"  s_cbranch_vccz LB_gen{s}_done")
        e(f"  v_add_u32 v{t0}, v{BS+s}, v{t0}")
        e(f"  v_add_u32 v{CU+s}, 16, v{CU+s}")
        e(f"  v_cndmask_b32 v{t0}, -1, v{t0}, vcc")
        e(f"  buffer_load_dword v{G0+8}, v{t0}, s[4:7], 0 idxen")
        e(f"  buffer_load_ushort v{G0+9}, v{t0}, s[8:11], 0 idxen")
        e("  s_waitcnt vmcnt(0)")
        dec_idx(G0 + 8, tI)
        dec_rest(G0 + 8, G0 + 9, False, 0)
        gather(0, 0, tI, "x")
        gather(0, 1, tI, "x")
        e("  s_waitcnt vmcnt(0)")
        e(f"  s_cmp_eq_u32 s{sMode}, 2")
        e(f"  s_cbranch_scc1 LB_gen{s}_f")
        consume(0, 0, False)
        consume(0, 1, False)
        e(f"  s_branch LB_gen{s}")
        lab(f"LB_gen{s}_f")
        consume(0, 0, True)
        consume(0, 1, True)
        e(f"  s_branch LB_gen{s}")
        lab(f"LB_gen{s}_done")
    e(f"  s_cmp_eq_u32 s{sMode}, 2")
    e("  s_cbranch_scc0 LB_epi")
    epi_loads1()
    e("  s_waitcnt vmcnt(0)")
    epi_prep()
    epi_loads2()
    lab("LB_epi")
    vm.q = []
    e("  s_waitcnt lgkmcnt(0)")
    e("  s_barrier")
    stamp("B", "final barrier")
    g = t0
    e(f"  v_and_b32 v{t1}, 63, v0")
    e(f"  v_lshrrev_b32 v{g}, 4, v{t1}")
    e(f"  s_lshl_b32 s80, s{sW}, 4")
    e(f"  v_add_u32 v{t1}, s80, v{vL16}")
    e(f"  v_mul_u32_u24 v{t1}, {ROWB}, v{t1}")
    e(f"  v_lshl_add_u32 v{t2}, v{g}, 4, v{t1}")
    e(f"  v_add_u32 v{t3}, {4*256*ROWB}, v{t1}")
    e(f"  v_add_u32 v{t4}, {4*256*ROWB}, v{t2}")
    A_ = lambda u: 8 + 12 * (u % 4)
    G_ = lambda u: 8 + 12 * (u % 4) + 4
    R_ = lambda u: 8 + 12 * (u % 4) + 8
    PKS = (66, 68)
    X0, vMx = 70, 71
    NTILE = -(-BINE // 16)
    W6 = NTILE - 96
    def tile_reads(u):
        ra, rc = (t2, t1) if u < 4 else (t4, t3)
        e(f"  ds_read_b128 v[{A_(u)}:{A_(u)+3}], v{ra} offset:{(u%4)*256*ROWB}")
        e(f"  ds_read_b32 v{G_(u)}, v{rc} offset:{(u%4)*256*ROWB+64}")
    def tile_stage1(u):
        a, gg, rr = A_(u), G_(u), R_(u)
        PK = PKS[u % 2]
        e(f"  v_max_u32 v{vMx}, v{vMx}, v{gg}")
        e(f"  s_cbranch_scc1 LB_e{u}_f")
        e(f"  v_mul_u32_u24 v{gg}, 0x12d, v{gg}")
        e(f"  v_lshlrev_b32 v{gg+1}, 22, v{gg}")
        for k in (0, 2):
            e(f"  v_sub_u32 v{a+k}, v{a+k}, v{gg+1}")
            e(f"  v_sub_u32 v{a+k+1}, v{a+k+1}, v{gg+1}")
            e(f"  v_ashrrev_i32 v{gg+2}, 22, v{a+k}")
            e(f"  v_add_u32 v{gg+2}, v{gg+2}, v{gg}")
            e(f"  v_ashrrev_i32 v{gg+2}, 10, v{gg+2}")
            e(f"  v_sub_u32 v{a+k+1}, v{a+k+1}, v{gg+2}")
        for k in range(4):
            e(f"  v_cvt_f32_i32 v{a+k}, v{a+k}")
        lab(f"LB_e{u}_f")
        e(f"  v_cvt_pk_bf16_f32 v{PK}, v{a}, v{a+1}")
        e(f"  v_cvt_pk_bf16_f32 v{PK+1}, v{a+2}, v{a+3}")
        e(f"  v_mfma_f32_16x16x16_bf16 v[{gg}:{gg+3}], v[{WS}:{WS+1}], v[{RBF+2*u}:{RBF+2*u+1}], 0")
        e(f"  v_mfma_f32_16x16x16_bf16 v[{rr}:{rr+3}], v[{WR}:{WR+1}], v[{RBF+2*u}:{RBF+2*u+1}], 0")
        e(f"  v_mfma_f32_16x16x16_bf16 v[{a}:{a+3}], v[{WDS}:{WDS+1}], v[{PK}:{PK+1}], 0")
    def tile_stage2(u):
        a, gg = A_(u), G_(u)
        PK = PKS[u % 2]
        for k in range(4):
            e(f"  v_mul_f32 v{a+k}, v{a+k}, v{gg+k}")
        e(f"  v_cvt_pk_bf16_f32 v{PK}, v{a}, v{a+1}")
        e(f"  v_cvt_pk_bf16_f32 v{PK+1}, v{a+2}, v{a+3}")
        e("  s_nop 1")
        e(f"  v_mfma_f32_16x16x16_bf16 v[{gg}:{gg+3}], v[{WU}:{WU+1}], v[{PK}:{PK+1}], 0")
    def tile_stage3(u):
        a, gg, rr = A_(u), G_(u), R_(u)
        m0, m1 = MR + 2 * u, MR + 2 * u + 1
        e(f"  v_lshlrev_b32 v{a}, 16, v{m0}")
        e(f"  v_and_b32 v{a+1}, 0xffff0000, v{m0}")
        e(f"  v_lshlrev_b32 v{a+2}, 16, v{m1}")
        e(f"  v_and_b32 v{a+3}, 0xffff0000, v{m1}")
        for k in range(4):
            e(f"  v_fmac_f32 v{a+k}, v{gg+k}, v{rr+k}")
        e(f"  v_cvt_pk_bf16_f32 v{m0}, v{a}, v{a+1}")
        e(f"  v_cvt_pk_bf16_f32 v{m1}, v{a+2}, v{a+3}")
        e(f"  s_mov_b32 s81, {u*8192}")
        e(f"  buffer_store_dwordx2 v[{m0}:{m1}], v{t6}, s[28:31], s81 offen{BOUT}")
    def guarded(u, fn, tag):
        if u == 6:
            e(f"  s_cmp_ge_u32 s{sW}, {W6}")
            e(f"  s_cbranch_scc1 LB_skip6{tag}")
            if tag == "b":
                e(f"  s_cmp_eq_u32 s{sMode}, 2")
        fn(u)
        if u == 6:
            lab(f"LB_skip6{tag}")
    for u in (0, 1, 2, 3):
        tile_reads(u)
    e(f"  s_lshl_b32 s80, s{sW}, 9")
    e(f"  v_lshlrev_b32 v{t6}, 5, v{vL16}")
    e(f"  v_lshl_add_u32 v{t6}, v{g}, 3, v{t6}")
    e(f"  v_add_u32 v{t6}, s80, v{t6}")
    e(f"  v_mov_b32 v{vMx}, 0")
    for gi, grp in enumerate(((0, 1, 2, 3), (4, 5, 6))):
        if gi:
            for u in grp:
                guarded(u, tile_reads, "a")
        e("  s_waitcnt lgkmcnt(0)")
        e(f"  s_cmp_eq_u32 s{sMode}, 2")
        for u in grp:
            guarded(u, tile_stage1, "b")
        e("  s_nop 7")
        for u in grp:
            guarded(u, tile_stage2, "c")
        if gi == 0:
            e("  s_waitcnt vmcnt(0)              ; m rows")
        e("  s_nop 7")
        for u in grp:
            guarded(u, tile_stage3, "d")
    e(f"  v_cmp_lt_u32 s[{sOv}:{sOv+1}], 0x1ff, v{vMx}" if False else f"  v_cmp_lt_u32 vcc, 0x1ff, v{vMx}")
    e(f"  s_mov_b64 s[{sOv}:{sOv+1}], vcc")
    stamp("B", "epilogue done")
    stamp_dump("B", 78, sW)
    e(f"  s_cmp_eq_u32 s{sMode}, 2")
    e("  s_cbranch_scc1 LB_end")
    e(f"  s_cmp_eq_u64 s[{sOv}:{sOv+1}], 0")
    e("  s_cbranch_scc1 LB_noov")
    e(f"  v_mov_b32 v{t3}, {B_FLAG}")
    e(f"  ds_write_b32 v{t3}, v{vOne}")
    lab("LB_noov")
    e("  s_waitcnt lgkmcnt(0)")
    e("  s_barrier")
    e(f"  v_mov_b32 v{t3}, {B_FLAG}")
    e(f"  ds_read_b32 v{t3}, v{t3}")
    e("  s_waitcnt lgkmcnt(0)")
    e(f"  v_readfirstlane_b32 s80, v{t3}")
    e("  s_cmp_eq_u32 s80, 0")
    e("  s_cbranch_scc1 LB_end")
    e("  s_waitcnt vmcnt(0)")
    e("  s_barrier")
    e(f"  s_mov_b32 s{sMode}, 2")
    e("  s_branch LB_start")
    lab("LB_end")
    e("  s_endpgm")

def descriptor(name, vgpr, sgpr):
    e(".p2align 6")
    e(f".amdhsa_kernel {name}")
    e(f"  .amdhsa_next_free_vgpr {vgpr}")
    e(f"  .amdhsa_next_free_sgpr {sgpr}")
    e(f"  .amdhsa_accum_offset {vgpr}")
    e("  .amdhsa_group_segment_fixed_size 0")
    e("  .amdhsa_kernarg_size 112")
    e("  .amdhsa_user_sgpr_count 2")
    e("  .amdhsa_user_sgpr_kernarg_segment_ptr 1")
    e("  .amdhsa_system_sgpr_workgroup_id_x 1")
    e("  .amdhsa_float_denorm_mode_32 3")
    e(".end_amdhsa_kernel")

header = open("standalone__molecular_angular_gemnet__graph.s.ref").read().split("; Override launch")[0]
e(header.rstrip())
for _l in """
; Algorithm (L = 1, so sbf @ w_sbf = cos(f*angle[t]) * (rbf[o] @ w_sbf) and the per-triplet layer factors out of the sum):
;   S[o]   = sum over triplets t with idx_out[t] = o of cos(f*angle[t]) * m[idx_in[t]]
;   out[o] = m[o] + (((S[o] @ w_down) * (rbf[o] @ w_sbf)) @ w_up) * (rbf[o] @ w_rbf)
; Launch 1 (part): each workgroup counting-sorts one chunk of ~25000 triplets in LDS by (output bin, source range) and
;   writes 6-byte records (source row, local output row, bf16 cosine) plus a table of run starts to d_ws.  It also
;   reads its slice of m (into the last-level cache) and reports max |m| and the smallest non-zero row maximum.
; Launch 2 (main): one workgroup per bin of 1564 output edges.  Every wave keeps the records of its 16 runs in
;   registers and walks them in 8 phases of ascending source rows (all workgroups sweep m together, so the gathers
;   hit L2), accumulates cos * m in LDS and finishes with the edge-level layers on the matrix cores.
;   Accumulation: products of two bf16 values are exact in f32; they are rounded to a 22-bit fixed-point grid scaled to
;   max |m| and added with 64-bit integer LDS atomics (two features each; LDS f32 atomics are serialised per lane).
;   If the rows of m span more than 2^10 in magnitude, m or a cosine is not finite, or an edge has more than 511
;   triplets, the bin is accumulated with f32 LDS atomics instead.
""".strip().split("\n"):
    e(_l)
for _k in os.environ.get("LIST", "AB"):
    if _k == "A":
        e(f"; @launch kernel={KA} grid=({NCH},1,1) block=(1024,1,1) lds={A_LDS}")
    elif _k == "e":
        e(f"; @launch kernel=empty_kernel grid=(1,1,1) block=(64,1,1) lds=0")
    elif _k == "E":
        e(f"; @launch kernel=empty_kernel grid=(250,1,1) block=(1024,1,1) lds=131072")
    else:
        e(f"; @launch kernel={KB} grid=({NB},1,1) block=(1024,1,1) lds={B_LDS}")
e('.amdgcn_target "amdgcn-amd-amdhsa--gfx950"')
e(".text")
kernel_a()
kernel_b()
if set(os.environ.get("LIST", "")) & set("eE"):
    e(".globl empty_kernel")
    e(".p2align 8")
    e(".type empty_kernel,@function")
    lab("empty_kernel")
    e("  s_endpgm")
e('.section .rodata,"a"')
if set(os.environ.get("LIST", "")) & set("eE"):
    descriptor("empty_kernel", 128, 102)
descriptor(KA, 128, 102)
descriptor(KB, 128, 102)
dst = sys.argv[1] if len(sys.argv) > 1 else "standalone__molecular_angular_gemnet__graph.s"
open(dst, "w").write("\n".join(out) + "\n")
print("wrote", dst, len(out), "lines")
```

```python
import sys, os
DBG = os.environ.get("DBG", "")
ABL = os.environ.get("ABL", "").split(",")
def pol(name, default=""):
    v = os.environ.get(name, default)
    return (" " + v.replace("+", " ")) if v else ""
PF = int(os.environ.get("PF", "0"))
PFLEAD = int(os.environ.get("PFLEAD", "8"))
BARN = int(os.environ.get("BARN", "4"))
SPREAD = int(os.environ.get("SPREAD", "1"))
AOPT = os.environ.get("AOPT", "bmnd")
TOUCH = os.environ.get("TOUCH", "")
EARLYBAR = int(os.environ.get("EARLYBAR", "0"))
BURST = int(os.environ.get("BURST", "0"))
XMAP = int(os.environ.get("XMAP", "1"))
ATT = pol("ATT", "sc0+sc1"); AIN = pol("AIN", "nt"); ATAB = pol("ATAB"); AST = pol("AST", "sc0+sc1"); BREC = pol("BREC"); BOUT = pol("BOUT", "nt"); BM = pol("BM")

KA = "standalone__molecular_angular_gemnet__graph_part_kernel"
KB = "standalone__molecular_angular_gemnet__graph_kernel"

E = 400000
T = 6400000
NWG = int(os.environ.get("NWG", "256"))
NCH = NWG
NB = NWG
UNITS = T // 64
CH = -(-UNITS // NCH) * 64
NBIG = UNITS - (CH // 64 - 1) * NCH if UNITS % NCH else NCH
BINE = -(-(-(-E // NB)) // 4) * 4
TP = CH * NCH
assert T % 64 == 0 and NBIG * CH + (NCH - NBIG) * (CH - 64) == T and 24576 < CH - 64 * (NBIG < NCH) and CH <= 25600
KS = 8

WS_RECA = 256
WS_RECC = WS_RECA + TP * 4
WS_TT = WS_RECA + TP * 6
WS_STATS = WS_TT + NCH * 1024

A_HIST = 0
A_C = 8192
A_A = A_C + -(-CH * 2 // 16) * 16
A_SCR = A_A + -(-CH * 4 // 16) * 16
A_LDS = A_SCR + 128

ROWB = 80
B_FLAG = 130048
B_LDS = 131072

out = []
def e(s=""):
    out.append(s)
def lab(s):
    out.append(s + ":")

DPP = "row_mask:0xf bank_mask:0xf"

def srd(reg, lo, hi, size, stride=0):
    e(f"  s_mov_b32 s{reg}, s{lo}")
    e(f"  s_and_b32 s{reg+1}, s{hi}, 0xffff")
    if stride:
        e(f"  s_or_b32 s{reg+1}, s{reg+1}, {stride << 16:#x}")
    e(f"  s_mov_b32 s{reg+2}, {size}")
    e(f"  s_mov_b32 s{reg+3}, 0x20000")

def srd_off(reg, lo, hi, off_sreg, size, const=0, stride=0):
    e(f"  s_add_u32 s{reg}, s{lo}, s{off_sreg}")
    e(f"  s_addc_u32 s{reg+1}, s{hi}, 0")
    if const:
        e(f"  s_add_u32 s{reg}, s{reg}, {const}")
        e(f"  s_addc_u32 s{reg+1}, s{reg+1}, 0")
    e(f"  s_and_b32 s{reg+1}, s{reg+1}, 0xffff")
    if stride:
        e(f"  s_or_b32 s{reg+1}, s{reg+1}, {stride << 16:#x}")
    e(f"  s_mov_b32 s{reg+2}, {size}")
    e(f"  s_mov_b32 s{reg+3}, 0x20000")

STAMP = os.environ.get("STAMP", "")
stamp_n = [0]
def stamp(kern, name):
    if STAMP != kern:
        return
    k = stamp_n[0]; stamp_n[0] += 1
    assert k < 16
    e(f"  s_memrealtime s[84:85]")
    e("  s_waitcnt lgkmcnt(0)")
    e(f"  s_mov_b32 s{86+k}, s84")
    if k == 0:
        e("  s_memtime s[84:85]")
        e("  s_waitcnt lgkmcnt(0)")
        e("  s_mov_b32 s101, s84")
    print("stamp", k, name)
def stamp_dump(kern, wsreg, wavereg):
    if STAMP != kern:
        return
    e("  s_memtime s[84:85]")
    e("  s_waitcnt lgkmcnt(0)")
    e("  s_sub_u32 s101, s84, s101")
    e(f"  s_cmp_eq_u32 s{wavereg}, {int(os.environ.get('STAMPW', '0'))}")
    e(f"  s_cbranch_scc0 L{kern}_nodump")
    e(f"  s_lshl_b32 s84, s2, 6")
    e(f"  s_add_u32 s84, s84, {128<<20}")
    e(f"  s_add_u32 s102-18, s{wsreg}, s84".replace("s102-18", "s84"))
    e(f"  s_addc_u32 s85, s{wsreg+1}, 0")
    e("  v_mov_b32 v60, 0")
    for k in range(16):
        e(f"  v_mov_b32 v61, s{86+k}")
        e(f"  global_store_dword v60, v61, s[84:85] offset:{4*k}")
    lab(f"L{kern}_nodump")

def wave_scan_add(v):
    for sh in (1, 2, 4, 8):
        e("  s_nop 1")
        e(f"  v_add_u32_dpp v{v}, v{v}, v{v} row_shr:{sh} {DPP}")
    e("  s_nop 1")
    e(f"  v_add_u32_dpp v{v}, v{v}, v{v} row_bcast:15 row_mask:0xa bank_mask:0xf")
    e("  s_nop 1")
    e(f"  v_add_u32_dpp v{v}, v{v}, v{v} row_bcast:31 row_mask:0xc bank_mask:0xf")

def wave_max(vs):
    steps = [f"row_shr:{sh} {DPP}" for sh in (1, 2, 4, 8)] + \
            ["row_bcast:15 row_mask:0xa bank_mask:0xf", "row_bcast:31 row_mask:0xc bank_mask:0xf"]
    for st in steps:
        e("  s_nop 1")
        for v in vs:
            e(f"  v_max_u32_dpp v{v}, v{v}, v{v} {st}")

class VmQ:
    def __init__(self):
        self.q = []
    def issue(self, tag):
        self.q.append(tag)
        assert len(self.q) <= 63, "vmcnt overflow"
    def wait(self, tag):
        if tag not in self.q:
            return
        idx = max(i for i, t in enumerate(self.q) if t == tag)
        n = len(self.q) - 1 - idx
        assert n <= 63
        e(f"  s_waitcnt vmcnt({n})")
        self.q = self.q[idx + 1:]
    def drain(self):
        e("  s_waitcnt vmcnt(0)")
        self.q = []

def kernel_a():
    I0, O0, AN0, RK0, TB0 = 8, 34, 60, 74, 100
    vOne, vF = 2, 3
    t0, t1, t2, t3, t4, t5 = 116, 117, 118, 119, 120, 121
    e(f".globl {KA}")
    e(".p2align 8")
    e(f".type {KA},@function")
    lab(KA)
    e(f"  s_cmp_ge_u32 s2, {NCH}")
    e("  s_cbranch_scc1 LA_end")
    e("  s_load_dwordx4 s[4:7], s[0:1], 0")
    e("  s_load_dwordx2 s[8:9], s[0:1], 16      ; idx_out")
    e("  s_load_dwordx2 s[10:11], s[0:1], 32    ; angle")
    e("  s_load_dwordx2 s[12:13], s[0:1], 48    ; ang_freq")
    e("  s_load_dwordx2 s[14:15], s[0:1], 104   ; ws")
    e("  v_lshrrev_b32 v1, 6, v0")
    e("  v_lshlrev_b32 v4, 4, v0                ; t*16")
    e("  v_readfirstlane_b32 s50, v1")
    e("  v_lshlrev_b32 v5, 3, v0                ; t*8")
    e("  v_lshlrev_b32 v6, 2, v0                ; t*4")
    e("  v_lshlrev_b32 v7, 1, v0                ; t*2")
    e(f"  v_mov_b32 v{vOne}, {2 if 'd' in AOPT else 1}")
    e(f"  v_mov_b32 v{t0}, 0")
    e(f"  v_mov_b32 v{t1}, 0")
    e(f"  s_mul_i32 s46, s2, {CH//64 - 1 if NBIG < NCH else CH//64}")
    if NBIG < NCH:
        e(f"  s_min_u32 s47, s2, {NBIG}")
        e("  s_add_u32 s46, s46, s47")
    e("  s_lshl_b32 s48, s46, 8")
    e("  s_lshl_b32 s49, s46, 7")
    e(f"  s_mov_b32 s59, {CH - 64 if NBIG < NCH else CH}")
    if NBIG < NCH:
        e(f"  s_cmp_lt_u32 s2, {NBIG}")
        e(f"  s_cselect_b32 s59, {CH}, s59")
    e(f"  s_mul_i32 s64, s2, {CH*4}")
    e(f"  s_mul_i32 s65, s2, {CH*2}")
    e("  s_lshl_b32 s51, s2, 10")
    e("  s_lshl_b32 s52, s2, 3")
    e("  s_waitcnt lgkmcnt(0)")
    srd_off(16, 6, 7, 48, CH * 4)
    srd_off(20, 8, 9, 48, CH * 4)
    srd_off(24, 10, 11, 49, CH * 2)
    e("  s_lshl_b32 s18, s59, 2")
    e("  s_lshl_b32 s22, s59, 2")
    e("  s_lshl_b32 s26, s59, 1")
    vm = VmQ()
    APIPE = int(os.environ.get("APIPE", "7"))
    e(f"  ds_write_b64 v5, v[{t0}:{t1}] offset:{A_HIST}")
    e(f"  v_and_b32 v{t2}, 15, v0")
    e(f"  v_lshlrev_b32 v{t2}, 3, v{t2}")
    e(f"  v_add_u32 v{t2}, {A_SCR}, v{t2}")
    e(f"  ds_write_b64 v{t2}, v[{t0}:{t1}]")
    e(f"  global_load_ushort v{vF}, v{t0}, s[12:13]")
    vm.issue("F")
    stamp("A", "start")
    def loads(u):
        e(f"  s_mov_b32 s53, {u*16384}")
        e(f"  s_mov_b32 s54, {u*8192}")
        if u < 6:
            e(f"  buffer_load_dwordx4 v[{I0+4*u}:{I0+4*u+3}], v4, s[16:19], s53 offen{AIN}")
            e(f"  buffer_load_dwordx4 v[{O0+4*u}:{O0+4*u+3}], v4, s[20:23], s53 offen{AIN}")
            e(f"  buffer_load_dwordx2 v[{AN0+2*u}:{AN0+2*u+1}], v5, s[24:27], s54 offen{AIN}")
        else:
            e(f"  buffer_load_dword v{I0+24}, v6, s[16:19], s53 offen{AIN}")
            e(f"  buffer_load_dword v{O0+24}, v6, s[20:23], s53 offen{AIN}")
            e(f"  buffer_load_ushort v{AN0+12}, v7, s[24:27], s54 offen{AIN}")
        for _ in range(3):
            vm.issue(f"L{u}")
    APRIO = int(os.environ.get("APRIO", "1"))
    NPRE = 2 if 'b' in AOPT else 0
    if APRIO:
        e("  s_setprio 3")
    for u in range(NPRE):
        loads(u)
    e("  s_waitcnt lgkmcnt(0)")
    e("  s_barrier")
    for u in range(NPRE, min(APIPE, 7)):
        loads(u)
    if APRIO:
        e("  s_setprio 0")
    e(f"  s_mul_i32 s47, s2, {BINE*32}")
    srd_off(28, 4, 5, 47, BINE * 32)
    e(f"  s_sub_u32 s47, {E*32}, s47")
    e(f"  s_min_u32 s30, s47, {BINE*32}")
    srd_off(32, 14, 15, 64, CH * 4, WS_RECA)
    srd_off(36, 14, 15, 65, CH * 2, WS_RECC)
    e("  s_lshl_b32 s34, s59, 2")
    e("  s_lshl_b32 s38, s59, 1")
    e("  s_sub_u32 s59, s59, 24576")
    srd_off(40, 14, 15, 51, 1024, WS_TT)
    srd_off(44, 14, 15, 52, 8, WS_STATS)
    assert (((2**32 + BINE - 1)//BINE) * BINE - 2**32) * E < 2**32
    e(f"  s_mov_b32 s55, {(2**32 + BINE - 1)//BINE}")
    e(f"  s_mov_b32 s56, {(2**32 * KS)//E - 1}")
    e(f"  s_mov_b32 s57, {-BINE}")

    def rec(r):
        I, O, R = I0 + r, O0 + r, RK0 + r
        e(f"  v_mul_hi_u32_u24 v{t0}, s55, v{O}           ; bin")
        e(f"  v_mul_hi_u32_u24 v{t1}, s56, v{I}           ; i range")
        e(f"  v_mad_i32_i24 v{t2}, v{t0}, s57, v{O}       ; o local")
        e(f"  v_lshlrev_b32 v{t1}, 2, v{t1}")
        e(f"  v_lshl_add_u32 v{O}, v{t0}, 5, v{t1}        ; key*4")
        e(f"  v_lshl_or_b32 v{I}, v{t2}, 19, v{I}")
        e(f"  ds_add_rtn_u32 v{R}, v{O}, v{vOne} offset:{A_HIST}")
        e(f"  v_not_b32 v{I}, v{I}")

    def cospair(a):
        x, y = t3, t4
        e(f"  v_lshlrev_b32 v{x}, 16, v{a}")
        e(f"  v_and_b32 v{y}, 0xffff0000, v{a}")
        e(f"  v_mul_f32 v{x}, v{vF}, v{x}")
        e(f"  v_mul_f32 v{y}, v{vF}, v{y}")
        e(f"  v_cvt_pk_bf16_f32 v{t5}, v{x}, v{y}")
        e(f"  v_lshlrev_b32 v{x}, 16, v{t5}")
        e(f"  v_and_b32 v{y}, 0xffff0000, v{t5}")
        e(f"  v_mul_f32 v{x}, 0.15915494, v{x}")
        e(f"  v_mul_f32 v{y}, 0.15915494, v{y}")
        e(f"  v_fract_f32 v{x}, v{x}")
        e(f"  v_fract_f32 v{y}, v{y}")
        e(f"  v_cos_f32 v{x}, v{x}")
        e(f"  v_cos_f32 v{y}, v{y}")
        e("  s_nop 0")
        e(f"  v_cvt_pk_bf16_f32 v{a}, v{x}, v{y}")
        e(f"  v_and_b32 v{x}, 0x7fff7fff, v{a}")
        e(f"  v_pk_max_u16 v{gC}, v{gC}, v{x}")

    gC = 124
    e(f"  v_mov_b32 v{gC}, 0")
    if "A" in TOUCH:
        e(f"  v_mov_b32 v{t3}, 0")
        for r in (32, 36, 40, 44):
            e(f"  buffer_load_dword v127, v{t3}, s[{r}:{r+3}], 0 offen")
            vm.issue("touch")
    if os.environ.get("CODEPF"):
        e("  s_cmp_lt_u32 s2, 8")
        e("  s_cbranch_scc0 LA_nopf")
        e("  s_cmp_eq_u32 s50, 15")
        e("  s_cbranch_scc0 LA_nopf")
        e("  s_getpc_b64 s[70:71]")
        lab("LA_pc")
        e(f"  s_add_u32 s70, s70, {KB}-LA_pc")
        e("  s_addc_u32 s71, s71, 0")
        e("  v_and_b32 v126, 63, v0")
        e("  v_lshlrev_b32 v126, 6, v126")
        for k in range(5):
            e(f"  global_load_dword v127, v126, s[70:71]")
            e(f"  v_add_u32 v126, 4096, v126")
        e("  s_waitcnt vmcnt(0)")
        lab("LA_nopf")
    stamp("A", "loads issued")
    ABAR = int(os.environ.get("ABAR", "0"))
    for u in range(7):
        if ABAR == 2 and u + APIPE < 7:
            e("  s_setprio 3")
            loads(u + APIPE)
            e("  s_setprio 0")
            e("  s_barrier")
        vm.wait(f"L{u}")
        if u in (0, 3, 6):
            stamp("A", f"group {u} arrived")
        if ABAR != 2 and u + APIPE < 7:
            if ABAR == 1:
                e("  s_setprio 3")
            loads(u + APIPE)
            if ABAR == 1:
                e("  s_setprio 0")
                e("  s_barrier")
        if u == 0:
            e(f"  v_lshlrev_b32 v{vF}, 16, v{vF}")
        if u < 6:
            for r in range(4):
                rec(4 * u + r)
            cospair(AN0 + 2 * u)
            cospair(AN0 + 2 * u + 1)
        else:
            e(f"  v_cmp_gt_u32 vcc, s59, v0")
            e("  s_and_saveexec_b64 s[62:63], vcc")
            e("  s_cbranch_execz LA_r24")
            rec(24)
            cospair(AN0 + 12)
            lab("LA_r24")
            e("  s_mov_b64 exec, s[62:63]")
    for u in range(4):
        e(f"  s_mov_b32 s53, {u*16384}")
        e(f"  buffer_load_dwordx4 v[{TB0+4*u}:{TB0+4*u+3}], v4, s[28:31], s53 offen{ATAB}")
    e("  s_waitcnt lgkmcnt(0)")
    e("  s_barrier")
    stamp("A", "hist barrier")
    e(f"  ds_read_b64 v[{t0}:{t1}], v5 offset:{A_HIST}")
    e("  s_waitcnt lgkmcnt(0)")
    e(f"  v_add_u32 v{t2}, v{t0}, v{t1}")
    e(f"  v_mov_b32 v{t3}, v{t2}")
    wave_scan_add(t3)
    e(f"  s_lshl_b32 s58, s50, 2")
    e(f"  s_add_u32 s58, s58, {A_SCR}")
    e(f"  v_mov_b32 v{t4}, s58")
    e("  s_mov_b32 exec_lo, 0")
    e("  s_mov_b32 exec_hi, 0x80000000")
    e(f"  ds_write_b32 v{t4}, v{t3}")
    e("  s_mov_b64 exec, -1")
    e("  s_waitcnt lgkmcnt(0)")
    e("  s_barrier")
    e(f"  v_and_b32 v{t4}, 15, v0")
    e(f"  v_lshlrev_b32 v{t4}, 2, v{t4}")
    e(f"  v_add_u32 v{t4}, {A_SCR}, v{t4}")
    e(f"  ds_read_b32 v{t4}, v{t4}")
    e("  s_waitcnt lgkmcnt(0)")
    e(f"  v_mov_b32 v{t5}, v{t4}")
    for sh in (1, 2, 4, 8):
        e("  s_nop 1")
        e(f"  v_add_u32_dpp v{t5}, v{t5}, v{t5} row_shr:{sh} {DPP}")
    e(f"  v_sub_u32 v{t5}, v{t5}, v{t4}")
    e("  s_nop 0")
    e(f"  v_readlane_b32 s58, v{t5}, s50")
    e(f"  v_sub_u32 v{t3}, v{t3}, v{t2}")
    e("  s_nop 0")
    e(f"  v_add_u32 v{t2}, s58, v{t3}         ; start0")
    e(f"  v_add_u32 v{t3}, v{t2}, v{t0}       ; start1")
    e(f"  ds_write_b64 v5, v[{t2}:{t3}] offset:{A_HIST}")
    e(f"  v_and_b32 v{t4}, 3, v0")
    e(f"  v_cmp_eq_u32 vcc, 0, v{t4}")
    e("  s_and_saveexec_b64 s[60:61], vcc")
    if 'd' in AOPT:
        e(f"  v_lshrrev_b32 v{t2}, 1, v{t2}")
    e(f"  buffer_store_dword v{t2}, v0, s[40:43], 0 offen{ATT}")
    e("  s_mov_b64 exec, s[60:61]")
    e("  s_waitcnt lgkmcnt(0)")
    e("  s_barrier")
    stamp("A", "scan done")
    def put(r):
        e(f"  v_add_u32 v{O0+r}, v{O0+r}, v{RK0+r}")
        if 'd' in AOPT:
            e(f"  v_lshlrev_b32 v{RK0+r}, 1, v{O0+r}")
        else:
            e(f"  v_lshlrev_b32 v{RK0+r}, 2, v{O0+r}")
            e(f"  v_lshlrev_b32 v{O0+r}, 1, v{O0+r}")
        e(f"  ds_write_b32 v{RK0+r}, v{I0+r} offset:{A_A}")
        op = "ds_write_b16" if r % 2 == 0 else "ds_write_b16_d16_hi"
        e(f"  {op} v{O0+r}, v{AN0+r//2} offset:{A_C}")
    if 'm' in AOPT:
        for r in range(24):
            e(f"  ds_read_b32 v{O0+r}, v{O0+r} offset:{A_HIST}")
        e(f"  v_cmp_gt_u32 vcc, s59, v0")
        e("  s_and_saveexec_b64 s[62:63], vcc")
        e("  s_cbranch_execz LA_s24")
        e(f"  ds_read_b32 v{O0+24}, v{O0+24} offset:{A_HIST}")
        e("  s_waitcnt lgkmcnt(0)")
        put(24)
        lab("LA_s24")
        e("  s_mov_b64 exec, s[62:63]")
        e("  s_waitcnt lgkmcnt(0)")
        for r in range(24):
            put(r)
    else:
        groups = [range(0, 8), range(8, 16), range(16, 24), range(24, 25)]
        for g in groups:
            if g[0] == 24:
                e(f"  v_cmp_gt_u32 vcc, s59, v0")
                e("  s_and_saveexec_b64 s[62:63], vcc")
                e("  s_cbranch_execz LA_s24")
            for r in g:
                e(f"  ds_read_b32 v{O0+r}, v{O0+r} offset:{A_HIST}")
            e("  s_waitcnt lgkmcnt(0)")
            for r in g:
                put(r)
            if g[0] == 24:
                lab("LA_s24")
                e("  s_mov_b64 exec, s[62:63]")
    stamp("A", "scatter issued")
    def table_stats():
        gM, gR = 122, 123
        e(f"  v_mov_b32 v{gM}, 0")
        e(f"  v_mov_b32 v{gR}, 0")
        e("  s_mov_b32 s58, 0x7fff7fff")
        if 'n' not in AOPT:
            e("  s_waitcnt vmcnt(0)")
        for u in range(4):
            b = TB0 + 4 * u
            for k in range(4):
                e(f"  v_and_b32 v{b+k}, s58, v{b+k}")
            e(f"  v_pk_max_u16 v{b}, v{b}, v{b+1}")
            e(f"  v_pk_max_u16 v{b+2}, v{b+2}, v{b+3}")
            e(f"  v_pk_max_u16 v{b}, v{b}, v{b+2}")
            e(f"  v_lshrrev_b32 v{b+1}, 16, v{b}")
            e(f"  v_and_b32 v{b}, 0xffff, v{b}")
            e(f"  v_max_u32 v{b}, v{b}, v{b+1}")
            e("  s_nop 1")
            e(f"  v_max_u32_dpp v{b}, v{b}, v{b} quad_perm:[1,0,3,2] {DPP}")
            e(f"  v_max_u32 v{gM}, v{gM}, v{b}")
            e(f"  v_sub_u32 v{b}, 0x8000, v{b}")
            e(f"  v_and_b32 v{b}, 0x7fff, v{b}")
            e(f"  v_max_u32 v{gR}, v{gR}, v{b}")
        e(f"  v_lshrrev_b32 v{t5}, 16, v{gC}")
        e(f"  v_and_b32 v{gC}, 0xffff, v{gC}")
        e(f"  v_max_u32 v{gC}, v{gC}, v{t5}")
        e(f"  v_cmp_lt_u32 vcc, 0x3f80, v{gC}")
        e(f"  v_mov_b32 v{t5}, 0x7fff")
        e("  s_nop 0")
        e(f"  v_cndmask_b32 v{t5}, 0, v{t5}, vcc")
        e(f"  v_max_u32 v{gM}, v{gM}, v{t5}")
        wave_max([gM, gR])
        e(f"  v_mov_b32 v{t4}, {A_SCR + 64}")
        e("  s_mov_b32 exec_lo, 0")
        e("  s_mov_b32 exec_hi, 0x80000000")
        e(f"  ds_max_u32 v{t4}, v{gM}")
        e(f"  ds_max_u32 v{t4}, v{gR} offset:4")
        e("  s_mov_b64 exec, -1")
    if 'n' not in AOPT:
        table_stats()
    e("  s_waitcnt lgkmcnt(0)")
    e("  s_barrier")
    stamp("A", "scatter barrier")
    d = 8
    for u in range(6):
        e(f"  v_add_u32 v{t0}, {u*16384}, v4")
        e(f"  ds_read_b128 v[{d+4*u}:{d+4*u+3}], v{t0} offset:{A_A}")
    for u in range(3):
        e(f"  v_add_u32 v{t0}, {u*16384}, v4")
        e(f"  ds_read_b128 v[{d+24+4*u}:{d+24+4*u+3}], v{t0} offset:{A_C}")
    NX = 0 if 'n' in AOPT else 1
    if NX:
        e(f"  v_mov_b32 v{t4}, {A_SCR + 64}")
        e(f"  ds_read_b64 v[{t2}:{t3}], v{t4}")
    for u in range(6):
        e(f"  s_mov_b32 s53, {u*16384}")
        e(f"  s_waitcnt lgkmcnt({8+NX-u})")
        e(f"  buffer_store_dwordx4 v[{d+4*u}:{d+4*u+3}], v4, s[32:35], s53 offen{AST}")
    for u in range(3):
        e(f"  s_mov_b32 s53, {u*16384}")
        e(f"  s_waitcnt lgkmcnt({2+NX-u})")
        e(f"  buffer_store_dwordx4 v[{d+24+4*u}:{d+24+4*u+3}], v4, s[36:39], s53 offen{AST}")
    stamp("A", "stores issued")
    if STAMP == "A":
        e("  s_waitcnt vmcnt(0)")
    stamp("A", "stores done")
    stamp_dump("A", 14, 50)
    e(f"  s_cmp_lt_u32 s50, {-(-(CH*4 - 6*16384) // 1024)}")
    e("  s_cbranch_scc0 LA_t1")
    e(f"  v_add_u32 v{t0}, {6*16384}, v4")
    e(f"  ds_read_b128 v[60:63], v{t0} offset:{A_A}")
    e(f"  s_mov_b32 s53, {6*16384}")
    e("  s_waitcnt lgkmcnt(0)")
    e(f"  buffer_store_dwordx4 v[60:63], v4, s[32:35], s53 offen{AST}")
    lab("LA_t1")
    e(f"  s_cmp_lt_u32 s50, {-(-(CH*2 - 3*16384) // 1024)}")
    e("  s_cbranch_scc0 LA_t2")
    e(f"  v_add_u32 v{t0}, {3*16384}, v4")
    e(f"  ds_read_b128 v[64:67], v{t0} offset:{A_C}")
    e(f"  s_mov_b32 s53, {3*16384}")
    e("  s_waitcnt lgkmcnt(0)")
    e(f"  buffer_store_dwordx4 v[64:67], v4, s[36:39], s53 offen{AST}")
    lab("LA_t2")
    if 'n' in AOPT:
        e("  s_waitcnt vmcnt(10)")
        table_stats()
        e("  s_waitcnt lgkmcnt(0)")
        e("  s_barrier")
    e("  s_cmp_eq_u32 s50, 15")
    e("  s_cbranch_scc0 LA_end")
    if 'n' in AOPT:
        e(f"  v_mov_b32 v{t4}, {A_SCR + 64}")
        e(f"  ds_read_b64 v[{t2}:{t3}], v{t4}")
    e("  s_waitcnt lgkmcnt(0)")
    e(f"  v_mov_b32 v{t0}, 0")
    e("  s_mov_b32 exec_lo, 1")
    e("  s_mov_b32 exec_hi, 0")
    e(f"  buffer_store_dwordx2 v[{t2}:{t3}], v{t0}, s[44:47], 0 offen{ATT}")
    lab("LA_end")
    e("  s_endpgm")

def kernel_b():
    vH8, vIA, vIB, vCB, vOne = 1, 2, 4, 6, 7
    G0 = 8
    OA, CH_ = 40, 44
    P0 = 48
    t0, t1, t2, t3, t4, t5, t6, t7, t8 = range(56, 65)
    BS, LN = 65, 69
    XZ = 65
    CU = 73
    vL16 = 77
    WDS = 78
    RCP, RA0 = 80, 96
    def RA(s, j): return RA0 + 4 * j + s
    def RCp(s, j): return RCP + 4 * (j // 2) + s
    RBF, CEN, MR = 96, 70, 110
    WTR = [110, 111, 112, 113, 114, 115, 71, 72, 73, 74, 75, 76]
    WD, WU, WS, WR = 80, 82, 84, 86
    sW, sMag, sSc, sInv, sMode, sMsk, sN80, sTail, sPerm = 50, 53, 54, 55, 56, 57, 58, 59, 60
    sOv = 66
    vm = VmQ()
    e(f".globl {KB}")
    e(".p2align 8")
    e(f".type {KB},@function")
    lab(KB)
    e(f"  s_cmp_ge_u32 s2, {NB}")
    e("  s_cbranch_scc1 LB_end")
    if XMAP:
        e("  s_and_b32 s3, s2, 7")
        e("  s_lshr_b32 s2, s2, 3")
        e(f"  s_mul_i32 s4, s3, {NB//8}")
        if NB % 8:
            e(f"  s_min_u32 s3, s3, {NB%8}")
            e("  s_add_u32 s2, s2, s3")
        e("  s_add_u32 s2, s2, s4")
    e("  s_load_dwordx2 s[78:79], s[0:1], 104    ; ws")
    e("  s_load_dwordx2 s[68:69], s[0:1], 0      ; m")
    e("  s_load_dwordx2 s[70:71], s[0:1], 24     ; dist")
    e("  s_load_dwordx2 s[40:41], s[0:1], 40     ; centers")
    e("  s_load_dwordx4 s[44:47], s[0:1], 56")
    e("  s_load_dwordx4 s[72:75], s[0:1], 72")
    e("  s_load_dwordx2 s[76:77], s[0:1], 88     ; out")
    e("  v_lshrrev_b32 v8, 6, v0")
    e(f"  v_and_b32 v{vL16}, 15, v0")
    e(f"  v_readfirstlane_b32 s{sW}, v8")
    e(f"  v_and_b32 v9, 1, v0")
    e(f"  v_lshlrev_b32 v{vH8}, 3, v9")
    e(f"  v_lshlrev_b32 v{vIA+1}, 4, v9")
    e(f"  v_lshlrev_b32 v{vIB+1}, 4, v9")
    e(f"  v_mov_b32 v{vCB}, {2047*ROWB}")
    e(f"  v_mov_b32 v{vOne}, 1")
    e(f"  s_mul_i32 s80, s2, {BINE*32}")
    e(f"  s_mul_i32 s81, s2, {BINE*2}")
    e(f"  s_mov_b32 s{sMode}, 0")
    e(f"  s_mov_b32 s{sMsk}, 0x7ffff")
    e(f"  s_mov_b32 s{sN80}, {-ROWB}")
    e(f"  s_mov_b32 s{sPerm}, 0x05040100")
    e("  s_waitcnt lgkmcnt(0)")
    e(f"  s_add_u32 s82, s78, {WS_TT}")
    e("  s_addc_u32 s83, s79, 0")
    srd(16, 82, 83, NCH * 1024)
    e(f"  s_add_u32 s82, s78, {WS_STATS}")
    e("  s_addc_u32 s83, s79, 0")
    srd(20, 82, 83, NCH * 8)
    e(f"  s_add_u32 s82, s78, {WS_RECA - 4}")
    e("  s_addc_u32 s83, s79, 0")
    srd(4, 82, 83, TP + 1, 4)
    e(f"  s_add_u32 s82, s78, {WS_RECC - 2}")
    e("  s_addc_u32 s83, s79, 0")
    srd(8, 82, 83, TP + 1, 2)
    srd(12, 68, 69, E, 32)
    srd_off(24, 68, 69, 80, BINE * 32)
    srd_off(28, 76, 77, 80, BINE * 32)
    srd_off(32, 70, 71, 81, BINE * 2)
    e(f"  s_sub_u32 s82, {E*32}, s80")
    e(f"  s_min_u32 s26, s82, {BINE*32}")
    e("  s_mov_b32 s30, s26")
    e("  s_lshr_b32 s34, s26, 4")
    lab("LB_start")
    BPRIO = int(os.environ.get("BPRIO", "1"))
    if BPRIO:
        e("  s_setprio 3")
    stamp("B", "start")
    ST0 = 48
    def run_table_loads():
        g = t0
        e(f"  v_and_b32 v{t1}, 63, v0")
        e(f"  v_lshrrev_b32 v{g}, 4, v{t1}            ; g = lane>>4")
        e(f"  s_lshl_b32 s80, s{sW}, 4")
        e(f"  v_add_u32 v{t1}, s80, v{g}              ; 16w+g")
        e(f"  s_lshl_b32 s81, s2, 2")
        e(f"  v_lshlrev_b32 v{t2}, 10, v{t1}")
        e(f"  v_add_u32 v{t2}, s81, v{t2}")
        for s in range(4):
            e(f"  v_add_u32 v{t3}, {s*4096}, v{t2}")
            e(f"  buffer_load_dwordx2 v[{G0+2*s}:{G0+2*s+1}], v{t3}, s[16:19], 0 offen")
            vm.issue("T")
    rp_n = [0]
    def run_params():
        rp_n[0] += 1
        e(f"  s_mov_b32 s80, {CH}")
        for s in range(4):
            e(f"  v_add_u32 v{t3}, {4*s}, v{t1}")
            e(f"  v_mad_u32_u24 v{t3}, v{t3}, s80, 1")
            e(f"  v_add_u32 v{BS+s}, v{t3}, v{G0+2*s}")
            if NB == 256:
                e(f"  s_cmp_eq_u32 s2, {NB-1}")
                e(f"  s_cbranch_scc0 LB_rp{rp_n[0]}_{s}")
                e(f"  v_add_u32 v{t4}, {4*s}, v{t1}")
                e(f"  v_cmp_gt_u32 vcc, {NBIG}, v{t4}")
                e(f"  v_mov_b32 v{t4}, {CH}")
                e(f"  v_mov_b32 v{G0+2*s+1}, {CH-64}")
                e(f"  v_cndmask_b32 v{G0+2*s+1}, v{G0+2*s+1}, v{t4}, vcc")
                lab(f"LB_rp{rp_n[0]}_{s}")
            e(f"  v_sub_u32 v{LN+s}, v{G0+2*s+1}, v{G0+2*s}")
    run_table_loads()
    e(f"  v_and_b32 v{t3}, 63, v0")
    e(f"  v_lshlrev_b32 v{t3}, 3, v{t3}")
    for s in range(4):
        e(f"  buffer_load_dwordx2 v[{ST0+2*s}:{ST0+2*s+1}], v{t3}, s[20:23], 0 offen offset:{s*512}")
        vm.issue("ST")
    if "B" in TOUCH:
        e(f"  v_mov_b32 v{t3}, 0")
        for r in (28,):
            e(f"  buffer_load_dword v79, v{t3}, s[{r}:{r+3}], 0 offen")
            vm.issue("touch")
    ZR = 40
    for k in range(4):
        e(f"  v_mov_b32 v{ZR+k}, 0")
    e(f"  v_lshlrev_b32 v{t3}, 4, v0")
    for u in range(8):
        if u == 4:
            e(f"  v_add_u32 v{t3}, 0x10000, v{t3}")
        e(f"  ds_write_b128 v{t3}, v[{ZR}:{ZR+3}] offset:{(u%4)*16384}")
    vm.wait("T")
    stamp("B", "T arrived")
    run_params()
    e(f"  v_max_u32 v{t3}, v{LN}, v{LN+1}")
    e(f"  v_max3_u32 v{t3}, v{t3}, v{LN+2}, v{LN+3}")
    e(f"  v_cmp_lt_u32 vcc, 0x80, v{t3}")
    e(f"  s_cmp_lg_u64 vcc, 0")
    e(f"  s_cselect_b32 s{sTail}, 1, 0")
    def LZ(s, j): return RCp(s, j) if j % 2 == 0 else G0 + 8 + 4 * (j // 2) + s
    if EARLYBAR:
        e("  s_waitcnt lgkmcnt(0)")
        e("  s_barrier")
    for s in range(4):
        lp, lo, hi = t2, t4, t6
        e(f"  v_min_u32 v{lp}, 0x80, v{LN+s}          ; len'")
        e(f"  v_mov_b32 v{lo}, v{vL16}")
        e(f"  v_lshlrev_b32 v{lp}, 16, v{lp}")
        def msk(j):
            return f"s[{84+2*j}:{85+2*j}]" if (BURST and not STAMP) else "vcc"
        def lds(j):
            e(f"  s_mov_b64 exec, {msk(j)}")
            e(f"  buffer_load_ushort v{LZ(s,j)}, v{RA(s,j)}, s[8:11], 0 idxen{BREC}")
            vm.issue(f"C{s}_{j}")
            e(f"  buffer_load_dword v{RA(s,j)}, v{RA(s,j)}, s[4:7], 0 idxen{BREC}")
            vm.issue(f"A{s}_{j}")
        for j in range(8):
            e(f"  v_mul_hi_u32_u24 v{hi}, {(j+1) << 13:#x}, v{lp}     ; ((j+1)*len') >> 3")
            e(f"  v_cmp_lt_u32 {msk(j)}, v{lo}, v{hi}")
            e(f"  v_add_u32 v{t7}, v{BS+s}, v{lo}")
            e(f"  v_add_u32 v{lo}, v{hi}, v{vL16}")
            e(f"  v_cndmask_b32 v{RA(s,j)}, 0, v{t7}, {msk(j)}")
            if not (BURST and not STAMP):
                lds(j)
                e("  s_mov_b64 exec, -1")
        if BURST and not STAMP:
            for j in range(8):
                lds(j)
            e("  s_mov_b64 exec, -1")
        if s == 2:
            vm.wait("A0_7")
    if BPRIO:
        e("  s_setprio 0")
    stamp("B", "rec loads issued")
    a, b = ST0, ST0 + 1
    e(f"  v_max3_u32 v{a}, v{ST0}, v{ST0+2}, v{ST0+4}")
    e(f"  v_max3_u32 v{b}, v{ST0+1}, v{ST0+3}, v{ST0+5}")
    e(f"  v_max_u32 v{a}, v{a}, v{ST0+6}")
    e(f"  v_max_u32 v{b}, v{b}, v{ST0+7}")
    wave_max([a, b])
    e("  s_nop 0")
    e(f"  v_readlane_b32 s80, v{a}, 63")
    e(f"  v_readlane_b32 s81, v{b}, 63")
    e("  s_nop 0")
    e("  s_lshr_b32 s82, s80, 7")
    e("  s_sub_u32 s81, 0x8000, s81")
    e("  s_lshr_b32 s81, s81, 7")
    e("  s_sub_u32 s83, s82, s81")
    e(f"  s_cmp_eq_u32 s{sMode}, 2")
    e("  s_cbranch_scc1 LB_float")
    e("  s_cmp_ge_u32 s80, 0x7f80")
    e("  s_cbranch_scc1 LB_float")
    e("  s_cmp_lt_u32 s82, 32")
    e("  s_cbranch_scc1 LB_float")
    e("  s_cmp_gt_u32 s82, 200")
    e("  s_cbranch_scc1 LB_float")
    e("  s_cmp_gt_i32 s83, 10")
    e("  s_cbranch_scc1 LB_float")
    e(f"  s_mov_b32 s{sMag}, 0x4b400000")
    e("  s_sub_u32 s83, 275, s82")
    e(f"  s_lshl_b32 s{sSc}, s83, 23")
    e("  s_sub_u32 s83, s82, 21")
    e(f"  s_lshl_b32 s{sInv}, s83, 23")
    e("  s_branch LB_fast")
    lab("LB_float")
    e(f"  s_mov_b32 s{sMode}, 2")
    e(f"  s_mov_b32 s{sMag}, 0")
    e(f"  s_mov_b32 s{sSc}, 1.0")
    e(f"  s_mov_b32 s{sInv}, 1.0")
    e(f"  s_mov_b32 s{sTail}, 1")
    e("  s_waitcnt vmcnt(0) lgkmcnt(0)")
    e("  s_barrier")
    e("  s_branch LB_generic")
    lab("LB_fast")
    for s in range(4):
        for jj in range(4):
            vm.wait(f"C{s}_{2*jj+1}")
            e(f"  v_perm_b32 v{RCp(s,2*jj)}, v{LZ(s,2*jj+1)}, v{RCp(s,2*jj)}, s{sPerm}")
    vm.drain()
    stamp("B", "records arrived")

    def dec_idx(ra, dst):
        e(f"  v_bfi_b32 v{dst}, v{ra}, 0, s{sMsk}")
    def dec_rest(ra, rc, hi_half, s):
        e(f"  v_bfe_u32 v{t7}, v{ra}, 19, 11")
        if hi_half:
            e(f"  v_and_b32 v{t8}, 0xffff0000, v{rc}")
        else:
            e(f"  v_lshlrev_b32 v{t8}, 16, v{rc}")
        e(f"  v_mad_i32_i24 v{OA+s}, v{t7}, s{sN80}, v{vCB}")
        e(f"  v_mul_f32 v{CH_+s}, s{sSc}, v{t8}")
        e(f"  ds_add_u32 v{OA+s}, v{vOne} offset:64")
    def gather(s, h, src, tag):
        g0 = G0 + 8 * s + 4 * h
        vi = vIA if h == 0 else vIB
        qp = "[0,0,2,2]" if h == 0 else "[1,1,3,3]"
        e(f"  v_mov_b32_dpp v{vi}, v{src} quad_perm:{qp} {DPP}")
        if "nogather" in ABL:
            e(f"  v_mov_b32 v{vi}, -1")
        e(f"  buffer_load_dwordx4 v[{g0}:{g0+3}], v[{vi}:{vi+1}], s[12:15], 0 idxen offen")
        vm.issue(tag)
    def consume(s, h, isfloat):
        qp = "[0,0,2,2]" if h == 0 else "[1,1,3,3]"
        g0 = G0 + 8 * s + 4 * h
        ad, ch, cl = t0 + 3 * h, t1 + 3 * h, t2 + 3 * h
        e(f"  v_mov_b32_dpp v{ch}, v{CH_+s} quad_perm:{qp} {DPP}")
        e(f"  v_add_u32_dpp v{ad}, v{OA+s}, v{vH8} quad_perm:{qp} {DPP}")
        e(f"  v_lshrrev_b32 v{cl}, 16, v{ch}")
        for k in range(4):
            e(f"  v_dot2_f32_bf16 v{P0+2*k+1}, v{g0+k}, v{ch}, s{sMag}")
            e(f"  v_dot2_f32_bf16 v{P0+2*k}, v{g0+k}, v{cl}, s{sMag}")
            if "noatom" in ABL:
                continue
            if isfloat:
                e(f"  ds_add_f32 v{ad}, v{P0+2*k} offset:{16*k}")
                e(f"  ds_add_f32 v{ad}, v{P0+2*k+1} offset:{16*k+4}")
            else:
                e(f"  ds_add_u64 v{ad}, v[{P0+2*k}:{P0+2*k+1}] offset:{16*k}")
    if not EARLYBAR:
        e("  s_waitcnt lgkmcnt(0)")
        e("  s_barrier")
    stamp("B", "after barrier")
    tI = t6
    for s in range(4):
        dec_idx(RA(s, 0), tI)
        dec_rest(RA(s, 0), RCp(s, 0), False, s)
        gather(s, 0, tI, f"g0_{s}_0")
        gather(s, 1, tI, f"g0_{s}_1")

    def epi_loads1():
        gg, nn = t7, vL16
        e(f"  v_and_b32 v{t8}, 63, v0")
        e(f"  v_lshrrev_b32 v{gg}, 4, v{t8}")
        e(f"  v_lshlrev_b32 v{t8}, 6, v{gg}")
        e(f"  v_lshl_add_u32 v{t8}, v{nn}, 1, v{t8}     ; 64g + 2n")
        for k, off in enumerate((0, 32, 256, 288)):
            e(f"  global_load_ushort v{WTR[k]}, v{t8}, s[72:73] offset:{off}"); vm.issue("E1")
        for k in range(2):
            e(f"  global_load_ushort v{WTR[8+k]}, v{t8}, s[44:45] offset:{32*k}"); vm.issue("E1")
            e(f"  global_load_ushort v{WTR[10+k]}, v{t8}, s[46:47] offset:{32*k}"); vm.issue("E1")
        e(f"  v_lshlrev_b32 v{t8}, 7, v{gg}")
        e(f"  v_lshl_add_u32 v{t8}, v{nn}, 1, v{t8}     ; 128g + 2n")
        for k in range(4):
            e(f"  global_load_ushort v{WTR[4+k]}, v{t8}, s[74:75] offset:{32*k}"); vm.issue("E1")
        e(f"  v_lshlrev_b32 v{t8}, 2, v{gg}")
        e(f"  global_load_dword v{CEN}, v{t8}, s[40:41]"); vm.issue("E1")
        e(f"  s_lshl_b32 s80, s{sW}, 5")
        e(f"  v_lshl_add_u32 v{t8}, v{nn}, 1, s80")
        for u in range(7):
            e(f"  buffer_load_ushort v{RBF+2*u}, v{t8}, s[32:35], 0 offen offset:{u*512}"); vm.issue("E1")
            e(f"  v_mov_b32 v{RBF+2*u+1}, 0")
    def epi_loads2():
        gg, nn = t7, vL16
        e(f"  v_and_b32 v{t8}, 63, v0")
        e(f"  v_lshrrev_b32 v{gg}, 4, v{t8}")
        e(f"  s_lshl_b32 s80, s{sW}, 9")
        e(f"  v_lshlrev_b32 v{t8}, 5, v{nn}")
        e(f"  v_lshl_add_u32 v{t8}, v{gg}, 3, v{t8}")
        e(f"  v_add_u32 v{t8}, s80, v{t8}")
        for u in range(7):
            e(f"  s_mov_b32 s81, {u*8192}")
            e(f"  buffer_load_dwordx2 v[{MR+2*u}:{MR+2*u+1}], v{t8}, s[24:27], s81 offen{BM}"); vm.issue("E2")
    def epi_prep_w():
        e(f"  v_lshl_or_b32 v{WD}, v{WTR[1]}, 16, v{WTR[0]}")
        e(f"  v_lshl_or_b32 v{WD+1}, v{WTR[3]}, 16, v{WTR[2]}")
        e(f"  v_lshl_or_b32 v{WU}, v{WTR[5]}, 16, v{WTR[4]}")
        e(f"  v_lshl_or_b32 v{WU+1}, v{WTR[7]}, 16, v{WTR[6]}")
        e(f"  v_lshl_or_b32 v{WR}, v{WTR[9]}, 16, v{WTR[8]}")
        e(f"  v_lshl_or_b32 v{WS}, v{WTR[11]}, 16, v{WTR[10]}")
        e(f"  v_mov_b32 v{WR+1}, 0")
        e(f"  v_mov_b32 v{WS+1}, 0")
        c0, c1, x, y, p = XZ, XZ + 1, XZ + 2, XZ + 3, XZ + 4
        for k in range(2):
            e(f"  v_lshlrev_b32 v{x}, 16, v{WD+k}")
            e(f"  v_and_b32 v{y}, 0xffff0000, v{WD+k}")
            e(f"  v_mul_f32 v{x}, s{sInv}, v{x}")
            e(f"  v_mul_f32 v{y}, s{sInv}, v{y}")
            e(f"  v_cvt_pk_bf16_f32 v{WDS+k}, v{x}, v{y}")
        e(f"  v_lshlrev_b32 v{c0}, 16, v{CEN}")
        e(f"  v_and_b32 v{c1}, 0xffff0000, v{CEN}")
    def epi_prep_rbf(u):
        c0, c1, x, y, p = XZ, XZ + 1, XZ + 2, XZ + 3, XZ + 4
        r = RBF + 2 * u
        e("  s_mov_b32 s80, 0xc1200000           ; -10.0")
        e("  s_mov_b32 s81, 0x3fb8aa3b           ; log2(e)")
        e(f"  v_lshlrev_b32 v{r}, 16, v{r}")
        e(f"  v_sub_f32 v{x}, v{r}, v{c0}")
        e(f"  v_sub_f32 v{y}, v{r}, v{c1}")
        for op in ("sq", "m10", "exp"):
            e(f"  v_cvt_pk_bf16_f32 v{p}, v{x}, v{y}")
            e(f"  v_lshlrev_b32 v{x}, 16, v{p}")
            e(f"  v_and_b32 v{y}, 0xffff0000, v{p}")
            if op == "sq":
                e(f"  v_mul_f32 v{x}, v{x}, v{x}")
                e(f"  v_mul_f32 v{y}, v{y}, v{y}")
            elif op == "m10":
                e(f"  v_mul_f32 v{x}, s80, v{x}")
                e(f"  v_mul_f32 v{y}, s80, v{y}")
            else:
                e(f"  v_mul_f32 v{x}, s81, v{x}")
                e(f"  v_mul_f32 v{y}, s81, v{y}")
                e(f"  v_exp_f32 v{x}, v{x}")
                e(f"  v_exp_f32 v{y}, v{y}")
                e("  s_nop 0")
        e(f"  v_cvt_pk_bf16_f32 v{r}, v{x}, v{y}")
    def epi_prep():
        epi_prep_w()
        for u in range(7):
            epi_prep_rbf(u)

    LASTBAR = int(os.environ.get("LASTBAR", "6"))
    FIRSTBAR = int(os.environ.get("FIRSTBAR", "0"))
    for j in range(8):
        BARPOS = int(os.environ.get("BARPOS", "0"))
        dobar = "nobar" not in ABL and FIRSTBAR <= j <= LASTBAR and str(j) in os.environ.get("BARSET", "01234567")
        if dobar and BARPOS == 0:
            e("  s_barrier")
        if j in (0, 1, 2, 4, 6, 7):
            stamp("B", f"phase {j} begin")
        for s in range(4):
            last = (j == 7)
            if s and s % BARN == 0 and not last:
                e("  s_barrier")
            if not last:
                dec_idx(RA(s, j + 1), tI)
            vm.wait(f"g{j}_{s}_0")
            consume(s, 0, False)
            if not last:
                gather(s, 0, tI, f"g{j+1}_{s}_0")
            if dobar and BARPOS == 1 and s == 0:
                e("  s_barrier")
            vm.wait(f"g{j}_{s}_1")
            consume(s, 1, False)
            if not last:
                gather(s, 1, tI, f"g{j+1}_{s}_1")
                if dobar and BARPOS == 2 and s == 0:
                    e("  s_barrier")
                dec_rest(RA(s, j + 1), RCp(s, j + 1), (j + 1) % 2 == 1, s)
            step = 4 * j + s
            if step == 15:
                epi_loads1()
            if SPREAD:
                if step == 19:
                    vm.wait("E1")
                    epi_prep_w()
                if 20 <= step <= 26:
                    epi_prep_rbf(step - 20)
                if step == 27:
                    epi_loads2()
            else:
                if step == 20:
                    vm.wait("E1")
                    epi_prep()
                if step == 23:
                    epi_loads2()
    stamp("B", "main done")
    e(f"  s_cmp_eq_u32 s{sTail}, 0")
    e("  s_cbranch_scc1 LB_epi")
    if "notail" in ABL:
        e("  s_branch LB_epi")
    lab("LB_generic")
    q_main = list(vm.q)
    e("  s_waitcnt vmcnt(0)")
    run_table_loads()
    e("  s_waitcnt vmcnt(0)")
    run_params()
    for s in range(4):
        e(f"  v_min_u32 v{CU+s}, 0x80, v{LN+s}")
        e(f"  s_cmp_eq_u32 s{sMode}, 2")
        e(f"  s_cbranch_scc0 LB_gen{s}_c")
        e(f"  v_mov_b32 v{CU+s}, 0")
        lab(f"LB_gen{s}_c")
    for s in range(4):
        lab(f"LB_gen{s}")
        e(f"  v_add_u32 v{t0}, v{CU+s}, v{vL16}")
        e(f"  v_cmp_lt_u32 vcc, v{t0}, v{LN+s}")
        e(f"  s_cbranch_vccz LB_gen{s}_done")
        e(f"  v_add_u32 v{t0}, v{BS+s}, v{t0}")
        e(f"  v_add_u32 v{CU+s}, 16, v{CU+s}")
        e(f"  v_cndmask_b32 v{t0}, -1, v{t0}, vcc")
        e(f"  buffer_load_dword v{G0+8}, v{t0}, s[4:7], 0 idxen")
        e(f"  buffer_load_ushort v{G0+9}, v{t0}, s[8:11], 0 idxen")
        e("  s_waitcnt vmcnt(0)")
        dec_idx(G0 + 8, tI)
        dec_rest(G0 + 8, G0 + 9, False, 0)
        gather(0, 0, tI, "x")
        gather(0, 1, tI, "x")
        e("  s_waitcnt vmcnt(0)")
        e(f"  s_cmp_eq_u32 s{sMode}, 2")
        e(f"  s_cbranch_scc1 LB_gen{s}_f")
        consume(0, 0, False)
        consume(0, 1, False)
        e(f"  s_branch LB_gen{s}")
        lab(f"LB_gen{s}_f")
        consume(0, 0, True)
        consume(0, 1, True)
        e(f"  s_branch LB_gen{s}")
        lab(f"LB_gen{s}_done")
    e(f"  s_cmp_eq_u32 s{sMode}, 2")
    e("  s_cbranch_scc0 LB_epi")
    epi_loads1()
    e("  s_waitcnt vmcnt(0)")
    epi_prep()
    epi_loads2()
    lab("LB_epi")
    vm.q = []
    e("  s_waitcnt lgkmcnt(0)")
    e("  s_barrier")
    stamp("B", "final barrier")
    g = t0
    e(f"  v_and_b32 v{t1}, 63, v0")
    e(f"  v_lshrrev_b32 v{g}, 4, v{t1}")
    e(f"  s_lshl_b32 s80, s{sW}, 4")
    e(f"  v_add_u32 v{t1}, s80, v{vL16}")
    e(f"  v_mul_u32_u24 v{t1}, {ROWB}, v{t1}")
    e(f"  v_lshl_add_u32 v{t2}, v{g}, 4, v{t1}")
    e(f"  v_add_u32 v{t3}, {4*256*ROWB}, v{t1}")
    e(f"  v_add_u32 v{t4}, {4*256*ROWB}, v{t2}")
    A_ = lambda u: 8 + 12 * (u % 4)
    G_ = lambda u: 8 + 12 * (u % 4) + 4
    R_ = lambda u: 8 + 12 * (u % 4) + 8
    PKS = (66, 68)
    X0, vMx = 70, 71
    NTILE = -(-BINE // 16)
    W6 = NTILE - 96
    def tile_reads(u):
        ra, rc = (t2, t1) if u < 4 else (t4, t3)
        e(f"  ds_read_b128 v[{A_(u)}:{A_(u)+3}], v{ra} offset:{(u%4)*256*ROWB}")
        e(f"  ds_read_b32 v{G_(u)}, v{rc} offset:{(u%4)*256*ROWB+64}")
    def tile_stage1(u):
        a, gg, rr = A_(u), G_(u), R_(u)
        PK = PKS[u % 2]
        e(f"  v_max_u32 v{vMx}, v{vMx}, v{gg}")
        e(f"  s_cbranch_scc1 LB_e{u}_f")
        e(f"  v_mul_u32_u24 v{gg}, 0x12d, v{gg}")
        e(f"  v_lshlrev_b32 v{gg+1}, 22, v{gg}")
        for k in (0, 2):
            e(f"  v_sub_u32 v{a+k}, v{a+k}, v{gg+1}")
            e(f"  v_sub_u32 v{a+k+1}, v{a+k+1}, v{gg+1}")
            e(f"  v_ashrrev_i32 v{gg+2}, 22, v{a+k}")
            e(f"  v_add_u32 v{gg+2}, v{gg+2}, v{gg}")
            e(f"  v_ashrrev_i32 v{gg+2}, 10, v{gg+2}")
            e(f"  v_sub_u32 v{a+k+1}, v{a+k+1}, v{gg+2}")
        for k in range(4):
            e(f"  v_cvt_f32_i32 v{a+k}, v{a+k}")
        lab(f"LB_e{u}_f")
        e(f"  v_cvt_pk_bf16_f32 v{PK}, v{a}, v{a+1}")
        e(f"  v_cvt_pk_bf16_f32 v{PK+1}, v{a+2}, v{a+3}")
        e(f"  v_mfma_f32_16x16x16_bf16 v[{gg}:{gg+3}], v[{WS}:{WS+1}], v[{RBF+2*u}:{RBF+2*u+1}], 0")
        e(f"  v_mfma_f32_16x16x16_bf16 v[{rr}:{rr+3}], v[{WR}:{WR+1}], v[{RBF+2*u}:{RBF+2*u+1}], 0")
        e(f"  v_mfma_f32_16x16x16_bf16 v[{a}:{a+3}], v[{WDS}:{WDS+1}], v[{PK}:{PK+1}], 0")
    def tile_stage2(u):
        a, gg = A_(u), G_(u)
        PK = PKS[u % 2]
        for k in range(4):
            e(f"  v_mul_f32 v{a+k}, v{a+k}, v{gg+k}")
        e(f"  v_cvt_pk_bf16_f32 v{PK}, v{a}, v{a+1}")
        e(f"  v_cvt_pk_bf16_f32 v{PK+1}, v{a+2}, v{a+3}")
        e("  s_nop 1")
        e(f"  v_mfma_f32_16x16x16_bf16 v[{gg}:{gg+3}], v[{WU}:{WU+1}], v[{PK}:{PK+1}], 0")
    def tile_stage3(u):
        a, gg, rr = A_(u), G_(u), R_(u)
        m0, m1 = MR + 2 * u, MR + 2 * u + 1
        e(f"  v_lshlrev_b32 v{a}, 16, v{m0}")
        e(f"  v_and_b32 v{a+1}, 0xffff0000, v{m0}")
        e(f"  v_lshlrev_b32 v{a+2}, 16, v{m1}")
        e(f"  v_and_b32 v{a+3}, 0xffff0000, v{m1}")
        for k in range(4):
            e(f"  v_fmac_f32 v{a+k}, v{gg+k}, v{rr+k}")
        e(f"  v_cvt_pk_bf16_f32 v{m0}, v{a}, v{a+1}")
        e(f"  v_cvt_pk_bf16_f32 v{m1}, v{a+2}, v{a+3}")
        e(f"  s_mov_b32 s81, {u*8192}")
        e(f"  buffer_store_dwordx2 v[{m0}:{m1}], v{t6}, s[28:31], s81 offen{BOUT}")
    def guarded(u, fn, tag):
        if u == 6:
            e(f"  s_cmp_ge_u32 s{sW}, {W6}")
            e(f"  s_cbranch_scc1 LB_skip6{tag}")
            if tag == "b":
                e(f"  s_cmp_eq_u32 s{sMode}, 2")
        fn(u)
        if u == 6:
            lab(f"LB_skip6{tag}")
    for u in (0, 1, 2, 3):
        tile_reads(u)
    e(f"  s_lshl_b32 s80, s{sW}, 9")
    e(f"  v_lshlrev_b32 v{t6}, 5, v{vL16}")
    e(f"  v_lshl_add_u32 v{t6}, v{g}, 3, v{t6}")
    e(f"  v_add_u32 v{t6}, s80, v{t6}")
    e(f"  v_mov_b32 v{vMx}, 0")
    for gi, grp in enumerate(((0, 1, 2, 3), (4, 5, 6))):
        if gi:
            for u in grp:
                guarded(u, tile_reads, "a")
        e("  s_waitcnt lgkmcnt(0)")
        e(f"  s_cmp_eq_u32 s{sMode}, 2")
        for u in grp:
            guarded(u, tile_stage1, "b")
        e("  s_nop 7")
        for u in grp:
            guarded(u, tile_stage2, "c")
        if gi == 0:
            e("  s_waitcnt vmcnt(0)              ; m rows")
        e("  s_nop 7")
        for u in grp:
            guarded(u, tile_stage3, "d")
    e(f"  v_cmp_lt_u32 s[{sOv}:{sOv+1}], 0x1ff, v{vMx}" if False else f"  v_cmp_lt_u32 vcc, 0x1ff, v{vMx}")
    e(f"  s_mov_b64 s[{sOv}:{sOv+1}], vcc")
    stamp("B", "epilogue done")
    stamp_dump("B", 78, sW)
    e(f"  s_cmp_eq_u32 s{sMode}, 2")
    e("  s_cbranch_scc1 LB_end")
    e(f"  s_cmp_eq_u64 s[{sOv}:{sOv+1}], 0")
    e("  s_cbranch_scc1 LB_noov")
    e(f"  v_mov_b32 v{t3}, {B_FLAG}")
    e(f"  ds_write_b32 v{t3}, v{vOne}")
    lab("LB_noov")
    e("  s_waitcnt lgkmcnt(0)")
    e("  s_barrier")
    e(f"  v_mov_b32 v{t3}, {B_FLAG}")
    e(f"  ds_read_b32 v{t3}, v{t3}")
    e("  s_waitcnt lgkmcnt(0)")
    e(f"  v_readfirstlane_b32 s80, v{t3}")
    e("  s_cmp_eq_u32 s80, 0")
    e("  s_cbranch_scc1 LB_end")
    e("  s_waitcnt vmcnt(0)")
    e("  s_barrier")
    e(f"  s_mov_b32 s{sMode}, 2")
    e("  s_branch LB_start")
    lab("LB_end")
    e("  s_endpgm")

def descriptor(name, vgpr, sgpr):
    e(".p2align 6")
    e(f".amdhsa_kernel {name}")
    e(f"  .amdhsa_next_free_vgpr {vgpr}")
    e(f"  .amdhsa_next_free_sgpr {sgpr}")
    e(f"  .amdhsa_accum_offset {vgpr}")
    e("  .amdhsa_group_segment_fixed_size 0")
    e("  .amdhsa_kernarg_size 112")
    e("  .amdhsa_user_sgpr_count 2")
    e("  .amdhsa_user_sgpr_kernarg_segment_ptr 1")
    e("  .amdhsa_system_sgpr_workgroup_id_x 1")
    e("  .amdhsa_float_denorm_mode_32 3")
    e(".end_amdhsa_kernel")

header = open("standalone__molecular_angular_gemnet__graph.s.ref").read().split("; Override launch")[0]
e(header.rstrip())
for _l in """
; Algorithm (L = 1, so sbf @ w_sbf = cos(f*angle[t]) * (rbf[o] @ w_sbf) and the per-triplet layer factors out of the sum):
;   S[o]   = sum over triplets t with idx_out[t] = o of cos(f*angle[t]) * m[idx_in[t]]
;   out[o] = m[o] + (((S[o] @ w_down) * (rbf[o] @ w_sbf)) @ w_up) * (rbf[o] @ w_rbf)
; Launch 1 (part): each workgroup counting-sorts one chunk of ~25000 triplets in LDS by (output bin, source range) and
;   writes 6-byte records (source row, local output row, bf16 cosine) plus a table of run starts to d_ws.  It also
;   reads its slice of m (into the last-level cache) and reports max |m| and the smallest non-zero row maximum.
; Launch 2 (main): one workgroup per bin of 1564 output edges.  Every wave keeps the records of its 16 runs in
;   registers and walks them in 8 phases of ascending source rows (all workgroups sweep m together, so the gathers
;   hit L2), accumulates cos * m in LDS and finishes with the edge-level layers on the matrix cores.
;   Accumulation: products of two bf16 values are exact in f32; they are rounded to a 22-bit fixed-point grid scaled to
;   max |m| and added with 64-bit integer LDS atomics (two features each; LDS f32 atomics are serialised per lane).
;   If the rows of m span more than 2^10 in magnitude, m or a cosine is not finite, or an edge has more than 511
;   triplets, the bin is accumulated with f32 LDS atomics instead.
""".strip().split("\n"):
    e(_l)
for _k in os.environ.get("LIST", "AB"):
    if _k == "A":
        e(f"; @launch kernel={KA} grid=({NCH},1,1) block=(1024,1,1) lds={A_LDS}")
    elif _k == "e":
        e(f"; @launch kernel=empty_kernel grid=(1,1,1) block=(64,1,1) lds=0")
    elif _k == "E":
        e(f"; @launch kernel=empty_kernel grid=(250,1,1) block=(1024,1,1) lds=131072")
    else:
        e(f"; @launch kernel={KB} grid=({NB},1,1) block=(1024,1,1) lds={B_LDS}")
e('.amdgcn_target "amdgcn-amd-amdhsa--gfx950"')
e(".text")
kernel_a()
kernel_b()
if set(os.environ.get("LIST", "")) & set("eE"):
    e(".globl empty_kernel")
    e(".p2align 8")
    e(".type empty_kernel,@function")
    lab("empty_kernel")
    e("  s_endpgm")
e('.section .rodata,"a"')
if set(os.environ.get("LIST", "")) & set("eE"):
    descriptor("empty_kernel", 128, 102)
descriptor(KA, 128, 102)
descriptor(KB, 128, 102)
dst = sys.argv[1] if len(sys.argv) > 1 else "standalone__molecular_angular_gemnet__graph.s"
open(dst, "w").write("\n".join(out) + "\n")
print("wrote", dst, len(out), "lines")
```

```python
import sys, os
DBG = os.environ.get("DBG", "")
ABL = os.environ.get("ABL", "").split(",")
def pol(name, default=""):
    v = os.environ.get(name, default)
    return (" " + v.replace("+", " ")) if v else ""
PF = int(os.environ.get("PF", "0"))
PFLEAD = int(os.environ.get("PFLEAD", "8"))
BARN = int(os.environ.get("BARN", "4"))
SPREAD = int(os.environ.get("SPREAD", "1"))
AOPT = os.environ.get("AOPT", "bmnd")
TOUCH = os.environ.get("TOUCH", "")
EARLYBAR = int(os.environ.get("EARLYBAR", "0"))
BURST = int(os.environ.get("BURST", "0"))
XMAP = int(os.environ.get("XMAP", "1"))
ATT = pol("ATT", "sc0+sc1"); AIN = pol("AIN", "nt"); ATAB = pol("ATAB"); AST = pol("AST", "sc0+sc1"); BREC = pol("BREC"); BOUT = pol("BOUT", "nt"); BM = pol("BM")

KA = "standalone__molecular_angular_gemnet__graph_part_kernel"
KB = "standalone__molecular_angular_gemnet__graph_kernel"

E = 400000
T = 6400000
NWG = int(os.environ.get("NWG", "256"))
NCH = NWG
NB = NWG
UNITS = T // 64
CH = -(-UNITS // NCH) * 64
NBIG = UNITS - (CH // 64 - 1) * NCH if UNITS % NCH else NCH
BINE = -(-(-(-E // NB)) // 4) * 4
TP = CH * NCH
assert T % 64 == 0 and NBIG * CH + (NCH - NBIG) * (CH - 64) == T and 24576 < CH - 64 * (NBIG < NCH) and CH <= 25600
KS = 8

WS_RECA = 256
WS_RECC = WS_RECA + TP * 4
WS_TT = WS_RECA + TP * 6
WS_STATS = WS_TT + NCH * 1024

A_HIST = 0
A_C = 8192
A_A = A_C + -(-CH * 2 // 16) * 16
A_SCR = A_A + -(-CH * 4 // 16) * 16
A_LDS = A_SCR + 128

ROWB = 80
B_FLAG = 130048
B_LDS = 131072

out = []
def e(s=""):
    out.append(s)
def lab(s):
    out.append(s + ":")

DPP = "row_mask:0xf bank_mask:0xf"

def srd(reg, lo, hi, size, stride=0):
    e(f"  s_mov_b32 s{reg}, s{lo}")
    e(f"  s_and_b32 s{reg+1}, s{hi}, 0xffff")
    if stride:
        e(f"  s_or_b32 s{reg+1}, s{reg+1}, {stride << 16:#x}")
    e(f"  s_mov_b32 s{reg+2}, {size}")
    e(f"  s_mov_b32 s{reg+3}, 0x20000")

def srd_off(reg, lo, hi, off_sreg, size, const=0, stride=0):
    e(f"  s_add_u32 s{reg}, s{lo}, s{off_sreg}")
    e(f"  s_addc_u32 s{reg+1}, s{hi}, 0")
    if const:
        e(f"  s_add_u32 s{reg}, s{reg}, {const}")
        e(f"  s_addc_u32 s{reg+1}, s{reg+1}, 0")
    e(f"  s_and_b32 s{reg+1}, s{reg+1}, 0xffff")
    if stride:
        e(f"  s_or_b32 s{reg+1}, s{reg+1}, {stride << 16:#x}")
    e(f"  s_mov_b32 s{reg+2}, {size}")
    e(f"  s_mov_b32 s{reg+3}, 0x20000")

STAMP = os.environ.get("STAMP", "")
stamp_n = [0]
def stamp(kern, name):
    if STAMP != kern:
        return
    k = stamp_n[0]; stamp_n[0] += 1
    assert k < 16
    e(f"  s_memrealtime s[84:85]")
    e("  s_waitcnt lgkmcnt(0)")
    e(f"  s_mov_b32 s{86+k}, s84")
    if k == 0:
        e("  s_memtime s[84:85]")
        e("  s_waitcnt lgkmcnt(0)")
        e("  s_mov_b32 s101, s84")
    print("stamp", k, name)
def stamp_dump(kern, wsreg, wavereg):
    if STAMP != kern:
        return
    e("  s_memtime s[84:85]")
    e("  s_waitcnt lgkmcnt(0)")
    e("  s_sub_u32 s101, s84, s101")
    e(f"  s_cmp_eq_u32 s{wavereg}, {int(os.environ.get('STAMPW', '0'))}")
    e(f"  s_cbranch_scc0 L{kern}_nodump")
    e(f"  s_lshl_b32 s84, s2, 6")
    e(f"  s_add_u32 s84, s84, {128<<20}")
    e(f"  s_add_u32 s102-18, s{wsreg}, s84".replace("s102-18", "s84"))
    e(f"  s_addc_u32 s85, s{wsreg+1}, 0")
    e("  v_mov_b32 v60, 0")
    for k in range(16):
        e(f"  v_mov_b32 v61, s{86+k}")
        e(f"  global_store_dword v60, v61, s[84:85] offset:{4*k}")
    lab(f"L{kern}_nodump")

def wave_scan_add(v):
    for sh in (1, 2, 4, 8):
        e("  s_nop 1")
        e(f"  v_add_u32_dpp v{v}, v{v}, v{v} row_shr:{sh} {DPP}")
    e("  s_nop 1")
    e(f"  v_add_u32_dpp v{v}, v{v}, v{v} row_bcast:15 row_mask:0xa bank_mask:0xf")
    e("  s_nop 1")
    e(f"  v_add_u32_dpp v{v}, v{v}, v{v} row_bcast:31 row_mask:0xc bank_mask:0xf")

def wave_max(vs):
    steps = [f"row_shr:{sh} {DPP}" for sh in (1, 2, 4, 8)] + \
            ["row_bcast:15 row_mask:0xa bank_mask:0xf", "row_bcast:31 row_mask:0xc bank_mask:0xf"]
    for st in steps:
        e("  s_nop 1")
        for v in vs:
            e(f"  v_max_u32_dpp v{v}, v{v}, v{v} {st}")

class VmQ:
    def __init__(self):
        self.q = []
    def issue(self, tag):
        self.q.append(tag)
        assert len(self.q) <= 63, "vmcnt overflow"
    def wait(self, tag):
        if tag not in self.q:
            return
        idx = max(i for i, t in enumerate(self.q) if t == tag)
        n = len(self.q) - 1 - idx
        assert n <= 63
        e(f"  s_waitcnt vmcnt({n})")
        self.q = self.q[idx + 1:]
    def drain(self):
        e("  s_waitcnt vmcnt(0)")
        self.q = []

def kernel_a():
    I0, O0, AN0, RK0, TB0 = 8, 34, 60, 74, 100
    vOne, vF = 2, 3
    t0, t1, t2, t3, t4, t5 = 116, 117, 118, 119, 120, 121
    e(f".globl {KA}")
    e(".p2align 8")
    e(f".type {KA},@function")
    lab(KA)
    e(f"  s_cmp_ge_u32 s2, {NCH}")
    e("  s_cbranch_scc1 LA_end")
    e("  s_load_dwordx4 s[4:7], s[0:1], 0")
    e("  s_load_dwordx2 s[8:9], s[0:1], 16      ; idx_out")
    e("  s_load_dwordx2 s[10:11], s[0:1], 32    ; angle")
    e("  s_load_dwordx2 s[12:13], s[0:1], 48    ; ang_freq")
    e("  s_load_dwordx2 s[14:15], s[0:1], 104   ; ws")
    e("  v_lshrrev_b32 v1, 6, v0")
    e("  v_lshlrev_b32 v4, 4, v0                ; t*16")
    e("  v_readfirstlane_b32 s50, v1")
    e("  v_lshlrev_b32 v5, 3, v0                ; t*8")
    e("  v_lshlrev_b32 v6, 2, v0                ; t*4")
    e("  v_lshlrev_b32 v7, 1, v0                ; t*2")
    e(f"  v_mov_b32 v{vOne}, {2 if 'd' in AOPT else 1}")
    e(f"  v_mov_b32 v{t0}, 0")
    e(f"  v_mov_b32 v{t1}, 0")
    e(f"  s_mul_i32 s46, s2, {CH//64 - 1 if NBIG < NCH else CH//64}")
    if NBIG < NCH:
        e(f"  s_min_u32 s47, s2, {NBIG}")
        e("  s_add_u32 s46, s46, s47")
    e("  s_lshl_b32 s48, s46, 8")
    e("  s_lshl_b32 s49, s46, 7")
    e(f"  s_mov_b32 s59, {CH - 64 if NBIG < NCH else CH}")
    if NBIG < NCH:
        e(f"  s_cmp_lt_u32 s2, {NBIG}")
        e(f"  s_cselect_b32 s59, {CH}, s59")
    e(f"  s_mul_i32 s64, s2, {CH*4}")
    e(f"  s_mul_i32 s65, s2, {CH*2}")
    e("  s_lshl_b32 s51, s2, 10")
    e("  s_lshl_b32 s52, s2, 3")
    e("  s_waitcnt lgkmcnt(0)")
    srd_off(16, 6, 7, 48, CH * 4)
    srd_off(20, 8, 9, 48, CH * 4)
    srd_off(24, 10, 11, 49, CH * 2)
    e("  s_lshl_b32 s18, s59, 2")
    e("  s_lshl_b32 s22, s59, 2")
    e("  s_lshl_b32 s26, s59, 1")
    vm = VmQ()
    APIPE = int(os.environ.get("APIPE", "7"))
    e(f"  ds_write_b64 v5, v[{t0}:{t1}] offset:{A_HIST}")
    e(f"  v_and_b32 v{t2}, 15, v0")
    e(f"  v_lshlrev_b32 v{t2}, 3, v{t2}")
    e(f"  v_add_u32 v{t2}, {A_SCR}, v{t2}")
    e(f"  ds_write_b64 v{t2}, v[{t0}:{t1}]")
    e(f"  global_load_ushort v{vF}, v{t0}, s[12:13]")
    vm.issue("F")
    stamp("A", "start")
    def loads(u):
        e(f"  s_mov_b32 s53, {u*16384}")
        e(f"  s_mov_b32 s54, {u*8192}")
        if u < 6:
            e(f"  buffer_load_dwordx4 v[{I0+4*u}:{I0+4*u+3}], v4, s[16:19], s53 offen{AIN}")
            e(f"  buffer_load_dwordx4 v[{O0+4*u}:{O0+4*u+3}], v4, s[20:23], s53 offen{AIN}")
            e(f"  buffer_load_dwordx2 v[{AN0+2*u}:{AN0+2*u+1}], v5, s[24:27], s54 offen{AIN}")
        else:
            e(f"  buffer_load_dword v{I0+24}, v6, s[16:19], s53 offen{AIN}")
            e(f"  buffer_load_dword v{O0+24}, v6, s[20:23], s53 offen{AIN}")
            e(f"  buffer_load_ushort v{AN0+12}, v7, s[24:27], s54 offen{AIN}")
        for _ in range(3):
            vm.issue(f"L{u}")
    APRIO = int(os.environ.get("APRIO", "1"))
    if os.environ.get("CODEPF", "1") == "1":
        e("  s_cmp_lt_u32 s2, 8")
        e("  s_cbranch_scc0 LA_nopf")
        e("  s_cmp_eq_u32 s50, 15")
        e("  s_cbranch_scc0 LA_nopf")
        e("  s_getpc_b64 s[70:71]")
        lab("LA_pc")
        e(f"  s_add_u32 s70, s70, {KB}-LA_pc")
        e("  s_addc_u32 s71, s71, 0")
        e("  v_and_b32 v126, 63, v0")
        e("  v_lshlrev_b32 v126, 6, v126")
        for k in range(6):
            e(f"  v_min_u32 v125, LB_end-{KB}, v126")
            e(f"  global_load_dword v127, v125, s[70:71]")
            e(f"  v_add_u32 v126, 4096, v126")
        lab("LA_nopf")
    NPRE = 2 if 'b' in AOPT else 0
    if APRIO:
        e("  s_setprio 3")
    for u in range(NPRE):
        loads(u)
    e("  s_waitcnt lgkmcnt(0)")
    e("  s_barrier")
    for u in range(NPRE, min(APIPE, 7)):
        loads(u)
    if APRIO:
        e("  s_setprio 0")
    e(f"  s_mul_i32 s47, s2, {BINE*32}")
    srd_off(28, 4, 5, 47, BINE * 32)
    e(f"  s_sub_u32 s47, {E*32}, s47")
    e(f"  s_min_u32 s30, s47, {BINE*32}")
    srd_off(32, 14, 15, 64, CH * 4, WS_RECA)
    srd_off(36, 14, 15, 65, CH * 2, WS_RECC)
    e("  s_lshl_b32 s34, s59, 2")
    e("  s_lshl_b32 s38, s59, 1")
    e("  s_sub_u32 s59, s59, 24576")
    srd_off(40, 14, 15, 51, 1024, WS_TT)
    srd_off(44, 14, 15, 52, 8, WS_STATS)
    assert (((2**32 + BINE - 1)//BINE) * BINE - 2**32) * E < 2**32
    e(f"  s_mov_b32 s55, {(2**32 + BINE - 1)//BINE}")
    e(f"  s_mov_b32 s56, {(2**32 * KS)//E - 1}")
    e(f"  s_mov_b32 s57, {-BINE}")

    def rec(r):
        I, O, R = I0 + r, O0 + r, RK0 + r
        e(f"  v_mul_hi_u32_u24 v{t0}, s55, v{O}           ; bin")
        e(f"  v_mul_hi_u32_u24 v{t1}, s56, v{I}           ; i range")
        e(f"  v_mad_i32_i24 v{t2}, v{t0}, s57, v{O}       ; o local")
        e(f"  v_lshlrev_b32 v{t1}, 2, v{t1}")
        e(f"  v_lshl_add_u32 v{O}, v{t0}, 5, v{t1}        ; key*4")
        e(f"  v_lshl_or_b32 v{I}, v{t2}, 19, v{I}")
        e(f"  ds_add_rtn_u32 v{R}, v{O}, v{vOne} offset:{A_HIST}")
        e(f"  v_not_b32 v{I}, v{I}")

    def cospair(a):
        x, y = t3, t4
        e(f"  v_lshlrev_b32 v{x}, 16, v{a}")
        e(f"  v_and_b32 v{y}, 0xffff0000, v{a}")
        e(f"  v_mul_f32 v{x}, v{vF}, v{x}")
        e(f"  v_mul_f32 v{y}, v{vF}, v{y}")
        e(f"  v_cvt_pk_bf16_f32 v{t5}, v{x}, v{y}")
        e(f"  v_lshlrev_b32 v{x}, 16, v{t5}")
        e(f"  v_and_b32 v{y}, 0xffff0000, v{t5}")
        e(f"  v_mul_f32 v{x}, 0.15915494, v{x}")
        e(f"  v_mul_f32 v{y}, 0.15915494, v{y}")
        e(f"  v_fract_f32 v{x}, v{x}")
        e(f"  v_fract_f32 v{y}, v{y}")
        e(f"  v_cos_f32 v{x}, v{x}")
        e(f"  v_cos_f32 v{y}, v{y}")
        e("  s_nop 0")
        e(f"  v_cvt_pk_bf16_f32 v{a}, v{x}, v{y}")
        e(f"  v_and_b32 v{x}, 0x7fff7fff, v{a}")
        e(f"  v_pk_max_u16 v{gC}, v{gC}, v{x}")

    gC = 124
    e(f"  v_mov_b32 v{gC}, 0")
    if "A" in TOUCH:
        e(f"  v_mov_b32 v{t3}, 0")
        for r in (32, 36, 40, 44):
            e(f"  buffer_load_dword v127, v{t3}, s[{r}:{r+3}], 0 offen")
            vm.issue("touch")
    stamp("A", "loads issued")
    ABAR = int(os.environ.get("ABAR", "0"))
    for u in range(7):
        if ABAR == 2 and u + APIPE < 7:
            e("  s_setprio 3")
            loads(u + APIPE)
            e("  s_setprio 0")
            e("  s_barrier")
        vm.wait(f"L{u}")
        if u in (0, 3, 6):
            stamp("A", f"group {u} arrived")
        if ABAR != 2 and u + APIPE < 7:
            if ABAR == 1:
                e("  s_setprio 3")
            loads(u + APIPE)
            if ABAR == 1:
                e("  s_setprio 0")
                e("  s_barrier")
        if u == 0:
            e(f"  v_lshlrev_b32 v{vF}, 16, v{vF}")
        if u < 6:
            for r in range(4):
                rec(4 * u + r)
            cospair(AN0 + 2 * u)
            cospair(AN0 + 2 * u + 1)
        else:
            e(f"  v_cmp_gt_u32 vcc, s59, v0")
            e("  s_and_saveexec_b64 s[62:63], vcc")
            e("  s_cbranch_execz LA_r24")
            rec(24)
            cospair(AN0 + 12)
            lab("LA_r24")
            e("  s_mov_b64 exec, s[62:63]")
    for u in range(4):
        e(f"  s_mov_b32 s53, {u*16384}")
        e(f"  buffer_load_dwordx4 v[{TB0+4*u}:{TB0+4*u+3}], v4, s[28:31], s53 offen{ATAB}")
    e("  s_waitcnt lgkmcnt(0)")
    e("  s_barrier")
    stamp("A", "hist barrier")
    e(f"  ds_read_b64 v[{t0}:{t1}], v5 offset:{A_HIST}")
    e("  s_waitcnt lgkmcnt(0)")
    e(f"  v_add_u32 v{t2}, v{t0}, v{t1}")
    e(f"  v_mov_b32 v{t3}, v{t2}")
    wave_scan_add(t3)
    e(f"  s_lshl_b32 s58, s50, 2")
    e(f"  s_add_u32 s58, s58, {A_SCR}")
    e(f"  v_mov_b32 v{t4}, s58")
    e("  s_mov_b32 exec_lo, 0")
    e("  s_mov_b32 exec_hi, 0x80000000")
    e(f"  ds_write_b32 v{t4}, v{t3}")
    e("  s_mov_b64 exec, -1")
    e("  s_waitcnt lgkmcnt(0)")
    e("  s_barrier")
    e(f"  v_and_b32 v{t4}, 15, v0")
    e(f"  v_lshlrev_b32 v{t4}, 2, v{t4}")
    e(f"  v_add_u32 v{t4}, {A_SCR}, v{t4}")
    e(f"  ds_read_b32 v{t4}, v{t4}")
    e("  s_waitcnt lgkmcnt(0)")
    e(f"  v_mov_b32 v{t5}, v{t4}")
    for sh in (1, 2, 4, 8):
        e("  s_nop 1")
        e(f"  v_add_u32_dpp v{t5}, v{t5}, v{t5} row_shr:{sh} {DPP}")
    e(f"  v_sub_u32 v{t5}, v{t5}, v{t4}")
    e("  s_nop 0")
    e(f"  v_readlane_b32 s58, v{t5}, s50")
    e(f"  v_sub_u32 v{t3}, v{t3}, v{t2}")
    e("  s_nop 0")
    e(f"  v_add_u32 v{t2}, s58, v{t3}         ; start0")
    e(f"  v_add_u32 v{t3}, v{t2}, v{t0}       ; start1")
    e(f"  ds_write_b64 v5, v[{t2}:{t3}] offset:{A_HIST}")
    e(f"  v_and_b32 v{t4}, 3, v0")
    e(f"  v_cmp_eq_u32 vcc, 0, v{t4}")
    e("  s_and_saveexec_b64 s[60:61], vcc")
    if 'd' in AOPT:
        e(f"  v_lshrrev_b32 v{t2}, 1, v{t2}")
    e(f"  buffer_store_dword v{t2}, v0, s[40:43], 0 offen{ATT}")
    e("  s_mov_b64 exec, s[60:61]")
    e("  s_waitcnt lgkmcnt(0)")
    e("  s_barrier")
    stamp("A", "scan done")
    def put(r):
        e(f"  v_add_u32 v{O0+r}, v{O0+r}, v{RK0+r}")
        if 'd' in AOPT:
            e(f"  v_lshlrev_b32 v{RK0+r}, 1, v{O0+r}")
        else:
            e(f"  v_lshlrev_b32 v{RK0+r}, 2, v{O0+r}")
            e(f"  v_lshlrev_b32 v{O0+r}, 1, v{O0+r}")
        e(f"  ds_write_b32 v{RK0+r}, v{I0+r} offset:{A_A}")
        op = "ds_write_b16" if r % 2 == 0 else "ds_write_b16_d16_hi"
        e(f"  {op} v{O0+r}, v{AN0+r//2} offset:{A_C}")
    if 'm' in AOPT:
        for r in range(24):
            e(f"  ds_read_b32 v{O0+r}, v{O0+r} offset:{A_HIST}")
        e(f"  v_cmp_gt_u32 vcc, s59, v0")
        e("  s_and_saveexec_b64 s[62:63], vcc")
        e("  s_cbranch_execz LA_s24")
        e(f"  ds_read_b32 v{O0+24}, v{O0+24} offset:{A_HIST}")
        e("  s_waitcnt lgkmcnt(0)")
        put(24)
        lab("LA_s24")
        e("  s_mov_b64 exec, s[62:63]")
        e("  s_waitcnt lgkmcnt(0)")
        for r in range(24):
            put(r)
    else:
        groups = [range(0, 8), range(8, 16), range(16, 24), range(24, 25)]
        for g in groups:
            if g[0] == 24:
                e(f"  v_cmp_gt_u32 vcc, s59, v0")
                e("  s_and_saveexec_b64 s[62:63], vcc")
                e("  s_cbranch_execz LA_s24")
            for r in g:
                e(f"  ds_read_b32 v{O0+r}, v{O0+r} offset:{A_HIST}")
            e("  s_waitcnt lgkmcnt(0)")
            for r in g:
                put(r)
            if g[0] == 24:
                lab("LA_s24")
                e("  s_mov_b64 exec, s[62:63]")
    stamp("A", "scatter issued")
    def table_stats():
        gM, gR = 122, 123
        e(f"  v_mov_b32 v{gM}, 0")
        e(f"  v_mov_b32 v{gR}, 0")
        e("  s_mov_b32 s58, 0x7fff7fff")
        if 'n' not in AOPT:
            e("  s_waitcnt vmcnt(0)")
        for u in range(4):
            b = TB0 + 4 * u
            for k in range(4):
                e(f"  v_and_b32 v{b+k}, s58, v{b+k}")
            e(f"  v_pk_max_u16 v{b}, v{b}, v{b+1}")
            e(f"  v_pk_max_u16 v{b+2}, v{b+2}, v{b+3}")
            e(f"  v_pk_max_u16 v{b}, v{b}, v{b+2}")
            e(f"  v_lshrrev_b32 v{b+1}, 16, v{b}")
            e(f"  v_and_b32 v{b}, 0xffff, v{b}")
            e(f"  v_max_u32 v{b}, v{b}, v{b+1}")
            e("  s_nop 1")
            e(f"  v_max_u32_dpp v{b}, v{b}, v{b} quad_perm:[1,0,3,2] {DPP}")
            e(f"  v_max_u32 v{gM}, v{gM}, v{b}")
            e(f"  v_sub_u32 v{b}, 0x8000, v{b}")
            e(f"  v_and_b32 v{b}, 0x7fff, v{b}")
            e(f"  v_max_u32 v{gR}, v{gR}, v{b}")
        e(f"  v_lshrrev_b32 v{t5}, 16, v{gC}")
        e(f"  v_and_b32 v{gC}, 0xffff, v{gC}")
        e(f"  v_max_u32 v{gC}, v{gC}, v{t5}")
        e(f"  v_cmp_lt_u32 vcc, 0x3f80, v{gC}")
        e(f"  v_mov_b32 v{t5}, 0x7fff")
        e("  s_nop 0")
        e(f"  v_cndmask_b32 v{t5}, 0, v{t5}, vcc")
        e(f"  v_max_u32 v{gM}, v{gM}, v{t5}")
        wave_max([gM, gR])
        e(f"  v_mov_b32 v{t4}, {A_SCR + 64}")
        e("  s_mov_b32 exec_lo, 0")
        e("  s_mov_b32 exec_hi, 0x80000000")
        e(f"  ds_max_u32 v{t4}, v{gM}")
        e(f"  ds_max_u32 v{t4}, v{gR} offset:4")
        e("  s_mov_b64 exec, -1")
    if 'n' not in AOPT:
        table_stats()
    e("  s_waitcnt lgkmcnt(0)")
    e("  s_barrier")
    stamp("A", "scatter barrier")
    d = 8
    for u in range(6):
        e(f"  v_add_u32 v{t0}, {u*16384}, v4")
        e(f"  ds_read_b128 v[{d+4*u}:{d+4*u+3}], v{t0} offset:{A_A}")
    for u in range(3):
        e(f"  v_add_u32 v{t0}, {u*16384}, v4")
        e(f"  ds_read_b128 v[{d+24+4*u}:{d+24+4*u+3}], v{t0} offset:{A_C}")
    NX = 0 if 'n' in AOPT else 1
    if NX:
        e(f"  v_mov_b32 v{t4}, {A_SCR + 64}")
        e(f"  ds_read_b64 v[{t2}:{t3}], v{t4}")
    for u in range(6):
        e(f"  s_mov_b32 s53, {u*16384}")
        e(f"  s_waitcnt lgkmcnt({8+NX-u})")
        e(f"  buffer_store_dwordx4 v[{d+4*u}:{d+4*u+3}], v4, s[32:35], s53 offen{AST}")
    for u in range(3):
        e(f"  s_mov_b32 s53, {u*16384}")
        e(f"  s_waitcnt lgkmcnt({2+NX-u})")
        e(f"  buffer_store_dwordx4 v[{d+24+4*u}:{d+24+4*u+3}], v4, s[36:39], s53 offen{AST}")
    stamp("A", "stores issued")
    if STAMP == "A":
        e("  s_waitcnt vmcnt(0)")
    stamp("A", "stores done")
    stamp_dump("A", 14, 50)
    e(f"  s_cmp_lt_u32 s50, {-(-(CH*4 - 6*16384) // 1024)}")
    e("  s_cbranch_scc0 LA_t1")
    e(f"  v_add_u32 v{t0}, {6*16384}, v4")
    e(f"  ds_read_b128 v[60:63], v{t0} offset:{A_A}")
    e(f"  s_mov_b32 s53, {6*16384}")
    e("  s_waitcnt lgkmcnt(0)")
    e(f"  buffer_store_dwordx4 v[60:63], v4, s[32:35], s53 offen{AST}")
    lab("LA_t1")
    e(f"  s_cmp_lt_u32 s50, {-(-(CH*2 - 3*16384) // 1024)}")
    e("  s_cbranch_scc0 LA_t2")
    e(f"  v_add_u32 v{t0}, {3*16384}, v4")
    e(f"  ds_read_b128 v[64:67], v{t0} offset:{A_C}")
    e(f"  s_mov_b32 s53, {3*16384}")
    e("  s_waitcnt lgkmcnt(0)")
    e(f"  buffer_store_dwordx4 v[64:67], v4, s[36:39], s53 offen{AST}")
    lab("LA_t2")
    if 'n' in AOPT:
        e("  s_waitcnt vmcnt(10)")
        table_stats()
        e("  s_waitcnt lgkmcnt(0)")
        e("  s_barrier")
    e("  s_cmp_eq_u32 s50, 15")
    e("  s_cbranch_scc0 LA_end")
    if 'n' in AOPT:
        e(f"  v_mov_b32 v{t4}, {A_SCR + 64}")
        e(f"  ds_read_b64 v[{t2}:{t3}], v{t4}")
    e("  s_waitcnt lgkmcnt(0)")
    e(f"  v_mov_b32 v{t0}, 0")
    e("  s_mov_b32 exec_lo, 1")
    e("  s_mov_b32 exec_hi, 0")
    e(f"  buffer_store_dwordx2 v[{t2}:{t3}], v{t0}, s[44:47], 0 offen{ATT}")
    lab("LA_end")
    e("  s_endpgm")

def kernel_b():
    vH8, vIA, vIB, vCB, vOne = 1, 2, 4, 6, 7
    G0 = 8
    OA, CH_ = 40, 44
    P0 = 48
    t0, t1, t2, t3, t4, t5, t6, t7, t8 = range(56, 65)
    BS, LN = 65, 69
    XZ = 65
    CU = 73
    vL16 = 77
    WDS = 78
    RCP, RA0 = 80, 96
    def RA(s, j): return RA0 + 4 * j + s
    def RCp(s, j): return RCP + 4 * (j // 2) + s
    RBF, CEN, MR = 96, 70, 110
    WTR = [110, 111, 112, 113, 114, 115, 71, 72, 73, 74, 75, 76]
    WD, WU, WS, WR = 80, 82, 84, 86
    sW, sMag, sSc, sInv, sMode, sMsk, sN80, sTail, sPerm = 50, 53, 54, 55, 56, 57, 58, 59, 60
    sOv = 66
    vm = VmQ()
    e(f".globl {KB}")
    e(".p2align 8")
    e(f".type {KB},@function")
    lab(KB)
    e(f"  s_cmp_ge_u32 s2, {NB}")
    e("  s_cbranch_scc1 LB_end")
    if XMAP:
        e("  s_and_b32 s3, s2, 7")
        e("  s_lshr_b32 s2, s2, 3")
        e(f"  s_mul_i32 s4, s3, {NB//8}")
        if NB % 8:
            e(f"  s_min_u32 s3, s3, {NB%8}")
            e("  s_add_u32 s2, s2, s3")
        e("  s_add_u32 s2, s2, s4")
    e("  s_load_dwordx2 s[78:79], s[0:1], 104    ; ws")
    e("  s_load_dwordx2 s[68:69], s[0:1], 0      ; m")
    e("  s_load_dwordx2 s[70:71], s[0:1], 24     ; dist")
    e("  s_load_dwordx2 s[40:41], s[0:1], 40     ; centers")
    e("  s_load_dwordx4 s[44:47], s[0:1], 56")
    e("  s_load_dwordx4 s[72:75], s[0:1], 72")
    e("  s_load_dwordx2 s[76:77], s[0:1], 88     ; out")
    e("  v_lshrrev_b32 v8, 6, v0")
    e(f"  v_and_b32 v{vL16}, 15, v0")
    e(f"  v_readfirstlane_b32 s{sW}, v8")
    e(f"  v_and_b32 v9, 1, v0")
    e(f"  v_lshlrev_b32 v{vH8}, 3, v9")
    e(f"  v_lshlrev_b32 v{vIA+1}, 4, v9")
    e(f"  v_lshlrev_b32 v{vIB+1}, 4, v9")
    e(f"  v_mov_b32 v{vCB}, {2047*ROWB}")
    e(f"  v_mov_b32 v{vOne}, 1")
    e(f"  s_mul_i32 s80, s2, {BINE*32}")
    e(f"  s_mul_i32 s81, s2, {BINE*2}")
    e(f"  s_mov_b32 s{sMode}, 0")
    e(f"  s_mov_b32 s{sMsk}, 0x7ffff")
    e(f"  s_mov_b32 s{sN80}, {-ROWB}")
    e(f"  s_mov_b32 s{sPerm}, 0x05040100")
    e("  s_waitcnt lgkmcnt(0)")
    e(f"  s_add_u32 s82, s78, {WS_TT}")
    e("  s_addc_u32 s83, s79, 0")
    srd(16, 82, 83, NCH * 1024)
    e(f"  s_add_u32 s82, s78, {WS_STATS}")
    e("  s_addc_u32 s83, s79, 0")
    srd(20, 82, 83, NCH * 8)
    e(f"  s_add_u32 s82, s78, {WS_RECA - 4}")
    e("  s_addc_u32 s83, s79, 0")
    srd(4, 82, 83, TP + 1, 4)
    e(f"  s_add_u32 s82, s78, {WS_RECC - 2}")
    e("  s_addc_u32 s83, s79, 0")
    srd(8, 82, 83, TP + 1, 2)
    srd(12, 68, 69, E, 32)
    srd_off(24, 68, 69, 80, BINE * 32)
    srd_off(28, 76, 77, 80, BINE * 32)
    srd_off(32, 70, 71, 81, BINE * 2)
    e(f"  s_sub_u32 s82, {E*32}, s80")
    e(f"  s_min_u32 s26, s82, {BINE*32}")
    e("  s_mov_b32 s30, s26")
    e("  s_lshr_b32 s34, s26, 4")
    lab("LB_start")
    BPRIO = int(os.environ.get("BPRIO", "1"))
    if BPRIO:
        e("  s_setprio 3")
    stamp("B", "start")
    ST0 = 48
    def run_table_loads():
        g = t0
        e(f"  v_and_b32 v{t1}, 63, v0")
        e(f"  v_lshrrev_b32 v{g}, 4, v{t1}            ; g = lane>>4")
        e(f"  s_lshl_b32 s80, s{sW}, 4")
        e(f"  v_add_u32 v{t1}, s80, v{g}              ; 16w+g")
        e(f"  s_lshl_b32 s81, s2, 2")
        e(f"  v_lshlrev_b32 v{t2}, 10, v{t1}")
        e(f"  v_add_u32 v{t2}, s81, v{t2}")
        for s in range(4):
            e(f"  v_add_u32 v{t3}, {s*4096}, v{t2}")
            e(f"  buffer_load_dwordx2 v[{G0+2*s}:{G0+2*s+1}], v{t3}, s[16:19], 0 offen")
            vm.issue("T")
    rp_n = [0]
    def run_params():
        rp_n[0] += 1
        e(f"  s_mov_b32 s80, {CH}")
        for s in range(4):
            e(f"  v_add_u32 v{t3}, {4*s}, v{t1}")
            e(f"  v_mad_u32_u24 v{t3}, v{t3}, s80, 1")
            e(f"  v_add_u32 v{BS+s}, v{t3}, v{G0+2*s}")
            if NB == 256:
                e(f"  s_cmp_eq_u32 s2, {NB-1}")
                e(f"  s_cbranch_scc0 LB_rp{rp_n[0]}_{s}")
                e(f"  v_add_u32 v{t4}, {4*s}, v{t1}")
                e(f"  v_cmp_gt_u32 vcc, {NBIG}, v{t4}")
                e(f"  v_mov_b32 v{t4}, {CH}")
                e(f"  v_mov_b32 v{G0+2*s+1}, {CH-64}")
                e(f"  v_cndmask_b32 v{G0+2*s+1}, v{G0+2*s+1}, v{t4}, vcc")
                lab(f"LB_rp{rp_n[0]}_{s}")
            e(f"  v_sub_u32 v{LN+s}, v{G0+2*s+1}, v{G0+2*s}")
    run_table_loads()
    e(f"  v_and_b32 v{t3}, 63, v0")
    e(f"  v_lshlrev_b32 v{t3}, 3, v{t3}")
    for s in range(4):
        e(f"  buffer_load_dwordx2 v[{ST0+2*s}:{ST0+2*s+1}], v{t3}, s[20:23], 0 offen offset:{s*512}")
        vm.issue("ST")
    if "B" in TOUCH:
        e(f"  v_mov_b32 v{t3}, 0")
        for r in (28,):
            e(f"  buffer_load_dword v79, v{t3}, s[{r}:{r+3}], 0 offen")
            vm.issue("touch")
    ZR = 40
    for k in range(4):
        e(f"  v_mov_b32 v{ZR+k}, 0")
    e(f"  v_lshlrev_b32 v{t3}, 4, v0")
    for u in range(8):
        if u == 4:
            e(f"  v_add_u32 v{t3}, 0x10000, v{t3}")
        e(f"  ds_write_b128 v{t3}, v[{ZR}:{ZR+3}] offset:{(u%4)*16384}")
    vm.wait("T")
    stamp("B", "T arrived")
    run_params()
    e(f"  v_max_u32 v{t3}, v{LN}, v{LN+1}")
    e(f"  v_max3_u32 v{t3}, v{t3}, v{LN+2}, v{LN+3}")
    e(f"  v_cmp_lt_u32 vcc, 0x80, v{t3}")
    e(f"  s_cmp_lg_u64 vcc, 0")
    e(f"  s_cselect_b32 s{sTail}, 1, 0")
    def LZ(s, j): return RCp(s, j) if j % 2 == 0 else G0 + 8 + 4 * (j // 2) + s
    if EARLYBAR:
        e("  s_waitcnt lgkmcnt(0)")
        e("  s_barrier")
    for s in range(4):
        lp, lo, hi = t2, t4, t6
        e(f"  v_min_u32 v{lp}, 0x80, v{LN+s}          ; len'")
        e(f"  v_mov_b32 v{lo}, v{vL16}")
        e(f"  v_lshlrev_b32 v{lp}, 16, v{lp}")
        def msk(j):
            return f"s[{84+2*j}:{85+2*j}]" if (BURST and not STAMP) else "vcc"
        def lds(j):
            e(f"  s_mov_b64 exec, {msk(j)}")
            e(f"  buffer_load_ushort v{LZ(s,j)}, v{RA(s,j)}, s[8:11], 0 idxen{BREC}")
            vm.issue(f"C{s}_{j}")
            e(f"  buffer_load_dword v{RA(s,j)}, v{RA(s,j)}, s[4:7], 0 idxen{BREC}")
            vm.issue(f"A{s}_{j}")
        for j in range(8):
            e(f"  v_mul_hi_u32_u24 v{hi}, {(j+1) << 13:#x}, v{lp}     ; ((j+1)*len') >> 3")
            e(f"  v_cmp_lt_u32 {msk(j)}, v{lo}, v{hi}")
            e(f"  v_add_u32 v{t7}, v{BS+s}, v{lo}")
            e(f"  v_add_u32 v{lo}, v{hi}, v{vL16}")
            e(f"  v_cndmask_b32 v{RA(s,j)}, 0, v{t7}, {msk(j)}")
            if not (BURST and not STAMP):
                lds(j)
                e("  s_mov_b64 exec, -1")
        if BURST and not STAMP:
            for j in range(8):
                lds(j)
            e("  s_mov_b64 exec, -1")
        if s == 2:
            vm.wait("A0_7")
    if BPRIO:
        e("  s_setprio 0")
    stamp("B", "rec loads issued")
    a, b = ST0, ST0 + 1
    e(f"  v_max3_u32 v{a}, v{ST0}, v{ST0+2}, v{ST0+4}")
    e(f"  v_max3_u32 v{b}, v{ST0+1}, v{ST0+3}, v{ST0+5}")
    e(f"  v_max_u32 v{a}, v{a}, v{ST0+6}")
    e(f"  v_max_u32 v{b}, v{b}, v{ST0+7}")
    wave_max([a, b])
    e("  s_nop 0")
    e(f"  v_readlane_b32 s80, v{a}, 63")
    e(f"  v_readlane_b32 s81, v{b}, 63")
    e("  s_nop 0")
    e("  s_lshr_b32 s82, s80, 7")
    e("  s_sub_u32 s81, 0x8000, s81")
    e("  s_lshr_b32 s81, s81, 7")
    e("  s_sub_u32 s83, s82, s81")
    e(f"  s_cmp_eq_u32 s{sMode}, 2")
    e("  s_cbranch_scc1 LB_float")
    e("  s_cmp_ge_u32 s80, 0x7f80")
    e("  s_cbranch_scc1 LB_float")
    e("  s_cmp_lt_u32 s82, 32")
    e("  s_cbranch_scc1 LB_float")
    e("  s_cmp_gt_u32 s82, 200")
    e("  s_cbranch_scc1 LB_float")
    e("  s_cmp_gt_i32 s83, 10")
    e("  s_cbranch_scc1 LB_float")
    e(f"  s_mov_b32 s{sMag}, 0x4b400000")
    e("  s_sub_u32 s83, 275, s82")
    e(f"  s_lshl_b32 s{sSc}, s83, 23")
    e("  s_sub_u32 s83, s82, 21")
    e(f"  s_lshl_b32 s{sInv}, s83, 23")
    e("  s_branch LB_fast")
    lab("LB_float")
    e(f"  s_mov_b32 s{sMode}, 2")
    e(f"  s_mov_b32 s{sMag}, 0")
    e(f"  s_mov_b32 s{sSc}, 1.0")
    e(f"  s_mov_b32 s{sInv}, 1.0")
    e(f"  s_mov_b32 s{sTail}, 1")
    e("  s_waitcnt vmcnt(0) lgkmcnt(0)")
    e("  s_barrier")
    e("  s_branch LB_generic")
    lab("LB_fast")
    for s in range(4):
        for jj in range(4):
            vm.wait(f"C{s}_{2*jj+1}")
            e(f"  v_perm_b32 v{RCp(s,2*jj)}, v{LZ(s,2*jj+1)}, v{RCp(s,2*jj)}, s{sPerm}")
    vm.drain()
    stamp("B", "records arrived")

    def dec_idx(ra, dst):
        e(f"  v_bfi_b32 v{dst}, v{ra}, 0, s{sMsk}")
    def dec_rest(ra, rc, hi_half, s):
        e(f"  v_bfe_u32 v{t7}, v{ra}, 19, 11")
        if hi_half:
            e(f"  v_and_b32 v{t8}, 0xffff0000, v{rc}")
        else:
            e(f"  v_lshlrev_b32 v{t8}, 16, v{rc}")
        e(f"  v_mad_i32_i24 v{OA+s}, v{t7}, s{sN80}, v{vCB}")
        e(f"  v_mul_f32 v{CH_+s}, s{sSc}, v{t8}")
        e(f"  ds_add_u32 v{OA+s}, v{vOne} offset:64")
    def gather(s, h, src, tag):
        g0 = G0 + 8 * s + 4 * h
        vi = vIA if h == 0 else vIB
        qp = "[0,0,2,2]" if h == 0 else "[1,1,3,3]"
        e(f"  v_mov_b32_dpp v{vi}, v{src} quad_perm:{qp} {DPP}")
        if "nogather" in ABL:
            e(f"  v_mov_b32 v{vi}, -1")
        e(f"  buffer_load_dwordx4 v[{g0}:{g0+3}], v[{vi}:{vi+1}], s[12:15], 0 idxen offen")
        vm.issue(tag)
    def consume(s, h, isfloat):
        qp = "[0,0,2,2]" if h == 0 else "[1,1,3,3]"
        g0 = G0 + 8 * s + 4 * h
        ad, ch, cl = t0 + 3 * h, t1 + 3 * h, t2 + 3 * h
        e(f"  v_mov_b32_dpp v{ch}, v{CH_+s} quad_perm:{qp} {DPP}")
        e(f"  v_add_u32_dpp v{ad}, v{OA+s}, v{vH8} quad_perm:{qp} {DPP}")
        e(f"  v_lshrrev_b32 v{cl}, 16, v{ch}")
        for k in range(4):
            e(f"  v_dot2_f32_bf16 v{P0+2*k+1}, v{g0+k}, v{ch}, s{sMag}")
            e(f"  v_dot2_f32_bf16 v{P0+2*k}, v{g0+k}, v{cl}, s{sMag}")
            if "noatom" in ABL:
                continue
            if isfloat:
                e(f"  ds_add_f32 v{ad}, v{P0+2*k} offset:{16*k}")
                e(f"  ds_add_f32 v{ad}, v{P0+2*k+1} offset:{16*k+4}")
            else:
                e(f"  ds_add_u64 v{ad}, v[{P0+2*k}:{P0+2*k+1}] offset:{16*k}")
    if not EARLYBAR:
        e("  s_waitcnt lgkmcnt(0)")
        e("  s_barrier")
    stamp("B", "after barrier")
    tI = t6
    for s in range(4):
        dec_idx(RA(s, 0), tI)
        dec_rest(RA(s, 0), RCp(s, 0), False, s)
        gather(s, 0, tI, f"g0_{s}_0")
        gather(s, 1, tI, f"g0_{s}_1")

    def epi_loads1():
        gg, nn = t7, vL16
        e(f"  v_and_b32 v{t8}, 63, v0")
        e(f"  v_lshrrev_b32 v{gg}, 4, v{t8}")
        e(f"  v_lshlrev_b32 v{t8}, 6, v{gg}")
        e(f"  v_lshl_add_u32 v{t8}, v{nn}, 1, v{t8}     ; 64g + 2n")
        for k, off in enumerate((0, 32, 256, 288)):
            e(f"  global_load_ushort v{WTR[k]}, v{t8}, s[72:73] offset:{off}"); vm.issue("E1")
        for k in range(2):
            e(f"  global_load_ushort v{WTR[8+k]}, v{t8}, s[44:45] offset:{32*k}"); vm.issue("E1")
            e(f"  global_load_ushort v{WTR[10+k]}, v{t8}, s[46:47] offset:{32*k}"); vm.issue("E1")
        e(f"  v_lshlrev_b32 v{t8}, 7, v{gg}")
        e(f"  v_lshl_add_u32 v{t8}, v{nn}, 1, v{t8}     ; 128g + 2n")
        for k in range(4):
            e(f"  global_load_ushort v{WTR[4+k]}, v{t8}, s[74:75] offset:{32*k}"); vm.issue("E1")
        e(f"  v_lshlrev_b32 v{t8}, 2, v{gg}")
        e(f"  global_load_dword v{CEN}, v{t8}, s[40:41]"); vm.issue("E1")
        e(f"  s_lshl_b32 s80, s{sW}, 5")
        e(f"  v_lshl_add_u32 v{t8}, v{nn}, 1, s80")
        for u in range(7):
            e(f"  buffer_load_ushort v{RBF+2*u}, v{t8}, s[32:35], 0 offen offset:{u*512}"); vm.issue("E1")
            e(f"  v_mov_b32 v{RBF+2*u+1}, 0")
    def epi_loads2():
        gg, nn = t7, vL16
        e(f"  v_and_b32 v{t8}, 63, v0")
        e(f"  v_lshrrev_b32 v{gg}, 4, v{t8}")
        e(f"  s_lshl_b32 s80, s{sW}, 9")
        e(f"  v_lshlrev_b32 v{t8}, 5, v{nn}")
        e(f"  v_lshl_add_u32 v{t8}, v{gg}, 3, v{t8}")
        e(f"  v_add_u32 v{t8}, s80, v{t8}")
        for u in range(7):
            e(f"  s_mov_b32 s81, {u*8192}")
            e(f"  buffer_load_dwordx2 v[{MR+2*u}:{MR+2*u+1}], v{t8}, s[24:27], s81 offen{BM}"); vm.issue("E2")
    def epi_prep_w():
        e(f"  v_lshl_or_b32 v{WD}, v{WTR[1]}, 16, v{WTR[0]}")
        e(f"  v_lshl_or_b32 v{WD+1}, v{WTR[3]}, 16, v{WTR[2]}")
        e(f"  v_lshl_or_b32 v{WU}, v{WTR[5]}, 16, v{WTR[4]}")
        e(f"  v_lshl_or_b32 v{WU+1}, v{WTR[7]}, 16, v{WTR[6]}")
        e(f"  v_lshl_or_b32 v{WR}, v{WTR[9]}, 16, v{WTR[8]}")
        e(f"  v_lshl_or_b32 v{WS}, v{WTR[11]}, 16, v{WTR[10]}")
        e(f"  v_mov_b32 v{WR+1}, 0")
        e(f"  v_mov_b32 v{WS+1}, 0")
        c0, c1, x, y, p = XZ, XZ + 1, XZ + 2, XZ + 3, XZ + 4
        for k in range(2):
            e(f"  v_lshlrev_b32 v{x}, 16, v{WD+k}")
            e(f"  v_and_b32 v{y}, 0xffff0000, v{WD+k}")
            e(f"  v_mul_f32 v{x}, s{sInv}, v{x}")
            e(f"  v_mul_f32 v{y}, s{sInv}, v{y}")
            e(f"  v_cvt_pk_bf16_f32 v{WDS+k}, v{x}, v{y}")
        e(f"  v_lshlrev_b32 v{c0}, 16, v{CEN}")
        e(f"  v_and_b32 v{c1}, 0xffff0000, v{CEN}")
    def epi_prep_rbf(u):
        c0, c1, x, y, p = XZ, XZ + 1, XZ + 2, XZ + 3, XZ + 4
        r = RBF + 2 * u
        e("  s_mov_b32 s80, 0xc1200000           ; -10.0")
        e("  s_mov_b32 s81, 0x3fb8aa3b           ; log2(e)")
        e(f"  v_lshlrev_b32 v{r}, 16, v{r}")
        e(f"  v_sub_f32 v{x}, v{r}, v{c0}")
        e(f"  v_sub_f32 v{y}, v{r}, v{c1}")
        for op in ("sq", "m10", "exp"):
            e(f"  v_cvt_pk_bf16_f32 v{p}, v{x}, v{y}")
            e(f"  v_lshlrev_b32 v{x}, 16, v{p}")
            e(f"  v_and_b32 v{y}, 0xffff0000, v{p}")
            if op == "sq":
                e(f"  v_mul_f32 v{x}, v{x}, v{x}")
                e(f"  v_mul_f32 v{y}, v{y}, v{y}")
            elif op == "m10":
                e(f"  v_mul_f32 v{x}, s80, v{x}")
                e(f"  v_mul_f32 v{y}, s80, v{y}")
            else:
                e(f"  v_mul_f32 v{x}, s81, v{x}")
                e(f"  v_mul_f32 v{y}, s81, v{y}")
                e(f"  v_exp_f32 v{x}, v{x}")
                e(f"  v_exp_f32 v{y}, v{y}")
                e("  s_nop 0")
        e(f"  v_cvt_pk_bf16_f32 v{r}, v{x}, v{y}")
    def epi_prep():
        epi_prep_w()
        for u in range(7):
            epi_prep_rbf(u)

    LASTBAR = int(os.environ.get("LASTBAR", "6"))
    FIRSTBAR = int(os.environ.get("FIRSTBAR", "0"))
    for j in range(8):
        BARPOS = int(os.environ.get("BARPOS", "0"))
        dobar = "nobar" not in ABL and FIRSTBAR <= j <= LASTBAR and str(j) in os.environ.get("BARSET", "01234567")
        if dobar and BARPOS == 0:
            e("  s_barrier")
        if j in (0, 1, 2, 4, 6, 7):
            stamp("B", f"phase {j} begin")
        for s in range(4):
            last = (j == 7)
            if s and s % BARN == 0 and not last:
                e("  s_barrier")
            if not last:
                dec_idx(RA(s, j + 1), tI)
            vm.wait(f"g{j}_{s}_0")
            consume(s, 0, False)
            if not last:
                gather(s, 0, tI, f"g{j+1}_{s}_0")
            if dobar and BARPOS == 1 and s == 0:
                e("  s_barrier")
            vm.wait(f"g{j}_{s}_1")
            consume(s, 1, False)
            if not last:
                gather(s, 1, tI, f"g{j+1}_{s}_1")
                if dobar and BARPOS == 2 and s == 0:
                    e("  s_barrier")
                dec_rest(RA(s, j + 1), RCp(s, j + 1), (j + 1) % 2 == 1, s)
            step = 4 * j + s
            if step == 15:
                epi_loads1()
            if SPREAD:
                if step == 19:
                    vm.wait("E1")
                    epi_prep_w()
                if 20 <= step <= 26:
                    epi_prep_rbf(step - 20)
                if step == 27:
                    epi_loads2()
            else:
                if step == 20:
                    vm.wait("E1")
                    epi_prep()
                if step == 23:
                    epi_loads2()
    stamp("B", "main done")
    e(f"  s_cmp_eq_u32 s{sTail}, 0")
    e("  s_cbranch_scc1 LB_epi")
    if "notail" in ABL:
        e("  s_branch LB_epi")
    lab("LB_generic")
    q_main = list(vm.q)
    e("  s_waitcnt vmcnt(0)")
    run_table_loads()
    e("  s_waitcnt vmcnt(0)")
    run_params()
    for s in range(4):
        e(f"  v_min_u32 v{CU+s}, 0x80, v{LN+s}")
        e(f"  s_cmp_eq_u32 s{sMode}, 2")
        e(f"  s_cbranch_scc0 LB_gen{s}_c")
        e(f"  v_mov_b32 v{CU+s}, 0")
        lab(f"LB_gen{s}_c")
    for s in range(4):
        lab(f"LB_gen{s}")
        e(f"  v_add_u32 v{t0}, v{CU+s}, v{vL16}")
        e(f"  v_cmp_lt_u32 vcc, v{t0}, v{LN+s}")
        e(f"  s_cbranch_vccz LB_gen{s}_done")
        e(f"  v_add_u32 v{t0}, v{BS+s}, v{t0}")
        e(f"  v_add_u32 v{CU+s}, 16, v{CU+s}")
        e(f"  v_cndmask_b32 v{t0}, -1, v{t0}, vcc")
        e(f"  buffer_load_dword v{G0+8}, v{t0}, s[4:7], 0 idxen")
        e(f"  buffer_load_ushort v{G0+9}, v{t0}, s[8:11], 0 idxen")
        e("  s_waitcnt vmcnt(0)")
        dec_idx(G0 + 8, tI)
        dec_rest(G0 + 8, G0 + 9, False, 0)
        gather(0, 0, tI, "x")
        gather(0, 1, tI, "x")
        e("  s_waitcnt vmcnt(0)")
        e(f"  s_cmp_eq_u32 s{sMode}, 2")
        e(f"  s_cbranch_scc1 LB_gen{s}_f")
        consume(0, 0, False)
        consume(0, 1, False)
        e(f"  s_branch LB_gen{s}")
        lab(f"LB_gen{s}_f")
        consume(0, 0, True)
        consume(0, 1, True)
        e(f"  s_branch LB_gen{s}")
        lab(f"LB_gen{s}_done")
    e(f"  s_cmp_eq_u32 s{sMode}, 2")
    e("  s_cbranch_scc0 LB_epi")
    epi_loads1()
    e("  s_waitcnt vmcnt(0)")
    epi_prep()
    epi_loads2()
    lab("LB_epi")
    vm.q = []
    e("  s_waitcnt lgkmcnt(0)")
    e("  s_barrier")
    stamp("B", "final barrier")
    g = t0
    e(f"  v_and_b32 v{t1}, 63, v0")
    e(f"  v_lshrrev_b32 v{g}, 4, v{t1}")
    e(f"  s_lshl_b32 s80, s{sW}, 4")
    e(f"  v_add_u32 v{t1}, s80, v{vL16}")
    e(f"  v_mul_u32_u24 v{t1}, {ROWB}, v{t1}")
    e(f"  v_lshl_add_u32 v{t2}, v{g}, 4, v{t1}")
    e(f"  v_add_u32 v{t3}, {4*256*ROWB}, v{t1}")
    e(f"  v_add_u32 v{t4}, {4*256*ROWB}, v{t2}")
    A_ = lambda u: 8 + 12 * (u % 4)
    G_ = lambda u: 8 + 12 * (u % 4) + 4
    R_ = lambda u: 8 + 12 * (u % 4) + 8
    PKS = (66, 68)
    X0, vMx = 70, 71
    NTILE = -(-BINE // 16)
    W6 = NTILE - 96
    def tile_reads(u):
        ra, rc = (t2, t1) if u < 4 else (t4, t3)
        e(f"  ds_read_b128 v[{A_(u)}:{A_(u)+3}], v{ra} offset:{(u%4)*256*ROWB}")
        e(f"  ds_read_b32 v{G_(u)}, v{rc} offset:{(u%4)*256*ROWB+64}")
    def tile_stage1(u):
        a, gg, rr = A_(u), G_(u), R_(u)
        PK = PKS[u % 2]
        e(f"  v_max_u32 v{vMx}, v{vMx}, v{gg}")
        e(f"  s_cbranch_scc1 LB_e{u}_f")
        e(f"  v_mul_u32_u24 v{gg}, 0x12d, v{gg}")
        e(f"  v_lshlrev_b32 v{gg+1}, 22, v{gg}")
        for k in (0, 2):
            e(f"  v_sub_u32 v{a+k}, v{a+k}, v{gg+1}")
            e(f"  v_sub_u32 v{a+k+1}, v{a+k+1}, v{gg+1}")
            e(f"  v_ashrrev_i32 v{gg+2}, 22, v{a+k}")
            e(f"  v_add_u32 v{gg+2}, v{gg+2}, v{gg}")
            e(f"  v_ashrrev_i32 v{gg+2}, 10, v{gg+2}")
            e(f"  v_sub_u32 v{a+k+1}, v{a+k+1}, v{gg+2}")
        for k in range(4):
            e(f"  v_cvt_f32_i32 v{a+k}, v{a+k}")
        lab(f"LB_e{u}_f")
        e(f"  v_cvt_pk_bf16_f32 v{PK}, v{a}, v{a+1}")
        e(f"  v_cvt_pk_bf16_f32 v{PK+1}, v{a+2}, v{a+3}")
        e(f"  v_mfma_f32_16x16x16_bf16 v[{gg}:{gg+3}], v[{WS}:{WS+1}], v[{RBF+2*u}:{RBF+2*u+1}], 0")
        e(f"  v_mfma_f32_16x16x16_bf16 v[{rr}:{rr+3}], v[{WR}:{WR+1}], v[{RBF+2*u}:{RBF+2*u+1}], 0")
        e(f"  v_mfma_f32_16x16x16_bf16 v[{a}:{a+3}], v[{WDS}:{WDS+1}], v[{PK}:{PK+1}], 0")
    def tile_stage2(u):
        a, gg = A_(u), G_(u)
        PK = PKS[u % 2]
        for k in range(4):
            e(f"  v_mul_f32 v{a+k}, v{a+k}, v{gg+k}")
        e(f"  v_cvt_pk_bf16_f32 v{PK}, v{a}, v{a+1}")
        e(f"  v_cvt_pk_bf16_f32 v{PK+1}, v{a+2}, v{a+3}")
        e("  s_nop 1")
        e(f"  v_mfma_f32_16x16x16_bf16 v[{gg}:{gg+3}], v[{WU}:{WU+1}], v[{PK}:{PK+1}], 0")
    def tile_stage3(u):
        a, gg, rr = A_(u), G_(u), R_(u)
        m0, m1 = MR + 2 * u, MR + 2 * u + 1
        e(f"  v_lshlrev_b32 v{a}, 16, v{m0}")
        e(f"  v_and_b32 v{a+1}, 0xffff0000, v{m0}")
        e(f"  v_lshlrev_b32 v{a+2}, 16, v{m1}")
        e(f"  v_and_b32 v{a+3}, 0xffff0000, v{m1}")
        for k in range(4):
            e(f"  v_fmac_f32 v{a+k}, v{gg+k}, v{rr+k}")
        e(f"  v_cvt_pk_bf16_f32 v{m0}, v{a}, v{a+1}")
        e(f"  v_cvt_pk_bf16_f32 v{m1}, v{a+2}, v{a+3}")
        e(f"  s_mov_b32 s81, {u*8192}")
        e(f"  buffer_store_dwordx2 v[{m0}:{m1}], v{t6}, s[28:31], s81 offen{BOUT}")
    def guarded(u, fn, tag):
        if u == 6:
            e(f"  s_cmp_ge_u32 s{sW}, {W6}")
            e(f"  s_cbranch_scc1 LB_skip6{tag}")
            if tag == "b":
                e(f"  s_cmp_eq_u32 s{sMode}, 2")
        fn(u)
        if u == 6:
            lab(f"LB_skip6{tag}")
    for u in (0, 1, 2, 3):
        tile_reads(u)
    e(f"  s_lshl_b32 s80, s{sW}, 9")
    e(f"  v_lshlrev_b32 v{t6}, 5, v{vL16}")
    e(f"  v_lshl_add_u32 v{t6}, v{g}, 3, v{t6}")
    e(f"  v_add_u32 v{t6}, s80, v{t6}")
    e(f"  v_mov_b32 v{vMx}, 0")
    for gi, grp in enumerate(((0, 1, 2, 3), (4, 5, 6))):
        if gi:
            for u in grp:
                guarded(u, tile_reads, "a")
        e("  s_waitcnt lgkmcnt(0)")
        e(f"  s_cmp_eq_u32 s{sMode}, 2")
        for u in grp:
            guarded(u, tile_stage1, "b")
        e("  s_nop 7")
        for u in grp:
            guarded(u, tile_stage2, "c")
        if gi == 0:
            e("  s_waitcnt vmcnt(0)              ; m rows")
        e("  s_nop 7")
        for u in grp:
            guarded(u, tile_stage3, "d")
    e(f"  v_cmp_lt_u32 s[{sOv}:{sOv+1}], 0x1ff, v{vMx}" if False else f"  v_cmp_lt_u32 vcc, 0x1ff, v{vMx}")
    e(f"  s_mov_b64 s[{sOv}:{sOv+1}], vcc")
    stamp("B", "epilogue done")
    stamp_dump("B", 78, sW)
    e(f"  s_cmp_eq_u32 s{sMode}, 2")
    e("  s_cbranch_scc1 LB_end")
    e(f"  s_cmp_eq_u64 s[{sOv}:{sOv+1}], 0")
    e("  s_cbranch_scc1 LB_noov")
    e(f"  v_mov_b32 v{t3}, {B_FLAG}")
    e(f"  ds_write_b32 v{t3}, v{vOne}")
    lab("LB_noov")
    e("  s_waitcnt lgkmcnt(0)")
    e("  s_barrier")
    e(f"  v_mov_b32 v{t3}, {B_FLAG}")
    e(f"  ds_read_b32 v{t3}, v{t3}")
    e("  s_waitcnt lgkmcnt(0)")
    e(f"  v_readfirstlane_b32 s80, v{t3}")
    e("  s_cmp_eq_u32 s80, 0")
    e("  s_cbranch_scc1 LB_end")
    e("  s_waitcnt vmcnt(0)")
    e("  s_barrier")
    e(f"  s_mov_b32 s{sMode}, 2")
    e("  s_branch LB_start")
    lab("LB_end")
    e("  s_endpgm")

def descriptor(name, vgpr, sgpr):
    e(".p2align 6")
    e(f".amdhsa_kernel {name}")
    e(f"  .amdhsa_next_free_vgpr {vgpr}")
    e(f"  .amdhsa_next_free_sgpr {sgpr}")
    e(f"  .amdhsa_accum_offset {vgpr}")
    e("  .amdhsa_group_segment_fixed_size 0")
    e("  .amdhsa_kernarg_size 112")
    e("  .amdhsa_user_sgpr_count 2")
    e("  .amdhsa_user_sgpr_kernarg_segment_ptr 1")
    e("  .amdhsa_system_sgpr_workgroup_id_x 1")
    e("  .amdhsa_float_denorm_mode_32 3")
    e(".end_amdhsa_kernel")

header = open("standalone__molecular_angular_gemnet__graph.s.ref").read().split("; Override launch")[0]
e(header.rstrip())
for _l in """
; Algorithm (L = 1, so sbf @ w_sbf = cos(f*angle[t]) * (rbf[o] @ w_sbf) and the per-triplet layer factors out of the sum):
;   S[o]   = sum over triplets t with idx_out[t] = o of cos(f*angle[t]) * m[idx_in[t]]
;   out[o] = m[o] + (((S[o] @ w_down) * (rbf[o] @ w_sbf)) @ w_up) * (rbf[o] @ w_rbf)
; Launch 1 (part): each workgroup counting-sorts one chunk of ~25000 triplets in LDS by (output bin, source range) and
;   writes 6-byte records (source row, local output row, bf16 cosine) plus a table of run starts to d_ws.  It also
;   reads its slice of m (into the last-level cache) and reports max |m| and the smallest non-zero row maximum.
; Launch 2 (main): one workgroup per bin of 1564 output edges.  Every wave keeps the records of its 16 runs in
;   registers and walks them in 8 phases of ascending source rows (all workgroups sweep m together, so the gathers
;   hit L2), accumulates cos * m in LDS and finishes with the edge-level layers on the matrix cores.
;   Accumulation: products of two bf16 values are exact in f32; they are rounded to a 22-bit fixed-point grid scaled to
;   max |m| and added with 64-bit integer LDS atomics (two features each; LDS f32 atomics are serialised per lane).
;   If the rows of m span more than 2^10 in magnitude, m or a cosine is not finite, or an edge has more than 511
;   triplets, the bin is accumulated with f32 LDS atomics instead.
""".strip().split("\n"):
    e(_l)
for _k in os.environ.get("LIST", "AB"):
    if _k == "A":
        e(f"; @launch kernel={KA} grid=({NCH},1,1) block=(1024,1,1) lds={A_LDS}")
    elif _k == "e":
        e(f"; @launch kernel=empty_kernel grid=(1,1,1) block=(64,1,1) lds=0")
    elif _k == "E":
        e(f"; @launch kernel=empty_kernel grid=(250,1,1) block=(1024,1,1) lds=131072")
    else:
        e(f"; @launch kernel={KB} grid=({NB},1,1) block=(1024,1,1) lds={B_LDS}")
e('.amdgcn_target "amdgcn-amd-amdhsa--gfx950"')
e(".text")
kernel_a()
kernel_b()
if set(os.environ.get("LIST", "")) & set("eE"):
    e(".globl empty_kernel")
    e(".p2align 8")
    e(".type empty_kernel,@function")
    lab("empty_kernel")
    e("  s_endpgm")
e('.section .rodata,"a"')
if set(os.environ.get("LIST", "")) & set("eE"):
    descriptor("empty_kernel", 128, 102)
descriptor(KA, 128, 102)
descriptor(KB, 128, 102)
dst = sys.argv[1] if len(sys.argv) > 1 else "standalone__molecular_angular_gemnet__graph.s"
open(dst, "w").write("\n".join(out) + "\n")
print("wrote", dst, len(out), "lines")
```

```python
import sys, os
DBG = os.environ.get("DBG", "")
ABL = os.environ.get("ABL", "").split(",")
def pol(name, default=""):
    v = os.environ.get(name, default)
    return (" " + v.replace("+", " ")) if v else ""
PF = int(os.environ.get("PF", "0"))
PFLEAD = int(os.environ.get("PFLEAD", "8"))
BARN = int(os.environ.get("BARN", "4"))
SPREAD = int(os.environ.get("SPREAD", "1"))
AOPT = os.environ.get("AOPT", "bmnd")
TOUCH = os.environ.get("TOUCH", "")
FASTTAIL = int(os.environ.get("FASTTAIL", "1"))
EARLYBAR = int(os.environ.get("EARLYBAR", "0"))
BURST = int(os.environ.get("BURST", "0"))
XMAP = int(os.environ.get("XMAP", "1"))
ATT = pol("ATT", "sc0+sc1"); AIN = pol("AIN", "nt"); ATAB = pol("ATAB"); AST = pol("AST", "sc0+sc1"); BREC = pol("BREC"); BOUT = pol("BOUT", "nt"); BM = pol("BM")

KA = "standalone__molecular_angular_gemnet__graph_part_kernel"
KB = "standalone__molecular_angular_gemnet__graph_kernel"

E = 400000
T = 6400000
NWG = int(os.environ.get("NWG", "256"))
NCH = NWG
NB = NWG
UNITS = T // 64
CH = -(-UNITS // NCH) * 64
NBIG = UNITS - (CH // 64 - 1) * NCH if UNITS % NCH else NCH
BINE = -(-(-(-E // NB)) // 4) * 4
TP = CH * NCH
assert T % 64 == 0 and NBIG * CH + (NCH - NBIG) * (CH - 64) == T and 24576 < CH - 64 * (NBIG < NCH) and CH <= 25600
KS = int(os.environ.get("KS", "12"))
assert KS in (8, 12)

WS_RECA = 256
WS_RECC = WS_RECA + TP * 4
WS_TT = WS_RECA + TP * 6
WS_STATS = WS_TT + NCH * 1024

A_HIST = 0
A_C = 256 * KS * 4
A_A = A_C + -(-CH * 2 // 16) * 16
A_SCR = A_A + -(-CH * 4 // 16) * 16
A_LDS = A_SCR + 128

ROWB = 80
B_FLAG = 130048
B_LDS = 131072

out = []
def e(s=""):
    out.append(s)
def lab(s):
    out.append(s + ":")

DPP = "row_mask:0xf bank_mask:0xf"

def srd(reg, lo, hi, size, stride=0):
    e(f"  s_mov_b32 s{reg}, s{lo}")
    e(f"  s_and_b32 s{reg+1}, s{hi}, 0xffff")
    if stride:
        e(f"  s_or_b32 s{reg+1}, s{reg+1}, {stride << 16:#x}")
    e(f"  s_mov_b32 s{reg+2}, {size}")
    e(f"  s_mov_b32 s{reg+3}, 0x20000")

def srd_off(reg, lo, hi, off_sreg, size, const=0, stride=0):
    e(f"  s_add_u32 s{reg}, s{lo}, s{off_sreg}")
    e(f"  s_addc_u32 s{reg+1}, s{hi}, 0")
    if const:
        e(f"  s_add_u32 s{reg}, s{reg}, {const}")
        e(f"  s_addc_u32 s{reg+1}, s{reg+1}, 0")
    e(f"  s_and_b32 s{reg+1}, s{reg+1}, 0xffff")
    if stride:
        e(f"  s_or_b32 s{reg+1}, s{reg+1}, {stride << 16:#x}")
    e(f"  s_mov_b32 s{reg+2}, {size}")
    e(f"  s_mov_b32 s{reg+3}, 0x20000")

STAMP = os.environ.get("STAMP", "")
stamp_n = [0]
def stamp(kern, name):
    if STAMP != kern:
        return
    k = stamp_n[0]; stamp_n[0] += 1
    assert k < 16
    e(f"  s_memrealtime s[84:85]")
    e("  s_waitcnt lgkmcnt(0)")
    e(f"  s_mov_b32 s{86+k}, s84")
    if k == 0:
        e("  s_memtime s[84:85]")
        e("  s_waitcnt lgkmcnt(0)")
        e("  s_mov_b32 s101, s84")
    print("stamp", k, name)
def stamp_dump(kern, wsreg, wavereg):
    if STAMP != kern:
        return
    e("  s_memtime s[84:85]")
    e("  s_waitcnt lgkmcnt(0)")
    e("  s_sub_u32 s101, s84, s101")
    e(f"  s_cmp_eq_u32 s{wavereg}, {int(os.environ.get('STAMPW', '0'))}")
    e(f"  s_cbranch_scc0 L{kern}_nodump")
    e(f"  s_lshl_b32 s84, s2, 6")
    e(f"  s_add_u32 s84, s84, {128<<20}")
    e(f"  s_add_u32 s102-18, s{wsreg}, s84".replace("s102-18", "s84"))
    e(f"  s_addc_u32 s85, s{wsreg+1}, 0")
    e("  v_mov_b32 v60, 0")
    for k in range(16):
        e(f"  v_mov_b32 v61, s{86+k}")
        e(f"  global_store_dword v60, v61, s[84:85] offset:{4*k}")
    lab(f"L{kern}_nodump")

def wave_scan_add(v):
    for sh in (1, 2, 4, 8):
        e("  s_nop 1")
        e(f"  v_add_u32_dpp v{v}, v{v}, v{v} row_shr:{sh} {DPP}")
    e("  s_nop 1")
    e(f"  v_add_u32_dpp v{v}, v{v}, v{v} row_bcast:15 row_mask:0xa bank_mask:0xf")
    e("  s_nop 1")
    e(f"  v_add_u32_dpp v{v}, v{v}, v{v} row_bcast:31 row_mask:0xc bank_mask:0xf")

def wave_max(vs):
    steps = [f"row_shr:{sh} {DPP}" for sh in (1, 2, 4, 8)] + \
            ["row_bcast:15 row_mask:0xa bank_mask:0xf", "row_bcast:31 row_mask:0xc bank_mask:0xf"]
    for st in steps:
        e("  s_nop 1")
        for v in vs:
            e(f"  v_max_u32_dpp v{v}, v{v}, v{v} {st}")

class VmQ:
    def __init__(self):
        self.q = []
    def issue(self, tag):
        self.q.append(tag)
        assert len(self.q) <= 63, "vmcnt overflow"
    def wait(self, tag):
        if tag not in self.q:
            return
        idx = max(i for i, t in enumerate(self.q) if t == tag)
        n = len(self.q) - 1 - idx
        assert n <= 63
        e(f"  s_waitcnt vmcnt({n})")
        self.q = self.q[idx + 1:]
    def drain(self):
        e("  s_waitcnt vmcnt(0)")
        self.q = []

def kernel_a():
    I0, O0, AN0, RK0, TB0 = 8, 34, 60, 74, 100
    vOne, vF = 2, 3
    t0, t1, t2, t3, t4, t5 = 116, 117, 118, 119, 120, 121
    e(f".globl {KA}")
    e(".p2align 8")
    e(f".type {KA},@function")
    lab(KA)
    e(f"  s_cmp_ge_u32 s2, {NCH}")
    e("  s_cbranch_scc1 LA_end")
    e("  s_load_dwordx4 s[4:7], s[0:1], 0")
    e("  s_load_dwordx2 s[8:9], s[0:1], 16      ; idx_out")
    e("  s_load_dwordx2 s[10:11], s[0:1], 32    ; angle")
    e("  s_load_dwordx2 s[12:13], s[0:1], 48    ; ang_freq")
    e("  s_load_dwordx2 s[14:15], s[0:1], 104   ; ws")
    e("  v_lshrrev_b32 v1, 6, v0")
    e("  v_lshlrev_b32 v4, 4, v0                ; t*16")
    e("  v_readfirstlane_b32 s50, v1")
    e("  v_lshlrev_b32 v5, 3, v0                ; t*8")
    e("  v_lshlrev_b32 v6, 2, v0                ; t*4")
    e("  v_lshlrev_b32 v7, 1, v0                ; t*2")
    e(f"  v_mov_b32 v{vOne}, {2 if 'd' in AOPT else 1}")
    e(f"  v_mov_b32 v{t0}, 0")
    e(f"  v_mov_b32 v{t1}, 0")
    e(f"  s_mul_i32 s46, s2, {CH//64 - 1 if NBIG < NCH else CH//64}")
    if NBIG < NCH:
        e(f"  s_min_u32 s47, s2, {NBIG}")
        e("  s_add_u32 s46, s46, s47")
    e("  s_lshl_b32 s48, s46, 8")
    e("  s_lshl_b32 s49, s46, 7")
    e(f"  s_mov_b32 s59, {CH - 64 if NBIG < NCH else CH}")
    if NBIG < NCH:
        e(f"  s_cmp_lt_u32 s2, {NBIG}")
        e(f"  s_cselect_b32 s59, {CH}, s59")
    e(f"  s_mul_i32 s64, s2, {CH*4}")
    e(f"  s_mul_i32 s65, s2, {CH*2}")
    e("  s_lshl_b32 s51, s2, 10")
    e("  s_lshl_b32 s52, s2, 3")
    e("  s_waitcnt lgkmcnt(0)")
    srd_off(16, 6, 7, 48, CH * 4)
    srd_off(20, 8, 9, 48, CH * 4)
    srd_off(24, 10, 11, 49, CH * 2)
    e("  s_lshl_b32 s18, s59, 2")
    e("  s_lshl_b32 s22, s59, 2")
    e("  s_lshl_b32 s26, s59, 1")
    vm = VmQ()
    APIPE = int(os.environ.get("APIPE", "7"))
    if KS == 8:
        e(f"  ds_write_b64 v5, v[{t0}:{t1}] offset:{A_HIST}")
    else:
        e(f"  v_mul_u32_u24 v126, 12, v0")
        for k in range(3):
            e(f"  ds_write_b32 v126, v{t0} offset:{A_HIST+4*k}")
    e(f"  v_and_b32 v{t2}, 15, v0")
    e(f"  v_lshlrev_b32 v{t2}, 3, v{t2}")
    e(f"  v_add_u32 v{t2}, {A_SCR}, v{t2}")
    e(f"  ds_write_b64 v{t2}, v[{t0}:{t1}]")
    e(f"  global_load_ushort v{vF}, v{t0}, s[12:13]")
    vm.issue("F")
    stamp("A", "start")
    def loads(u):
        e(f"  s_mov_b32 s53, {u*16384}")
        e(f"  s_mov_b32 s54, {u*8192}")
        if u < 6:
            e(f"  buffer_load_dwordx4 v[{I0+4*u}:{I0+4*u+3}], v4, s[16:19], s53 offen{AIN}")
            e(f"  buffer_load_dwordx4 v[{O0+4*u}:{O0+4*u+3}], v4, s[20:23], s53 offen{AIN}")
            e(f"  buffer_load_dwordx2 v[{AN0+2*u}:{AN0+2*u+1}], v5, s[24:27], s54 offen{AIN}")
        else:
            e(f"  buffer_load_dword v{I0+24}, v6, s[16:19], s53 offen{AIN}")
            e(f"  buffer_load_dword v{O0+24}, v6, s[20:23], s53 offen{AIN}")
            e(f"  buffer_load_ushort v{AN0+12}, v7, s[24:27], s54 offen{AIN}")
        for _ in range(3):
            vm.issue(f"L{u}")
    APRIO = int(os.environ.get("APRIO", "1"))
    NPRE = 2 if 'b' in AOPT else 0
    if APRIO:
        e("  s_setprio 3")
    for u in range(NPRE):
        loads(u)
    e("  s_waitcnt lgkmcnt(0)")
    e("  s_barrier")
    for u in range(NPRE, min(APIPE, 7)):
        loads(u)
    if APRIO:
        e("  s_setprio 0")
    e(f"  s_mul_i32 s47, s2, {BINE*32}")
    srd_off(28, 4, 5, 47, BINE * 32)
    e(f"  s_sub_u32 s47, {E*32}, s47")
    e(f"  s_min_u32 s30, s47, {BINE*32}")
    srd_off(32, 14, 15, 64, CH * 4, WS_RECA)
    srd_off(36, 14, 15, 65, CH * 2, WS_RECC)
    e("  s_lshl_b32 s34, s59, 2")
    e("  s_lshl_b32 s38, s59, 1")
    e("  s_sub_u32 s59, s59, 24576")
    srd_off(40, 14, 15, 51, 1024, WS_TT)
    srd_off(44, 14, 15, 52, 8, WS_STATS)
    assert (((2**32 + BINE - 1)//BINE) * BINE - 2**32) * E < 2**32
    e(f"  s_mov_b32 s55, {(2**32 + BINE - 1)//BINE}")
    e(f"  s_mov_b32 s56, {(2**32 * KS)//E - 1}")
    e(f"  s_mov_b32 s57, {-BINE}")

    def rec(r):
        I, O, R = I0 + r, O0 + r, RK0 + r
        e(f"  v_mul_hi_u32_u24 v{t0}, s55, v{O}           ; bin")
        e(f"  v_mul_hi_u32_u24 v{t1}, s56, v{I}           ; i range")
        e(f"  v_mad_i32_i24 v{t2}, v{t0}, s57, v{O}       ; o local")
        e(f"  v_lshlrev_b32 v{t1}, 2, v{t1}")
        if KS == 8:
            e(f"  v_lshl_add_u32 v{O}, v{t0}, 5, v{t1}        ; key*4")
        else:
            e(f"  v_mad_u32_u24 v{O}, v{t0}, 48, v{t1}        ; key*4")
        e(f"  v_lshl_or_b32 v{I}, v{t2}, 19, v{I}")
        e(f"  ds_add_rtn_u32 v{R}, v{O}, v{vOne} offset:{A_HIST}")
        e(f"  v_not_b32 v{I}, v{I}")

    def cospair(a):
        x, y = t3, t4
        e(f"  v_lshlrev_b32 v{x}, 16, v{a}")
        e(f"  v_and_b32 v{y}, 0xffff0000, v{a}")
        e(f"  v_mul_f32 v{x}, v{vF}, v{x}")
        e(f"  v_mul_f32 v{y}, v{vF}, v{y}")
        e(f"  v_cvt_pk_bf16_f32 v{t5}, v{x}, v{y}")
        e(f"  v_lshlrev_b32 v{x}, 16, v{t5}")
        e(f"  v_and_b32 v{y}, 0xffff0000, v{t5}")
        e(f"  v_mul_f32 v{x}, 0.15915494, v{x}")
        e(f"  v_mul_f32 v{y}, 0.15915494, v{y}")
        e(f"  v_fract_f32 v{x}, v{x}")
        e(f"  v_fract_f32 v{y}, v{y}")
        e(f"  v_cos_f32 v{x}, v{x}")
        e(f"  v_cos_f32 v{y}, v{y}")
        e("  s_nop 0")
        e(f"  v_cvt_pk_bf16_f32 v{a}, v{x}, v{y}")
        e(f"  v_and_b32 v{x}, 0x7fff7fff, v{a}")
        e(f"  v_pk_max_u16 v{gC}, v{gC}, v{x}")

    gC = 124
    e(f"  v_mov_b32 v{gC}, 0")
    if "A" in TOUCH:
        e(f"  v_mov_b32 v{t3}, 0")
        for r in (32, 36, 40, 44):
            e(f"  buffer_load_dword v127, v{t3}, s[{r}:{r+3}], 0 offen")
            vm.issue("touch")
    stamp("A", "loads issued")
    ABAR = int(os.environ.get("ABAR", "0"))
    for u in range(7):
        if ABAR == 2 and u + APIPE < 7:
            e("  s_setprio 3")
            loads(u + APIPE)
            e("  s_setprio 0")
            e("  s_barrier")
        vm.wait(f"L{u}")
        if u in (0, 3, 6):
            stamp("A", f"group {u} arrived")
        if ABAR != 2 and u + APIPE < 7:
            if ABAR == 1:
                e("  s_setprio 3")
            loads(u + APIPE)
            if ABAR == 1:
                e("  s_setprio 0")
                e("  s_barrier")
        if u == 0:
            e(f"  v_lshlrev_b32 v{vF}, 16, v{vF}")
        if u < 6:
            for r in range(4):
                rec(4 * u + r)
            cospair(AN0 + 2 * u)
            cospair(AN0 + 2 * u + 1)
        else:
            e(f"  v_cmp_gt_u32 vcc, s59, v0")
            e("  s_and_saveexec_b64 s[62:63], vcc")
            e("  s_cbranch_execz LA_r24")
            rec(24)
            cospair(AN0 + 12)
            lab("LA_r24")
            e("  s_mov_b64 exec, s[62:63]")
    if os.environ.get("CODEPF", "0") == "1":
        e("  s_cmp_lt_u32 s2, 8")
        e("  s_cbranch_scc0 LA_nopf")
        e("  s_cmp_eq_u32 s50, 15")
        e("  s_cbranch_scc0 LA_nopf")
        e("  s_getpc_b64 s[70:71]")
        lab("LA_pc")
        e(f"  s_add_u32 s70, s70, {KB}-LA_pc")
        e("  s_addc_u32 s71, s71, 0")
        e("  v_and_b32 v126, 63, v0")
        e("  v_lshlrev_b32 v126, 6, v126")
        for k in range(6):
            e(f"  v_min_u32 v125, LB_end-{KB}, v126")
            e(f"  global_load_dword v127, v125, s[70:71]")
            e(f"  v_add_u32 v126, 4096, v126")
        lab("LA_nopf")
    for u in range(4):
        e(f"  s_mov_b32 s53, {u*16384}")
        e(f"  buffer_load_dwordx4 v[{TB0+4*u}:{TB0+4*u+3}], v4, s[28:31], s53 offen{ATAB}")
    e("  s_waitcnt lgkmcnt(0)")
    e("  s_barrier")
    stamp("A", "hist barrier")
    if KS == 8:
        e(f"  ds_read_b64 v[{t0}:{t1}], v5 offset:{A_HIST}")
        e("  s_waitcnt lgkmcnt(0)")
        e(f"  v_add_u32 v{t2}, v{t0}, v{t1}")
    else:
        e(f"  ds_read2_b32 v[{t0}:{t1}], v126 offset0:0 offset1:1")
        e(f"  ds_read_b32 v125, v126 offset:8")
        e("  s_waitcnt lgkmcnt(0)")
        e(f"  v_add3_u32 v{t2}, v{t0}, v{t1}, v125")
    e(f"  v_mov_b32 v{t3}, v{t2}")
    wave_scan_add(t3)
    e(f"  s_lshl_b32 s58, s50, 2")
    e(f"  s_add_u32 s58, s58, {A_SCR}")
    e(f"  v_mov_b32 v{t4}, s58")
    e("  s_mov_b32 exec_lo, 0")
    e("  s_mov_b32 exec_hi, 0x80000000")
    e(f"  ds_write_b32 v{t4}, v{t3}")
    e("  s_mov_b64 exec, -1")
    e("  s_waitcnt lgkmcnt(0)")
    e("  s_barrier")
    e(f"  v_and_b32 v{t4}, 15, v0")
    e(f"  v_lshlrev_b32 v{t4}, 2, v{t4}")
    e(f"  v_add_u32 v{t4}, {A_SCR}, v{t4}")
    e(f"  ds_read_b32 v{t4}, v{t4}")
    e("  s_waitcnt lgkmcnt(0)")
    e(f"  v_mov_b32 v{t5}, v{t4}")
    for sh in (1, 2, 4, 8):
        e("  s_nop 1")
        e(f"  v_add_u32_dpp v{t5}, v{t5}, v{t5} row_shr:{sh} {DPP}")
    e(f"  v_sub_u32 v{t5}, v{t5}, v{t4}")
    e("  s_nop 0")
    e(f"  v_readlane_b32 s58, v{t5}, s50")
    e(f"  v_sub_u32 v{t3}, v{t3}, v{t2}")
    e("  s_nop 0")
    e(f"  v_add_u32 v{t2}, s58, v{t3}         ; start0")
    e(f"  v_add_u32 v{t3}, v{t2}, v{t0}       ; start1")
    if KS == 8:
        e(f"  ds_write_b64 v5, v[{t2}:{t3}] offset:{A_HIST}")
    else:
        e(f"  v_add_u32 v125, v{t3}, v{t1}          ; start2")
        e(f"  ds_write2_b32 v126, v{t2}, v{t3} offset0:0 offset1:1")
        e(f"  ds_write_b32 v126, v125 offset:8")
    e(f"  v_and_b32 v{t4}, 3, v0")
    e(f"  v_cmp_eq_u32 vcc, 0, v{t4}")
    e("  s_and_saveexec_b64 s[60:61], vcc")
    if 'd' in AOPT:
        e(f"  v_lshrrev_b32 v{t2}, 1, v{t2}")
    e(f"  buffer_store_dword v{t2}, v0, s[40:43], 0 offen{ATT}")
    e("  s_mov_b64 exec, s[60:61]")
    e("  s_waitcnt lgkmcnt(0)")
    e("  s_barrier")
    stamp("A", "scan done")
    def put(r):
        e(f"  v_add_u32 v{O0+r}, v{O0+r}, v{RK0+r}")
        if 'd' in AOPT:
            e(f"  v_lshlrev_b32 v{RK0+r}, 1, v{O0+r}")
        else:
            e(f"  v_lshlrev_b32 v{RK0+r}, 2, v{O0+r}")
            e(f"  v_lshlrev_b32 v{O0+r}, 1, v{O0+r}")
        e(f"  ds_write_b32 v{RK0+r}, v{I0+r} offset:{A_A}")
        op = "ds_write_b16" if r % 2 == 0 else "ds_write_b16_d16_hi"
        e(f"  {op} v{O0+r}, v{AN0+r//2} offset:{A_C}")
    if 'm' in AOPT:
        for r in range(24):
            e(f"  ds_read_b32 v{O0+r}, v{O0+r} offset:{A_HIST}")
        e(f"  v_cmp_gt_u32 vcc, s59, v0")
        e("  s_and_saveexec_b64 s[62:63], vcc")
        e("  s_cbranch_execz LA_s24")
        e(f"  ds_read_b32 v{O0+24}, v{O0+24} offset:{A_HIST}")
        e("  s_waitcnt lgkmcnt(0)")
        put(24)
        lab("LA_s24")
        e("  s_mov_b64 exec, s[62:63]")
        e("  s_waitcnt lgkmcnt(0)")
        for r in range(24):
            put(r)
    else:
        groups = [range(0, 8), range(8, 16), range(16, 24), range(24, 25)]
        for g in groups:
            if g[0] == 24:
                e(f"  v_cmp_gt_u32 vcc, s59, v0")
                e("  s_and_saveexec_b64 s[62:63], vcc")
                e("  s_cbranch_execz LA_s24")
            for r in g:
                e(f"  ds_read_b32 v{O0+r}, v{O0+r} offset:{A_HIST}")
            e("  s_waitcnt lgkmcnt(0)")
            for r in g:
                put(r)
            if g[0] == 24:
                lab("LA_s24")
                e("  s_mov_b64 exec, s[62:63]")
    stamp("A", "scatter issued")
    def table_stats():
        gM, gR = 122, 123
        e(f"  v_mov_b32 v{gM}, 0")
        e(f"  v_mov_b32 v{gR}, 0")
        e("  s_mov_b32 s58, 0x7fff7fff")
        if 'n' not in AOPT:
            e("  s_waitcnt vmcnt(0)")
        for u in range(4):
            b = TB0 + 4 * u
            for k in range(4):
                e(f"  v_and_b32 v{b+k}, s58, v{b+k}")
            e(f"  v_pk_max_u16 v{b}, v{b}, v{b+1}")
            e(f"  v_pk_max_u16 v{b+2}, v{b+2}, v{b+3}")
            e(f"  v_pk_max_u16 v{b}, v{b}, v{b+2}")
            e(f"  v_lshrrev_b32 v{b+1}, 16, v{b}")
            e(f"  v_and_b32 v{b}, 0xffff, v{b}")
            e(f"  v_max_u32 v{b}, v{b}, v{b+1}")
            e("  s_nop 1")
            e(f"  v_max_u32_dpp v{b}, v{b}, v{b} quad_perm:[1,0,3,2] {DPP}")
            e(f"  v_max_u32 v{gM}, v{gM}, v{b}")
            e(f"  v_sub_u32 v{b}, 0x8000, v{b}")
            e(f"  v_and_b32 v{b}, 0x7fff, v{b}")
            e(f"  v_max_u32 v{gR}, v{gR}, v{b}")
        e(f"  v_lshrrev_b32 v{t5}, 16, v{gC}")
        e(f"  v_and_b32 v{gC}, 0xffff, v{gC}")
        e(f"  v_max_u32 v{gC}, v{gC}, v{t5}")
        e(f"  v_cmp_lt_u32 vcc, 0x3f80, v{gC}")
        e(f"  v_mov_b32 v{t5}, 0x7fff")
        e("  s_nop 0")
        e(f"  v_cndmask_b32 v{t5}, 0, v{t5}, vcc")
        e(f"  v_max_u32 v{gM}, v{gM}, v{t5}")
        wave_max([gM, gR])
        e(f"  v_mov_b32 v{t4}, {A_SCR + 64}")
        e("  s_mov_b32 exec_lo, 0")
        e("  s_mov_b32 exec_hi, 0x80000000")
        e(f"  ds_max_u32 v{t4}, v{gM}")
        e(f"  ds_max_u32 v{t4}, v{gR} offset:4")
        e("  s_mov_b64 exec, -1")
    if 'n' not in AOPT:
        table_stats()
    e("  s_waitcnt lgkmcnt(0)")
    e("  s_barrier")
    stamp("A", "scatter barrier")
    d = 8
    for u in range(6):
        e(f"  v_add_u32 v{t0}, {u*16384}, v4")
        e(f"  ds_read_b128 v[{d+4*u}:{d+4*u+3}], v{t0} offset:{A_A}")
    for u in range(3):
        e(f"  v_add_u32 v{t0}, {u*16384}, v4")
        e(f"  ds_read_b128 v[{d+24+4*u}:{d+24+4*u+3}], v{t0} offset:{A_C}")
    NX = 0 if 'n' in AOPT else 1
    if NX:
        e(f"  v_mov_b32 v{t4}, {A_SCR + 64}")
        e(f"  ds_read_b64 v[{t2}:{t3}], v{t4}")
    for u in range(6):
        e(f"  s_mov_b32 s53, {u*16384}")
        e(f"  s_waitcnt lgkmcnt({8+NX-u})")
        e(f"  buffer_store_dwordx4 v[{d+4*u}:{d+4*u+3}], v4, s[32:35], s53 offen{AST}")
    for u in range(3):
        e(f"  s_mov_b32 s53, {u*16384}")
        e(f"  s_waitcnt lgkmcnt({2+NX-u})")
        e(f"  buffer_store_dwordx4 v[{d+24+4*u}:{d+24+4*u+3}], v4, s[36:39], s53 offen{AST}")
    stamp("A", "stores issued")
    if STAMP == "A":
        e("  s_waitcnt vmcnt(0)")
    stamp("A", "stores done")
    stamp_dump("A", 14, 50)
    e(f"  s_cmp_lt_u32 s50, {-(-(CH*4 - 6*16384) // 1024)}")
    e("  s_cbranch_scc0 LA_t1")
    e(f"  v_add_u32 v{t0}, {6*16384}, v4")
    e(f"  ds_read_b128 v[60:63], v{t0} offset:{A_A}")
    e(f"  s_mov_b32 s53, {6*16384}")
    e("  s_waitcnt lgkmcnt(0)")
    e(f"  buffer_store_dwordx4 v[60:63], v4, s[32:35], s53 offen{AST}")
    lab("LA_t1")
    e(f"  s_cmp_lt_u32 s50, {-(-(CH*2 - 3*16384) // 1024)}")
    e("  s_cbranch_scc0 LA_t2")
    e(f"  v_add_u32 v{t0}, {3*16384}, v4")
    e(f"  ds_read_b128 v[64:67], v{t0} offset:{A_C}")
    e(f"  s_mov_b32 s53, {3*16384}")
    e("  s_waitcnt lgkmcnt(0)")
    e(f"  buffer_store_dwordx4 v[64:67], v4, s[36:39], s53 offen{AST}")
    lab("LA_t2")
    if 'n' in AOPT:
        e("  s_waitcnt vmcnt(10)")
        table_stats()
        e("  s_waitcnt lgkmcnt(0)")
        e("  s_barrier")
    e("  s_cmp_eq_u32 s50, 15")
    e("  s_cbranch_scc0 LA_end")
    if 'n' in AOPT:
        e(f"  v_mov_b32 v{t4}, {A_SCR + 64}")
        e(f"  ds_read_b64 v[{t2}:{t3}], v{t4}")
    e("  s_waitcnt lgkmcnt(0)")
    e(f"  v_mov_b32 v{t0}, 0")
    e("  s_mov_b32 exec_lo, 1")
    e("  s_mov_b32 exec_hi, 0")
    e(f"  buffer_store_dwordx2 v[{t2}:{t3}], v{t0}, s[44:47], 0 offen{ATT}")
    lab("LA_end")
    e("  s_endpgm")

def kernel_b():
    vH8, vIA, vIB, vCB, vOne = 1, 2, 4, 6, 7
    G0 = 8
    OA, CH_ = 40, 44
    P0 = 48
    t0, t1, t2, t3, t4, t5, t6, t7, t8 = range(56, 65)
    BS, LN = 65, 69
    XZ = 65
    CU = 73
    vL16 = 77
    WDS = 78
    RCP, RA0 = 80, 96
    def RA(s, j): return RA0 + 4 * j + s
    def RCp(s, j): return RCP + 4 * (j // 2) + s
    RBF, CEN, MR = 96, 70, 110
    WTR = [80, 110, 81, 111, 82, 112, 83, 113, 86, 114, 84, 115]
    IE, RCE = 73, 88
    WD, WU, WS, WR = 80, 82, 84, 86
    sW, sMag, sSc, sInv, sMode, sMsk, sN80, sTail, sPerm = 50, 53, 54, 55, 56, 57, 58, 59, 60
    sTail2 = 61
    sOv = 66
    vm = VmQ()
    e(f".globl {KB}")
    e(".p2align 8")
    e(f".type {KB},@function")
    lab(KB)
    e(f"  s_cmp_ge_u32 s2, {NB}")
    e("  s_cbranch_scc1 LB_end")
    if XMAP:
        e("  s_and_b32 s3, s2, 7")
        e("  s_lshr_b32 s2, s2, 3")
        e(f"  s_mul_i32 s4, s3, {NB//8}")
        if NB % 8:
            e(f"  s_min_u32 s3, s3, {NB%8}")
            e("  s_add_u32 s2, s2, s3")
        e("  s_add_u32 s2, s2, s4")
    e("  s_load_dwordx2 s[78:79], s[0:1], 104    ; ws")
    e("  s_load_dwordx2 s[68:69], s[0:1], 0      ; m")
    e("  s_load_dwordx2 s[70:71], s[0:1], 24     ; dist")
    e("  s_load_dwordx2 s[40:41], s[0:1], 40     ; centers")
    e("  s_load_dwordx4 s[44:47], s[0:1], 56")
    e("  s_load_dwordx4 s[72:75], s[0:1], 72")
    e("  s_load_dwordx2 s[76:77], s[0:1], 88     ; out")
    e("  v_lshrrev_b32 v8, 6, v0")
    e(f"  v_and_b32 v{vL16}, 15, v0")
    e(f"  v_readfirstlane_b32 s{sW}, v8")
    e(f"  v_and_b32 v9, 1, v0")
    e(f"  v_lshlrev_b32 v{vH8}, 3, v9")
    e(f"  v_lshlrev_b32 v{vIA+1}, 4, v9")
    e(f"  v_lshlrev_b32 v{vIB+1}, 4, v9")
    e(f"  v_mov_b32 v{vCB}, {2047*ROWB}")
    e(f"  v_mov_b32 v{vOne}, 1")
    e(f"  s_mul_i32 s80, s2, {BINE*32}")
    e(f"  s_mul_i32 s81, s2, {BINE*2}")
    e(f"  s_mov_b32 s{sMode}, 0")
    e(f"  s_mov_b32 s{sMsk}, 0x7ffff")
    e(f"  s_mov_b32 s{sN80}, {-ROWB}")
    e(f"  s_mov_b32 s{sPerm}, 0x05040100")
    e("  s_waitcnt lgkmcnt(0)")
    e(f"  s_add_u32 s82, s78, {WS_TT}")
    e("  s_addc_u32 s83, s79, 0")
    srd(16, 82, 83, NCH * 1024)
    e(f"  s_add_u32 s82, s78, {WS_STATS}")
    e("  s_addc_u32 s83, s79, 0")
    srd(20, 82, 83, NCH * 8)
    e(f"  s_add_u32 s82, s78, {WS_RECA - 4}")
    e("  s_addc_u32 s83, s79, 0")
    srd(4, 82, 83, TP + 1, 4)
    e(f"  s_add_u32 s82, s78, {WS_RECC - 2}")
    e("  s_addc_u32 s83, s79, 0")
    srd(8, 82, 83, TP + 1, 2)
    srd(12, 68, 69, E, 32)
    srd_off(24, 68, 69, 80, BINE * 32)
    srd_off(28, 76, 77, 80, BINE * 32)
    srd_off(32, 70, 71, 81, BINE * 2)
    e(f"  s_sub_u32 s82, {E*32}, s80")
    e(f"  s_min_u32 s26, s82, {BINE*32}")
    e("  s_mov_b32 s30, s26")
    e("  s_lshr_b32 s34, s26, 4")
    lab("LB_start")
    BPRIO = int(os.environ.get("BPRIO", "1"))
    if BPRIO:
        e("  s_setprio 3")
    stamp("B", "start")
    ST0 = 48
    def run_table_loads():
        g = t0
        e(f"  v_and_b32 v{t1}, 63, v0")
        e(f"  v_lshrrev_b32 v{g}, 4, v{t1}            ; g = lane>>4")
        e(f"  s_lshl_b32 s80, s{sW}, 4")
        e(f"  v_add_u32 v{t1}, s80, v{g}              ; 16w+g")
        e(f"  s_lshl_b32 s81, s2, 2")
        e(f"  v_lshlrev_b32 v{t2}, 10, v{t1}")
        e(f"  v_add_u32 v{t2}, s81, v{t2}")
        for s in range(4):
            e(f"  v_add_u32 v{t3}, {s*4096}, v{t2}")
            e(f"  buffer_load_dwordx2 v[{G0+2*s}:{G0+2*s+1}], v{t3}, s[16:19], 0 offen")
            vm.issue("T")
    rp_n = [0]
    def run_params():
        rp_n[0] += 1
        e(f"  s_mov_b32 s80, {CH}")
        for s in range(4):
            e(f"  v_add_u32 v{t3}, {4*s}, v{t1}")
            e(f"  v_mad_u32_u24 v{t3}, v{t3}, s80, 1")
            e(f"  v_add_u32 v{BS+s}, v{t3}, v{G0+2*s}")
            if NB == 256:
                e(f"  s_cmp_eq_u32 s2, {NB-1}")
                e(f"  s_cbranch_scc0 LB_rp{rp_n[0]}_{s}")
                e(f"  v_add_u32 v{t4}, {4*s}, v{t1}")
                e(f"  v_cmp_gt_u32 vcc, {NBIG}, v{t4}")
                e(f"  v_mov_b32 v{t4}, {CH}")
                e(f"  v_mov_b32 v{G0+2*s+1}, {CH-64}")
                e(f"  v_cndmask_b32 v{G0+2*s+1}, v{G0+2*s+1}, v{t4}, vcc")
                lab(f"LB_rp{rp_n[0]}_{s}")
            e(f"  v_sub_u32 v{LN+s}, v{G0+2*s+1}, v{G0+2*s}")
    run_table_loads()
    e(f"  v_and_b32 v{t3}, 63, v0")
    e(f"  v_lshlrev_b32 v{t3}, 3, v{t3}")
    for s in range(4):
        e(f"  buffer_load_dwordx2 v[{ST0+2*s}:{ST0+2*s+1}], v{t3}, s[20:23], 0 offen offset:{s*512}")
        vm.issue("ST")
    if "B" in TOUCH:
        e(f"  v_mov_b32 v{t3}, 0")
        for r in (28,):
            e(f"  buffer_load_dword v79, v{t3}, s[{r}:{r+3}], 0 offen")
            vm.issue("touch")
    ZR = 40
    for k in range(4):
        e(f"  v_mov_b32 v{ZR+k}, 0")
    e(f"  v_lshlrev_b32 v{t3}, 4, v0")
    for u in range(8):
        if u == 4:
            e(f"  v_add_u32 v{t3}, 0x10000, v{t3}")
        e(f"  ds_write_b128 v{t3}, v[{ZR}:{ZR+3}] offset:{(u%4)*16384}")
    vm.wait("T")
    stamp("B", "T arrived")
    run_params()
    e(f"  v_max_u32 v{t3}, v{LN}, v{LN+1}")
    e(f"  v_max3_u32 v{t3}, v{t3}, v{LN+2}, v{LN+3}")
    e(f"  v_cmp_lt_u32 vcc, 0x80, v{t3}")
    e(f"  s_cmp_lg_u64 vcc, 0")
    e(f"  s_cselect_b32 s{sTail}, 1, 0")
    if FASTTAIL:
        e(f"  v_cmp_lt_u32 vcc, 0x90, v{t3}")
        e(f"  s_cmp_lg_u64 vcc, 0")
        e(f"  s_cselect_b32 s{sTail2}, 1, 0")
    def LZ(s, j): return RCp(s, j) if j % 2 == 0 else G0 + 8 + 4 * (j // 2) + s
    if EARLYBAR:
        e("  s_waitcnt lgkmcnt(0)")
        e("  s_barrier")
    for s in range(4):
        lp, lo, hi = t2, t4, t6
        e(f"  v_min_u32 v{lp}, 0x80, v{LN+s}          ; len'")
        e(f"  v_mov_b32 v{lo}, v{vL16}")
        e(f"  v_lshlrev_b32 v{lp}, 16, v{lp}")
        def msk(j):
            return f"s[{84+2*j}:{85+2*j}]" if (BURST and not STAMP) else "vcc"
        def lds(j):
            e(f"  s_mov_b64 exec, {msk(j)}")
            e(f"  buffer_load_ushort v{LZ(s,j)}, v{RA(s,j)}, s[8:11], 0 idxen{BREC}")
            vm.issue(f"C{s}_{j}")
            e(f"  buffer_load_dword v{RA(s,j)}, v{RA(s,j)}, s[4:7], 0 idxen{BREC}")
            vm.issue(f"A{s}_{j}")
        for j in range(8):
            e(f"  v_mul_hi_u32_u24 v{hi}, {(j+1) << 13:#x}, v{lp}     ; ((j+1)*len') >> 3")
            e(f"  v_cmp_lt_u32 {msk(j)}, v{lo}, v{hi}")
            e(f"  v_add_u32 v{t7}, v{BS+s}, v{lo}")
            e(f"  v_add_u32 v{lo}, v{hi}, v{vL16}")
            e(f"  v_cndmask_b32 v{RA(s,j)}, 0, v{t7}, {msk(j)}")
            if not (BURST and not STAMP):
                lds(j)
                e("  s_mov_b64 exec, -1")
        if BURST and not STAMP:
            for j in range(8):
                lds(j)
            e("  s_mov_b64 exec, -1")
        if FASTTAIL:
            if s == 0:
                e(f"  v_add_u32 v{t8}, 0x80, v{vL16}")
            e(f"  v_cmp_lt_u32 vcc, v{t8}, v{LN+s}")
            e(f"  v_add_u32 v{t7}, v{BS+s}, v{t8}")
            e("  s_nop 0")
            e(f"  v_cndmask_b32 v{IE+s}, 0, v{t7}, vcc")
        if s == 2:
            vm.wait("A0_7")
    if BPRIO:
        e("  s_setprio 0")
    stamp("B", "rec loads issued")
    a, b = ST0, ST0 + 1
    e(f"  v_max3_u32 v{a}, v{ST0}, v{ST0+2}, v{ST0+4}")
    e(f"  v_max3_u32 v{b}, v{ST0+1}, v{ST0+3}, v{ST0+5}")
    e(f"  v_max_u32 v{a}, v{a}, v{ST0+6}")
    e(f"  v_max_u32 v{b}, v{b}, v{ST0+7}")
    wave_max([a, b])
    e("  s_nop 0")
    e(f"  v_readlane_b32 s80, v{a}, 63")
    e(f"  v_readlane_b32 s81, v{b}, 63")
    e("  s_nop 0")
    e("  s_lshr_b32 s82, s80, 7")
    e("  s_sub_u32 s81, 0x8000, s81")
    e("  s_lshr_b32 s81, s81, 7")
    e("  s_sub_u32 s83, s82, s81")
    e(f"  s_cmp_eq_u32 s{sMode}, 2")
    e("  s_cbranch_scc1 LB_float")
    e("  s_cmp_ge_u32 s80, 0x7f80")
    e("  s_cbranch_scc1 LB_float")
    e("  s_cmp_lt_u32 s82, 32")
    e("  s_cbranch_scc1 LB_float")
    e("  s_cmp_gt_u32 s82, 200")
    e("  s_cbranch_scc1 LB_float")
    e("  s_cmp_gt_i32 s83, 10")
    e("  s_cbranch_scc1 LB_float")
    e(f"  s_mov_b32 s{sMag}, 0x4b400000")
    e("  s_sub_u32 s83, 275, s82")
    e(f"  s_lshl_b32 s{sSc}, s83, 23")
    e("  s_sub_u32 s83, s82, 21")
    e(f"  s_lshl_b32 s{sInv}, s83, 23")
    e("  s_branch LB_fast")
    lab("LB_float")
    e(f"  s_mov_b32 s{sMode}, 2")
    e(f"  s_mov_b32 s{sMag}, 0")
    e(f"  s_mov_b32 s{sSc}, 1.0")
    e(f"  s_mov_b32 s{sInv}, 1.0")
    e(f"  s_mov_b32 s{sTail}, 1")
    e("  s_waitcnt vmcnt(0) lgkmcnt(0)")
    e("  s_barrier")
    e("  s_branch LB_generic")
    lab("LB_fast")
    for s in range(4):
        for jj in range(4):
            vm.wait(f"C{s}_{2*jj+1}")
            e(f"  v_perm_b32 v{RCp(s,2*jj)}, v{LZ(s,2*jj+1)}, v{RCp(s,2*jj)}, s{sPerm}")
    vm.drain()
    stamp("B", "records arrived")

    def dec_idx(ra, dst):
        e(f"  v_bfi_b32 v{dst}, v{ra}, 0, s{sMsk}")
    def dec_rest(ra, rc, hi_half, s):
        e(f"  v_bfe_u32 v{t7}, v{ra}, 19, 11")
        if hi_half:
            e(f"  v_and_b32 v{t8}, 0xffff0000, v{rc}")
        else:
            e(f"  v_lshlrev_b32 v{t8}, 16, v{rc}")
        e(f"  v_mad_i32_i24 v{OA+s}, v{t7}, s{sN80}, v{vCB}")
        e(f"  v_mul_f32 v{CH_+s}, s{sSc}, v{t8}")
        e(f"  ds_add_u32 v{OA+s}, v{vOne} offset:64")
    def gather(s, h, src, tag):
        g0 = G0 + 8 * s + 4 * h
        vi = vIA if h == 0 else vIB
        qp = "[0,0,2,2]" if h == 0 else "[1,1,3,3]"
        e(f"  v_mov_b32_dpp v{vi}, v{src} quad_perm:{qp} {DPP}")
        if "nogather" in ABL:
            e(f"  v_mov_b32 v{vi}, -1")
        e(f"  buffer_load_dwordx4 v[{g0}:{g0+3}], v[{vi}:{vi+1}], s[12:15], 0 idxen offen")
        vm.issue(tag)
    def consume(s, h, isfloat):
        qp = "[0,0,2,2]" if h == 0 else "[1,1,3,3]"
        g0 = G0 + 8 * s + 4 * h
        ad, ch, cl = t0 + 3 * h, t1 + 3 * h, t2 + 3 * h
        e(f"  v_mov_b32_dpp v{ch}, v{CH_+s} quad_perm:{qp} {DPP}")
        e(f"  v_add_u32_dpp v{ad}, v{OA+s}, v{vH8} quad_perm:{qp} {DPP}")
        e(f"  v_lshrrev_b32 v{cl}, 16, v{ch}")
        for k in range(4):
            e(f"  v_dot2_f32_bf16 v{P0+2*k+1}, v{g0+k}, v{ch}, s{sMag}")
            e(f"  v_dot2_f32_bf16 v{P0+2*k}, v{g0+k}, v{cl}, s{sMag}")
            if "noatom" in ABL:
                continue
            if isfloat:
                e(f"  ds_add_f32 v{ad}, v{P0+2*k} offset:{16*k}")
                e(f"  ds_add_f32 v{ad}, v{P0+2*k+1} offset:{16*k+4}")
            else:
                e(f"  ds_add_u64 v{ad}, v[{P0+2*k}:{P0+2*k+1}] offset:{16*k}")
    if not EARLYBAR:
        e("  s_waitcnt lgkmcnt(0)")
        e("  s_barrier")
    stamp("B", "after barrier")
    tI = t6
    for s in range(4):
        dec_idx(RA(s, 0), tI)
        dec_rest(RA(s, 0), RCp(s, 0), False, s)
        gather(s, 0, tI, f"g0_{s}_0")
        gather(s, 1, tI, f"g0_{s}_1")

    def epi_loads1():
        gg, nn = t7, vL16
        e(f"  v_and_b32 v{t8}, 63, v0")
        e(f"  v_lshrrev_b32 v{gg}, 4, v{t8}")
        e(f"  v_lshlrev_b32 v{t8}, 6, v{gg}")
        e(f"  v_lshl_add_u32 v{t8}, v{nn}, 1, v{t8}     ; 64g + 2n")
        for k, off in enumerate((0, 32, 256, 288)):
            e(f"  global_load_ushort v{WTR[k]}, v{t8}, s[72:73] offset:{off}"); vm.issue("E1")
        for k in range(2):
            e(f"  global_load_ushort v{WTR[8+k]}, v{t8}, s[44:45] offset:{32*k}"); vm.issue("E1")
            e(f"  global_load_ushort v{WTR[10+k]}, v{t8}, s[46:47] offset:{32*k}"); vm.issue("E1")
        e(f"  v_lshlrev_b32 v{t8}, 7, v{gg}")
        e(f"  v_lshl_add_u32 v{t8}, v{nn}, 1, v{t8}     ; 128g + 2n")
        for k in range(4):
            e(f"  global_load_ushort v{WTR[4+k]}, v{t8}, s[74:75] offset:{32*k}"); vm.issue("E1")
        e(f"  v_lshlrev_b32 v{t8}, 2, v{gg}")
        e(f"  global_load_dword v{CEN}, v{t8}, s[40:41]"); vm.issue("E1")
        e(f"  s_lshl_b32 s80, s{sW}, 5")
        e(f"  v_lshl_add_u32 v{t8}, v{nn}, 1, s80")
        for u in range(7):
            e(f"  buffer_load_ushort v{RBF+2*u}, v{t8}, s[32:35], 0 offen offset:{u*512}"); vm.issue("E1")
            e(f"  v_mov_b32 v{RBF+2*u+1}, 0")
    def epi_loads2():
        gg, nn = t7, vL16
        e(f"  v_and_b32 v{t8}, 63, v0")
        e(f"  v_lshrrev_b32 v{gg}, 4, v{t8}")
        e(f"  s_lshl_b32 s80, s{sW}, 9")
        e(f"  v_lshlrev_b32 v{t8}, 5, v{nn}")
        e(f"  v_lshl_add_u32 v{t8}, v{gg}, 3, v{t8}")
        e(f"  v_add_u32 v{t8}, s80, v{t8}")
        for u in range(7):
            e(f"  s_mov_b32 s81, {u*8192}")
            e(f"  buffer_load_dwordx2 v[{MR+2*u}:{MR+2*u+1}], v{t8}, s[24:27], s81 offen{BM}"); vm.issue("E2")
    def epi_prep_w():
        e(f"  v_lshl_or_b32 v{WD}, v{WTR[1]}, 16, v{WTR[0]}")
        e(f"  v_lshl_or_b32 v{WD+1}, v{WTR[3]}, 16, v{WTR[2]}")
        e(f"  v_lshl_or_b32 v{WU}, v{WTR[5]}, 16, v{WTR[4]}")
        e(f"  v_lshl_or_b32 v{WU+1}, v{WTR[7]}, 16, v{WTR[6]}")
        e(f"  v_lshl_or_b32 v{WR}, v{WTR[9]}, 16, v{WTR[8]}")
        e(f"  v_lshl_or_b32 v{WS}, v{WTR[11]}, 16, v{WTR[10]}")
        e(f"  v_mov_b32 v{WR+1}, 0")
        e(f"  v_mov_b32 v{WS+1}, 0")
        c0, c1, x, y, p = XZ, XZ + 1, XZ + 2, XZ + 3, XZ + 4
        for k in range(2):
            e(f"  v_lshlrev_b32 v{x}, 16, v{WD+k}")
            e(f"  v_and_b32 v{y}, 0xffff0000, v{WD+k}")
            e(f"  v_mul_f32 v{x}, s{sInv}, v{x}")
            e(f"  v_mul_f32 v{y}, s{sInv}, v{y}")
            e(f"  v_cvt_pk_bf16_f32 v{WDS+k}, v{x}, v{y}")
        e(f"  v_lshlrev_b32 v{c0}, 16, v{CEN}")
        e(f"  v_and_b32 v{c1}, 0xffff0000, v{CEN}")
    def epi_prep_rbf(u):
        c0, c1, x, y, p = XZ, XZ + 1, XZ + 2, XZ + 3, XZ + 4
        r = RBF + 2 * u
        e("  s_mov_b32 s80, 0xc1200000           ; -10.0")
        e("  s_mov_b32 s81, 0x3fb8aa3b           ; log2(e)")
        e(f"  v_lshlrev_b32 v{r}, 16, v{r}")
        e(f"  v_sub_f32 v{x}, v{r}, v{c0}")
        e(f"  v_sub_f32 v{y}, v{r}, v{c1}")
        for op in ("sq", "m10", "exp"):
            e(f"  v_cvt_pk_bf16_f32 v{p}, v{x}, v{y}")
            e(f"  v_lshlrev_b32 v{x}, 16, v{p}")
            e(f"  v_and_b32 v{y}, 0xffff0000, v{p}")
            if op == "sq":
                e(f"  v_mul_f32 v{x}, v{x}, v{x}")
                e(f"  v_mul_f32 v{y}, v{y}, v{y}")
            elif op == "m10":
                e(f"  v_mul_f32 v{x}, s80, v{x}")
                e(f"  v_mul_f32 v{y}, s80, v{y}")
            else:
                e(f"  v_mul_f32 v{x}, s81, v{x}")
                e(f"  v_mul_f32 v{y}, s81, v{y}")
                e(f"  v_exp_f32 v{x}, v{x}")
                e(f"  v_exp_f32 v{y}, v{y}")
                e("  s_nop 0")
        e(f"  v_cvt_pk_bf16_f32 v{r}, v{x}, v{y}")
    def epi_prep():
        epi_prep_w()
        for u in range(7):
            epi_prep_rbf(u)

    LASTBAR = int(os.environ.get("LASTBAR", "6"))
    FIRSTBAR = int(os.environ.get("FIRSTBAR", "0"))
    for j in range(8):
        BARPOS = int(os.environ.get("BARPOS", "0"))
        dobar = "nobar" not in ABL and FIRSTBAR <= j <= LASTBAR and str(j) in os.environ.get("BARSET", "01234567")
        if dobar and BARPOS == 0:
            e("  s_barrier")
        if j in (0, 1, 2, 4, 6, 7):
            stamp("B", f"phase {j} begin")
        for s in range(4):
            last = (j == 7)
            if s and s % BARN == 0 and not last:
                e("  s_barrier")
            if not last:
                dec_idx(RA(s, j + 1), tI)
            vm.wait(f"g{j}_{s}_0")
            consume(s, 0, False)
            if not last:
                gather(s, 0, tI, f"g{j+1}_{s}_0")
            if dobar and BARPOS == 1 and s == 0:
                e("  s_barrier")
            vm.wait(f"g{j}_{s}_1")
            consume(s, 1, False)
            if not last:
                gather(s, 1, tI, f"g{j+1}_{s}_1")
                if dobar and BARPOS == 2 and s == 0:
                    e("  s_barrier")
                dec_rest(RA(s, j + 1), RCp(s, j + 1), (j + 1) % 2 == 1, s)
            step = 4 * j + s
            if FASTTAIL and 21 <= step <= 24:
                q = step - 21
                e(f"  v_cmp_ne_u32 vcc, 0, v{IE+q}")
                e("  s_mov_b64 exec, vcc")
                e(f"  buffer_load_ushort v{RCE+q}, v{IE+q}, s[8:11], 0 idxen{BREC}")
                vm.issue(f"XC{q}")
                e(f"  buffer_load_dword v{IE+q}, v{IE+q}, s[4:7], 0 idxen{BREC}")
                vm.issue(f"XA{q}")
                e("  s_mov_b64 exec, -1")
            if step == 15:
                epi_loads1()
            if SPREAD:
                if step == 19:
                    vm.wait("E1")
                    epi_prep_w()
                if 20 <= step <= 26:
                    epi_prep_rbf(step - 20)
                if step == 27:
                    epi_loads2()
            else:
                if step == 20:
                    vm.wait("E1")
                    epi_prep()
                if step == 23:
                    epi_loads2()
    stamp("B", "main done")
    e(f"  s_cmp_eq_u32 s{sTail}, 0")
    e("  s_cbranch_scc1 LB_epi")
    if "notail" in ABL:
        e("  s_branch LB_epi")
    if FASTTAIL:
        q_keep = list(vm.q)
        e("  s_waitcnt vmcnt(0)")
        for s in range(4):
            dec_idx(IE + s, tI)
            dec_rest(IE + s, RCE + s, False, s)
            gather(s, 0, tI, "x")
            gather(s, 1, tI, "x")
        e("  s_waitcnt vmcnt(0)")
        for s in range(4):
            consume(s, 0, False)
            consume(s, 1, False)
        vm.q = q_keep
        e(f"  s_cmp_eq_u32 s{sTail2}, 0")
        e("  s_cbranch_scc1 LB_epi")
    lab("LB_generic")
    q_main = list(vm.q)
    e("  s_waitcnt vmcnt(0)")
    run_table_loads()
    e("  s_waitcnt vmcnt(0)")
    run_params()
    for s in range(4):
        e(f"  v_min_u32 v{CU+s}, {0x90 if FASTTAIL else 0x80:#x}, v{LN+s}")
        e(f"  s_cmp_eq_u32 s{sMode}, 2")
        e(f"  s_cbranch_scc0 LB_gen{s}_c")
        e(f"  v_mov_b32 v{CU+s}, 0")
        lab(f"LB_gen{s}_c")
    for s in range(4):
        lab(f"LB_gen{s}")
        e(f"  v_add_u32 v{t0}, v{CU+s}, v{vL16}")
        e(f"  v_cmp_lt_u32 vcc, v{t0}, v{LN+s}")
        e(f"  s_cbranch_vccz LB_gen{s}_done")
        e(f"  v_add_u32 v{t0}, v{BS+s}, v{t0}")
        e(f"  v_add_u32 v{CU+s}, 16, v{CU+s}")
        e(f"  v_cndmask_b32 v{t0}, -1, v{t0}, vcc")
        e(f"  buffer_load_dword v{G0+8}, v{t0}, s[4:7], 0 idxen")
        e(f"  buffer_load_ushort v{G0+9}, v{t0}, s[8:11], 0 idxen")
        e("  s_waitcnt vmcnt(0)")
        dec_idx(G0 + 8, tI)
        dec_rest(G0 + 8, G0 + 9, False, 0)
        gather(0, 0, tI, "x")
        gather(0, 1, tI, "x")
        e("  s_waitcnt vmcnt(0)")
        e(f"  s_cmp_eq_u32 s{sMode}, 2")
        e(f"  s_cbranch_scc1 LB_gen{s}_f")
        consume(0, 0, False)
        consume(0, 1, False)
        e(f"  s_branch LB_gen{s}")
        lab(f"LB_gen{s}_f")
        consume(0, 0, True)
        consume(0, 1, True)
        e(f"  s_branch LB_gen{s}")
        lab(f"LB_gen{s}_done")
    e(f"  s_cmp_eq_u32 s{sMode}, 2")
    e("  s_cbranch_scc0 LB_epi")
    epi_loads1()
    e("  s_waitcnt vmcnt(0)")
    epi_prep()
    epi_loads2()
    lab("LB_epi")
    vm.q = []
    e("  s_waitcnt lgkmcnt(0)")
    e("  s_barrier")
    stamp("B", "final barrier")
    g = t0
    e(f"  v_and_b32 v{t1}, 63, v0")
    e(f"  v_lshrrev_b32 v{g}, 4, v{t1}")
    e(f"  s_lshl_b32 s80, s{sW}, 4")
    e(f"  v_add_u32 v{t1}, s80, v{vL16}")
    e(f"  v_mul_u32_u24 v{t1}, {ROWB}, v{t1}")
    e(f"  v_lshl_add_u32 v{t2}, v{g}, 4, v{t1}")
    e(f"  v_add_u32 v{t3}, {4*256*ROWB}, v{t1}")
    e(f"  v_add_u32 v{t4}, {4*256*ROWB}, v{t2}")
    A_ = lambda u: 8 + 12 * (u % 4)
    G_ = lambda u: 8 + 12 * (u % 4) + 4
    R_ = lambda u: 8 + 12 * (u % 4) + 8
    PKS = (66, 68)
    X0, vMx = 70, 71
    NTILE = -(-BINE // 16)
    W6 = NTILE - 96
    def tile_reads(u):
        ra, rc = (t2, t1) if u < 4 else (t4, t3)
        e(f"  ds_read_b128 v[{A_(u)}:{A_(u)+3}], v{ra} offset:{(u%4)*256*ROWB}")
        e(f"  ds_read_b32 v{G_(u)}, v{rc} offset:{(u%4)*256*ROWB+64}")
    def tile_stage1(u):
        a, gg, rr = A_(u), G_(u), R_(u)
        PK = PKS[u % 2]
        e(f"  v_max_u32 v{vMx}, v{vMx}, v{gg}")
        e(f"  s_cbranch_scc1 LB_e{u}_f")
        e(f"  v_mul_u32_u24 v{gg}, 0x12d, v{gg}")
        e(f"  v_lshlrev_b32 v{gg+1}, 22, v{gg}")
        for k in (0, 2):
            e(f"  v_sub_u32 v{a+k}, v{a+k}, v{gg+1}")
            e(f"  v_sub_u32 v{a+k+1}, v{a+k+1}, v{gg+1}")
            e(f"  v_ashrrev_i32 v{gg+2}, 22, v{a+k}")
            e(f"  v_add_u32 v{gg+2}, v{gg+2}, v{gg}")
            e(f"  v_ashrrev_i32 v{gg+2}, 10, v{gg+2}")
            e(f"  v_sub_u32 v{a+k+1}, v{a+k+1}, v{gg+2}")
        for k in range(4):
            e(f"  v_cvt_f32_i32 v{a+k}, v{a+k}")
        lab(f"LB_e{u}_f")
        e(f"  v_cvt_pk_bf16_f32 v{PK}, v{a}, v{a+1}")
        e(f"  v_cvt_pk_bf16_f32 v{PK+1}, v{a+2}, v{a+3}")
        e(f"  v_mfma_f32_16x16x16_bf16 v[{gg}:{gg+3}], v[{WS}:{WS+1}], v[{RBF+2*u}:{RBF+2*u+1}], 0")
        e(f"  v_mfma_f32_16x16x16_bf16 v[{rr}:{rr+3}], v[{WR}:{WR+1}], v[{RBF+2*u}:{RBF+2*u+1}], 0")
        e(f"  v_mfma_f32_16x16x16_bf16 v[{a}:{a+3}], v[{WDS}:{WDS+1}], v[{PK}:{PK+1}], 0")
    def tile_stage2(u):
        a, gg = A_(u), G_(u)
        PK = PKS[u % 2]
        for k in range(4):
            e(f"  v_mul_f32 v{a+k}, v{a+k}, v{gg+k}")
        e(f"  v_cvt_pk_bf16_f32 v{PK}, v{a}, v{a+1}")
        e(f"  v_cvt_pk_bf16_f32 v{PK+1}, v{a+2}, v{a+3}")
        e("  s_nop 1")
        e(f"  v_mfma_f32_16x16x16_bf16 v[{gg}:{gg+3}], v[{WU}:{WU+1}], v[{PK}:{PK+1}], 0")
    def tile_stage3(u):
        a, gg, rr = A_(u), G_(u), R_(u)
        m0, m1 = MR + 2 * u, MR + 2 * u + 1
        e(f"  v_lshlrev_b32 v{a}, 16, v{m0}")
        e(f"  v_and_b32 v{a+1}, 0xffff0000, v{m0}")
        e(f"  v_lshlrev_b32 v{a+2}, 16, v{m1}")
        e(f"  v_and_b32 v{a+3}, 0xffff0000, v{m1}")
        for k in range(4):
            e(f"  v_fmac_f32 v{a+k}, v{gg+k}, v{rr+k}")
        e(f"  v_cvt_pk_bf16_f32 v{m0}, v{a}, v{a+1}")
        e(f"  v_cvt_pk_bf16_f32 v{m1}, v{a+2}, v{a+3}")
        e(f"  s_mov_b32 s81, {u*8192}")
        e(f"  buffer_store_dwordx2 v[{m0}:{m1}], v{t6}, s[28:31], s81 offen{BOUT}")
    def guarded(u, fn, tag):
        if u == 6:
            e(f"  s_cmp_ge_u32 s{sW}, {W6}")
            e(f"  s_cbranch_scc1 LB_skip6{tag}")
            if tag == "b":
                e(f"  s_cmp_eq_u32 s{sMode}, 2")
        fn(u)
        if u == 6:
            lab(f"LB_skip6{tag}")
    for u in (0, 1, 2, 3):
        tile_reads(u)
    e(f"  s_lshl_b32 s80, s{sW}, 9")
    e(f"  v_lshlrev_b32 v{t6}, 5, v{vL16}")
    e(f"  v_lshl_add_u32 v{t6}, v{g}, 3, v{t6}")
    e(f"  v_add_u32 v{t6}, s80, v{t6}")
    e(f"  v_mov_b32 v{vMx}, 0")
    for gi, grp in enumerate(((0, 1, 2, 3), (4, 5, 6))):
        if gi:
            for u in grp:
                guarded(u, tile_reads, "a")
        e("  s_waitcnt lgkmcnt(0)")
        e(f"  s_cmp_eq_u32 s{sMode}, 2")
        for u in grp:
            guarded(u, tile_stage1, "b")
        e("  s_nop 7")
        for u in grp:
            guarded(u, tile_stage2, "c")
        if gi == 0:
            e("  s_waitcnt vmcnt(0)              ; m rows")
        e("  s_nop 7")
        for u in grp:
            guarded(u, tile_stage3, "d")
    e(f"  v_cmp_lt_u32 s[{sOv}:{sOv+1}], 0x1ff, v{vMx}" if False else f"  v_cmp_lt_u32 vcc, 0x1ff, v{vMx}")
    e(f"  s_mov_b64 s[{sOv}:{sOv+1}], vcc")
    stamp("B", "epilogue done")
    stamp_dump("B", 78, sW)
    e(f"  s_cmp_eq_u32 s{sMode}, 2")
    e("  s_cbranch_scc1 LB_end")
    e(f"  s_cmp_eq_u64 s[{sOv}:{sOv+1}], 0")
    e("  s_cbranch_scc1 LB_noov")
    e(f"  v_mov_b32 v{t3}, {B_FLAG}")
    e(f"  ds_write_b32 v{t3}, v{vOne}")
    lab("LB_noov")
    e("  s_waitcnt lgkmcnt(0)")
    e("  s_barrier")
    e(f"  v_mov_b32 v{t3}, {B_FLAG}")
    e(f"  ds_read_b32 v{t3}, v{t3}")
    e("  s_waitcnt lgkmcnt(0)")
    e(f"  v_readfirstlane_b32 s80, v{t3}")
    e("  s_cmp_eq_u32 s80, 0")
    e("  s_cbranch_scc1 LB_end")
    e("  s_waitcnt vmcnt(0)")
    e("  s_barrier")
    e(f"  s_mov_b32 s{sMode}, 2")
    e("  s_branch LB_start")
    lab("LB_end")
    e("  s_endpgm")

def descriptor(name, vgpr, sgpr):
    e(".p2align 6")
    e(f".amdhsa_kernel {name}")
    e(f"  .amdhsa_next_free_vgpr {vgpr}")
    e(f"  .amdhsa_next_free_sgpr {sgpr}")
    e(f"  .amdhsa_accum_offset {vgpr}")
    e("  .amdhsa_group_segment_fixed_size 0")
    e("  .amdhsa_kernarg_size 112")
    e("  .amdhsa_user_sgpr_count 2")
    e("  .amdhsa_user_sgpr_kernarg_segment_ptr 1")
    e("  .amdhsa_system_sgpr_workgroup_id_x 1")
    e("  .amdhsa_float_denorm_mode_32 3")
    e(".end_amdhsa_kernel")

header = open("standalone__molecular_angular_gemnet__graph.s.ref").read().split("; Override launch")[0]
e(header.rstrip())
for _l in """
; Algorithm (L = 1, so sbf @ w_sbf = cos(f*angle[t]) * (rbf[o] @ w_sbf) and the per-triplet layer factors out of the sum):
;   S[o]   = sum over triplets t with idx_out[t] = o of cos(f*angle[t]) * m[idx_in[t]]
;   out[o] = m[o] + (((S[o] @ w_down) * (rbf[o] @ w_sbf)) @ w_up) * (rbf[o] @ w_rbf)
; Launch 1 (part): each workgroup counting-sorts one chunk of ~25000 triplets in LDS by (output bin, source range) and
;   writes 6-byte records (source row, local output row, bf16 cosine) plus a table of run starts to d_ws.  It also
;   reads its slice of m (into the last-level cache) and reports max |m| and the smallest non-zero row maximum.
; Launch 2 (main): one workgroup per bin of 1564 output edges.  Every wave keeps the records of its 16 runs in
;   registers and walks them in 8 phases of ascending source rows (all workgroups sweep m together, so the gathers
;   hit L2), accumulates cos * m in LDS and finishes with the edge-level layers on the matrix cores.
;   Accumulation: products of two bf16 values are exact in f32; they are rounded to a 22-bit fixed-point grid scaled to
;   max |m| and added with 64-bit integer LDS atomics (two features each; LDS f32 atomics are serialised per lane).
;   If the rows of m span more than 2^10 in magnitude, m or a cosine is not finite, or an edge has more than 511
;   triplets, the bin is accumulated with f32 LDS atomics instead.
""".strip().split("\n"):
    e(_l)
for _k in os.environ.get("LIST", "AB"):
    if _k == "A":
        e(f"; @launch kernel={KA} grid=({NCH},1,1) block=(1024,1,1) lds={A_LDS}")
    elif _k == "e":
        e(f"; @launch kernel=empty_kernel grid=(1,1,1) block=(64,1,1) lds=0")
    elif _k == "E":
        e(f"; @launch kernel=empty_kernel grid=(250,1,1) block=(1024,1,1) lds=131072")
    else:
        e(f"; @launch kernel={KB} grid=({NB},1,1) block=(1024,1,1) lds={B_LDS}")
e('.amdgcn_target "amdgcn-amd-amdhsa--gfx950"')
e(".text")
kernel_a()
kernel_b()
if set(os.environ.get("LIST", "")) & set("eE"):
    e(".globl empty_kernel")
    e(".p2align 8")
    e(".type empty_kernel,@function")
    lab("empty_kernel")
    e("  s_endpgm")
e('.section .rodata,"a"')
if set(os.environ.get("LIST", "")) & set("eE"):
    descriptor("empty_kernel", 128, 102)
descriptor(KA, 128, 102)
descriptor(KB, 128, 102)
dst = sys.argv[1] if len(sys.argv) > 1 else "standalone__molecular_angular_gemnet__graph.s"
open(dst, "w").write("\n".join(out) + "\n")
print("wrote", dst, len(out), "lines")
```

```python
import sys, os
DBG = os.environ.get("DBG", "")
ABL = os.environ.get("ABL", "").split(",")
def pol(name, default=""):
    v = os.environ.get(name, default)
    return (" " + v.replace("+", " ")) if v else ""
PF = int(os.environ.get("PF", "0"))
PFLEAD = int(os.environ.get("PFLEAD", "8"))
BARN = int(os.environ.get("BARN", "4"))
SPREAD = int(os.environ.get("SPREAD", "1"))
AOPT = os.environ.get("AOPT", "bmnd")
TOUCH = os.environ.get("TOUCH", "")
FASTTAIL = int(os.environ.get("FASTTAIL", "1"))
EARLYBAR = int(os.environ.get("EARLYBAR", "0"))
BURST = int(os.environ.get("BURST", "0"))
XMAP = int(os.environ.get("XMAP", "1"))
ATT = pol("ATT", "sc0+sc1"); AIN = pol("AIN", "nt"); ATAB = pol("ATAB"); AST = pol("AST", "sc0+sc1"); BREC = pol("BREC"); BOUT = pol("BOUT", "nt"); BM = pol("BM")

KA = "standalone__molecular_angular_gemnet__graph_part_kernel"
KB = "standalone__molecular_angular_gemnet__graph_kernel"

E = 400000
T = 6400000
NWG = int(os.environ.get("NWG", "256"))
NCH = NWG
NB = NWG
UNITS = T // 64
CH = -(-UNITS // NCH) * 64
NBIG = UNITS - (CH // 64 - 1) * NCH if UNITS % NCH else NCH
BINE = -(-(-(-E // NB)) // 4) * 4
TP = CH * NCH
assert T % 64 == 0 and NBIG * CH + (NCH - NBIG) * (CH - 64) == T and 24576 < CH - 64 * (NBIG < NCH) and CH <= 25600
KS = int(os.environ.get("KS", "12"))
assert KS in (8, 12)

WS_RECA = 256
WS_RECC = WS_RECA + TP * 4
WS_TT = WS_RECA + TP * 6
WS_STATS = WS_TT + NCH * 1024

A_HIST = 0
A_C = 256 * KS * 4
A_A = A_C + -(-CH * 2 // 16) * 16
A_SCR = A_A + -(-CH * 4 // 16) * 16
A_LDS = A_SCR + 128

ROWB = 80
B_FLAG = 130048
B_LDS = 131072

out = []
def e(s=""):
    out.append(s)
def lab(s):
    out.append(s + ":")

DPP = "row_mask:0xf bank_mask:0xf"

def srd(reg, lo, hi, size, stride=0):
    e(f"  s_mov_b32 s{reg}, s{lo}")
    e(f"  s_and_b32 s{reg+1}, s{hi}, 0xffff")
    if stride:
        e(f"  s_or_b32 s{reg+1}, s{reg+1}, {stride << 16:#x}")
    e(f"  s_mov_b32 s{reg+2}, {size}")
    e(f"  s_mov_b32 s{reg+3}, 0x20000")

def srd_off(reg, lo, hi, off_sreg, size, const=0, stride=0):
    e(f"  s_add_u32 s{reg}, s{lo}, s{off_sreg}")
    e(f"  s_addc_u32 s{reg+1}, s{hi}, 0")
    if const:
        e(f"  s_add_u32 s{reg}, s{reg}, {const}")
        e(f"  s_addc_u32 s{reg+1}, s{reg+1}, 0")
    e(f"  s_and_b32 s{reg+1}, s{reg+1}, 0xffff")
    if stride:
        e(f"  s_or_b32 s{reg+1}, s{reg+1}, {stride << 16:#x}")
    e(f"  s_mov_b32 s{reg+2}, {size}")
    e(f"  s_mov_b32 s{reg+3}, 0x20000")

STAMP = os.environ.get("STAMP", "")
stamp_n = [0]
def stamp(kern, name):
    if STAMP != kern:
        return
    k = stamp_n[0]; stamp_n[0] += 1
    assert k < 16
    e(f"  s_memrealtime s[84:85]")
    e("  s_waitcnt lgkmcnt(0)")
    e(f"  s_mov_b32 s{86+k}, s84")
    if k == 0:
        e("  s_memtime s[84:85]")
        e("  s_waitcnt lgkmcnt(0)")
        e("  s_mov_b32 s101, s84")
    print("stamp", k, name)
def stamp_dump(kern, wsreg, wavereg):
    if STAMP != kern:
        return
    e("  s_memtime s[84:85]")
    e("  s_waitcnt lgkmcnt(0)")
    e("  s_sub_u32 s101, s84, s101")
    e(f"  s_cmp_eq_u32 s{wavereg}, {int(os.environ.get('STAMPW', '0'))}")
    e(f"  s_cbranch_scc0 L{kern}_nodump")
    e(f"  s_lshl_b32 s84, s2, 6")
    e(f"  s_add_u32 s84, s84, {128<<20}")
    e(f"  s_add_u32 s102-18, s{wsreg}, s84".replace("s102-18", "s84"))
    e(f"  s_addc_u32 s85, s{wsreg+1}, 0")
    e("  v_mov_b32 v60, 0")
    for k in range(16):
        e(f"  v_mov_b32 v61, s{86+k}")
        e(f"  global_store_dword v60, v61, s[84:85] offset:{4*k}")
    lab(f"L{kern}_nodump")

def wave_scan_add(v):
    for sh in (1, 2, 4, 8):
        e("  s_nop 1")
        e(f"  v_add_u32_dpp v{v}, v{v}, v{v} row_shr:{sh} {DPP}")
    e("  s_nop 1")
    e(f"  v_add_u32_dpp v{v}, v{v}, v{v} row_bcast:15 row_mask:0xa bank_mask:0xf")
    e("  s_nop 1")
    e(f"  v_add_u32_dpp v{v}, v{v}, v{v} row_bcast:31 row_mask:0xc bank_mask:0xf")

def wave_max(vs):
    steps = [f"row_shr:{sh} {DPP}" for sh in (1, 2, 4, 8)] + \
            ["row_bcast:15 row_mask:0xa bank_mask:0xf", "row_bcast:31 row_mask:0xc bank_mask:0xf"]
    for st in steps:
        e("  s_nop 1")
        for v in vs:
            e(f"  v_max_u32_dpp v{v}, v{v}, v{v} {st}")

class VmQ:
    def __init__(self):
        self.q = []
    def issue(self, tag):
        self.q.append(tag)
        assert len(self.q) <= 63, "vmcnt overflow"
    def wait(self, tag):
        if tag not in self.q:
            return
        idx = max(i for i, t in enumerate(self.q) if t == tag)
        n = len(self.q) - 1 - idx
        assert n <= 63
        e(f"  s_waitcnt vmcnt({n})")
        self.q = self.q[idx + 1:]
    def drain(self):
        e("  s_waitcnt vmcnt(0)")
        self.q = []

def kernel_a():
    I0, O0, AN0, RK0, TB0 = 8, 34, 60, 74, 100
    vOne, vF = 2, 3
    t0, t1, t2, t3, t4, t5 = 116, 117, 118, 119, 120, 121
    e(f".globl {KA}")
    e(".p2align 8")
    e(f".type {KA},@function")
    lab(KA)
    e(f"  s_cmp_ge_u32 s2, {NCH}")
    e("  s_cbranch_scc1 LA_end")
    e("  s_load_dwordx4 s[4:7], s[0:1], 0")
    e("  s_load_dwordx2 s[8:9], s[0:1], 16      ; idx_out")
    e("  s_load_dwordx2 s[10:11], s[0:1], 32    ; angle")
    e("  s_load_dwordx2 s[12:13], s[0:1], 48    ; ang_freq")
    e("  s_load_dwordx2 s[14:15], s[0:1], 104   ; ws")
    e("  v_lshrrev_b32 v1, 6, v0")
    e("  v_lshlrev_b32 v4, 4, v0                ; t*16")
    e("  v_readfirstlane_b32 s50, v1")
    e("  v_lshlrev_b32 v5, 3, v0                ; t*8")
    e("  v_lshlrev_b32 v6, 2, v0                ; t*4")
    e("  v_lshlrev_b32 v7, 1, v0                ; t*2")
    e(f"  v_mov_b32 v{vOne}, {2 if 'd' in AOPT else 1}")
    e(f"  v_mov_b32 v{t0}, 0")
    e(f"  v_mov_b32 v{t1}, 0")
    e(f"  s_mul_i32 s46, s2, {CH//64 - 1 if NBIG < NCH else CH//64}")
    if NBIG < NCH:
        e(f"  s_min_u32 s47, s2, {NBIG}")
        e("  s_add_u32 s46, s46, s47")
    e("  s_lshl_b32 s48, s46, 8")
    e("  s_lshl_b32 s49, s46, 7")
    e(f"  s_mov_b32 s59, {CH - 64 if NBIG < NCH else CH}")
    if NBIG < NCH:
        e(f"  s_cmp_lt_u32 s2, {NBIG}")
        e(f"  s_cselect_b32 s59, {CH}, s59")
    e(f"  s_mul_i32 s64, s2, {CH*4}")
    e(f"  s_mul_i32 s65, s2, {CH*2}")
    e("  s_lshl_b32 s51, s2, 10")
    e("  s_lshl_b32 s52, s2, 3")
    e("  s_waitcnt lgkmcnt(0)")
    srd_off(16, 6, 7, 48, CH * 4)
    srd_off(20, 8, 9, 48, CH * 4)
    srd_off(24, 10, 11, 49, CH * 2)
    e("  s_lshl_b32 s18, s59, 2")
    e("  s_lshl_b32 s22, s59, 2")
    e("  s_lshl_b32 s26, s59, 1")
    vm = VmQ()
    APIPE = int(os.environ.get("APIPE", "7"))
    if KS == 8:
        e(f"  ds_write_b64 v5, v[{t0}:{t1}] offset:{A_HIST}")
    else:
        e(f"  v_mul_u32_u24 v126, 12, v0")
        for k in range(3):
            e(f"  ds_write_b32 v126, v{t0} offset:{A_HIST+4*k}")
    e(f"  v_and_b32 v{t2}, 15, v0")
    e(f"  v_lshlrev_b32 v{t2}, 3, v{t2}")
    e(f"  v_add_u32 v{t2}, {A_SCR}, v{t2}")
    e(f"  ds_write_b64 v{t2}, v[{t0}:{t1}]")
    e(f"  global_load_ushort v{vF}, v{t0}, s[12:13]")
    vm.issue("F")
    stamp("A", "start")
    def loads(u):
        e(f"  s_mov_b32 s53, {u*16384}")
        e(f"  s_mov_b32 s54, {u*8192}")
        if u < 6:
            e(f"  buffer_load_dwordx4 v[{I0+4*u}:{I0+4*u+3}], v4, s[16:19], s53 offen{AIN}")
            e(f"  buffer_load_dwordx4 v[{O0+4*u}:{O0+4*u+3}], v4, s[20:23], s53 offen{AIN}")
            e(f"  buffer_load_dwordx2 v[{AN0+2*u}:{AN0+2*u+1}], v5, s[24:27], s54 offen{AIN}")
        else:
            e(f"  buffer_load_dword v{I0+24}, v6, s[16:19], s53 offen{AIN}")
            e(f"  buffer_load_dword v{O0+24}, v6, s[20:23], s53 offen{AIN}")
            e(f"  buffer_load_ushort v{AN0+12}, v7, s[24:27], s54 offen{AIN}")
        for _ in range(3):
            vm.issue(f"L{u}")
    APRIO = int(os.environ.get("APRIO", "1"))
    NPRE = 2 if 'b' in AOPT else 0
    if APRIO:
        e("  s_setprio 3")
    for u in range(NPRE):
        loads(u)
    e("  s_waitcnt lgkmcnt(0)")
    e("  s_barrier")
    for u in range(NPRE, min(APIPE, 7)):
        loads(u)
    if APRIO:
        e("  s_setprio 0")
    e(f"  s_mul_i32 s47, s2, {BINE*32}")
    srd_off(28, 4, 5, 47, BINE * 32)
    e(f"  s_sub_u32 s47, {E*32}, s47")
    e(f"  s_min_u32 s30, s47, {BINE*32}")
    srd_off(32, 14, 15, 64, CH * 4, WS_RECA)
    srd_off(36, 14, 15, 65, CH * 2, WS_RECC)
    e("  s_lshl_b32 s34, s59, 2")
    e("  s_lshl_b32 s38, s59, 1")
    e("  s_sub_u32 s59, s59, 24576")
    srd_off(40, 14, 15, 51, 1024, WS_TT)
    srd_off(44, 14, 15, 52, 8, WS_STATS)
    assert (((2**32 + BINE - 1)//BINE) * BINE - 2**32) * E < 2**32
    e(f"  s_mov_b32 s55, {(2**32 + BINE - 1)//BINE}")
    e(f"  s_mov_b32 s56, {(2**32 * KS)//E - 1}")
    e(f"  s_mov_b32 s57, {-BINE}")

    def rec(r):
        I, O, R = I0 + r, O0 + r, RK0 + r
        e(f"  v_mul_hi_u32_u24 v{t0}, s55, v{O}           ; bin")
        e(f"  v_mul_hi_u32_u24 v{t1}, s56, v{I}           ; i range")
        e(f"  v_mad_i32_i24 v{t2}, v{t0}, s57, v{O}       ; o local")
        e(f"  v_lshlrev_b32 v{t1}, 2, v{t1}")
        if KS == 8:
            e(f"  v_lshl_add_u32 v{O}, v{t0}, 5, v{t1}        ; key*4")
        else:
            e(f"  v_mad_u32_u24 v{O}, v{t0}, 48, v{t1}        ; key*4")
        e(f"  v_lshl_or_b32 v{I}, v{t2}, 19, v{I}")
        e(f"  ds_add_rtn_u32 v{R}, v{O}, v{vOne} offset:{A_HIST}")
        e(f"  v_not_b32 v{I}, v{I}")

    def cospair(a):
        if "nocos" in ABL:
            return
        x, y = t3, t4
        e(f"  v_lshlrev_b32 v{x}, 16, v{a}")
        e(f"  v_and_b32 v{y}, 0xffff0000, v{a}")
        e(f"  v_mul_f32 v{x}, v{vF}, v{x}")
        e(f"  v_mul_f32 v{y}, v{vF}, v{y}")
        e(f"  v_cvt_pk_bf16_f32 v{t5}, v{x}, v{y}")
        e(f"  v_lshlrev_b32 v{x}, 16, v{t5}")
        e(f"  v_and_b32 v{y}, 0xffff0000, v{t5}")
        e(f"  v_mul_f32 v{x}, 0.15915494, v{x}")
        e(f"  v_mul_f32 v{y}, 0.15915494, v{y}")
        e(f"  v_fract_f32 v{x}, v{x}")
        e(f"  v_fract_f32 v{y}, v{y}")
        e(f"  v_cos_f32 v{x}, v{x}")
        e(f"  v_cos_f32 v{y}, v{y}")
        e("  s_nop 0")
        e(f"  v_cvt_pk_bf16_f32 v{a}, v{x}, v{y}")
        e(f"  v_and_b32 v{x}, 0x7fff7fff, v{a}")
        e(f"  v_pk_max_u16 v{gC}, v{gC}, v{x}")

    gC = 124
    e(f"  v_mov_b32 v{gC}, 0")
    if "A" in TOUCH:
        e(f"  v_mov_b32 v{t3}, 0")
        for r in (32, 36, 40, 44):
            e(f"  buffer_load_dword v127, v{t3}, s[{r}:{r+3}], 0 offen")
            vm.issue("touch")
    stamp("A", "loads issued")
    ABAR = int(os.environ.get("ABAR", "0"))
    for u in range(7):
        if ABAR == 2 and u + APIPE < 7:
            e("  s_setprio 3")
            loads(u + APIPE)
            e("  s_setprio 0")
            e("  s_barrier")
        vm.wait(f"L{u}")
        if u in (0, 3, 6):
            stamp("A", f"group {u} arrived")
        if ABAR != 2 and u + APIPE < 7:
            if ABAR == 1:
                e("  s_setprio 3")
            loads(u + APIPE)
            if ABAR == 1:
                e("  s_setprio 0")
                e("  s_barrier")
        if u == 0:
            e(f"  v_lshlrev_b32 v{vF}, 16, v{vF}")
        if u < 6:
            for r in range(4):
                rec(4 * u + r)
            cospair(AN0 + 2 * u)
            cospair(AN0 + 2 * u + 1)
        else:
            e(f"  v_cmp_gt_u32 vcc, s59, v0")
            e("  s_and_saveexec_b64 s[62:63], vcc")
            e("  s_cbranch_execz LA_r24")
            rec(24)
            cospair(AN0 + 12)
            lab("LA_r24")
            e("  s_mov_b64 exec, s[62:63]")
    if os.environ.get("CODEPF", "0") == "1":
        e("  s_cmp_lt_u32 s2, 8")
        e("  s_cbranch_scc0 LA_nopf")
        e("  s_cmp_eq_u32 s50, 15")
        e("  s_cbranch_scc0 LA_nopf")
        e("  s_getpc_b64 s[70:71]")
        lab("LA_pc")
        e(f"  s_add_u32 s70, s70, {KB}-LA_pc")
        e("  s_addc_u32 s71, s71, 0")
        e("  v_and_b32 v126, 63, v0")
        e("  v_lshlrev_b32 v126, 6, v126")
        for k in range(6):
            e(f"  v_min_u32 v125, LB_end-{KB}, v126")
            e(f"  global_load_dword v127, v125, s[70:71]")
            e(f"  v_add_u32 v126, 4096, v126")
        lab("LA_nopf")
    TABPOS = os.environ.get("TABPOS", "abcc")
    def table_loads(pos):
        for u in range(4):
            if TABPOS[u] == pos:
                e(f"  s_mov_b32 s53, {u*16384 if 'notab' not in ABL else 1 << 20}")
                e(f"  buffer_load_dwordx4 v[{TB0+4*u}:{TB0+4*u+3}], v4, s[28:31], s53 offen{ATAB}")
    table_loads("0")
    e("  s_waitcnt lgkmcnt(0)")
    e("  s_barrier")
    stamp("A", "hist barrier")
    table_loads("a")
    if KS == 8:
        e(f"  ds_read_b64 v[{t0}:{t1}], v5 offset:{A_HIST}")
        e("  s_waitcnt lgkmcnt(0)")
        e(f"  v_add_u32 v{t2}, v{t0}, v{t1}")
    else:
        e(f"  ds_read2_b32 v[{t0}:{t1}], v126 offset0:0 offset1:1")
        e(f"  ds_read_b32 v125, v126 offset:8")
        e("  s_waitcnt lgkmcnt(0)")
        e(f"  v_add3_u32 v{t2}, v{t0}, v{t1}, v125")
    e(f"  v_mov_b32 v{t3}, v{t2}")
    wave_scan_add(t3)
    e(f"  s_lshl_b32 s58, s50, 2")
    e(f"  s_add_u32 s58, s58, {A_SCR}")
    e(f"  v_mov_b32 v{t4}, s58")
    e("  s_mov_b32 exec_lo, 0")
    e("  s_mov_b32 exec_hi, 0x80000000")
    e(f"  ds_write_b32 v{t4}, v{t3}")
    e("  s_mov_b64 exec, -1")
    e("  s_waitcnt lgkmcnt(0)")
    e("  s_barrier")
    e(f"  v_and_b32 v{t4}, 15, v0")
    e(f"  v_lshlrev_b32 v{t4}, 2, v{t4}")
    e(f"  v_add_u32 v{t4}, {A_SCR}, v{t4}")
    e(f"  ds_read_b32 v{t4}, v{t4}")
    e("  s_waitcnt lgkmcnt(0)")
    e(f"  v_mov_b32 v{t5}, v{t4}")
    for sh in (1, 2, 4, 8):
        e("  s_nop 1")
        e(f"  v_add_u32_dpp v{t5}, v{t5}, v{t5} row_shr:{sh} {DPP}")
    e(f"  v_sub_u32 v{t5}, v{t5}, v{t4}")
    e("  s_nop 0")
    e(f"  v_readlane_b32 s58, v{t5}, s50")
    e(f"  v_sub_u32 v{t3}, v{t3}, v{t2}")
    e("  s_nop 0")
    e(f"  v_add_u32 v{t2}, s58, v{t3}         ; start0")
    e(f"  v_add_u32 v{t3}, v{t2}, v{t0}       ; start1")
    if KS == 8:
        e(f"  ds_write_b64 v5, v[{t2}:{t3}] offset:{A_HIST}")
    else:
        e(f"  v_add_u32 v125, v{t3}, v{t1}          ; start2")
        e(f"  ds_write2_b32 v126, v{t2}, v{t3} offset0:0 offset1:1")
        e(f"  ds_write_b32 v126, v125 offset:8")
    e(f"  v_and_b32 v{t4}, 3, v0")
    e(f"  v_cmp_eq_u32 vcc, 0, v{t4}")
    e("  s_and_saveexec_b64 s[60:61], vcc")
    if 'd' in AOPT:
        e(f"  v_lshrrev_b32 v{t2}, 1, v{t2}")
    e(f"  buffer_store_dword v{t2}, v0, s[40:43], 0 offen{ATT}")
    e("  s_mov_b64 exec, s[60:61]")
    e("  s_waitcnt lgkmcnt(0)")
    e("  s_barrier")
    stamp("A", "scan done")
    table_loads("b")
    def put(r):
        e(f"  v_add_u32 v{O0+r}, v{O0+r}, v{RK0+r}")
        if 'd' in AOPT:
            e(f"  v_lshlrev_b32 v{RK0+r}, 1, v{O0+r}")
        else:
            e(f"  v_lshlrev_b32 v{RK0+r}, 2, v{O0+r}")
            e(f"  v_lshlrev_b32 v{O0+r}, 1, v{O0+r}")
        if "noscatA" not in ABL:
            e(f"  ds_write_b32 v{RK0+r}, v{I0+r} offset:{A_A}")
        op = "ds_write_b16" if r % 2 == 0 else "ds_write_b16_d16_hi"
        if "noscatC" not in ABL:
            e(f"  {op} v{O0+r}, v{AN0+r//2} offset:{A_C}")
    if 'm' in AOPT:
        for r in range(24):
            e(f"  ds_read_b32 v{O0+r}, v{O0+r} offset:{A_HIST}")
        e(f"  v_cmp_gt_u32 vcc, s59, v0")
        e("  s_and_saveexec_b64 s[62:63], vcc")
        e("  s_cbranch_execz LA_s24")
        e(f"  ds_read_b32 v{O0+24}, v{O0+24} offset:{A_HIST}")
        e("  s_waitcnt lgkmcnt(0)")
        put(24)
        lab("LA_s24")
        e("  s_mov_b64 exec, s[62:63]")
        e("  s_waitcnt lgkmcnt(0)")
        for r in range(24):
            put(r)
            if r == 11:
                table_loads("c")
        table_loads("d")
    else:
        groups = [range(0, 8), range(8, 16), range(16, 24), range(24, 25)]
        for g in groups:
            if g[0] == 24:
                e(f"  v_cmp_gt_u32 vcc, s59, v0")
                e("  s_and_saveexec_b64 s[62:63], vcc")
                e("  s_cbranch_execz LA_s24")
            for r in g:
                e(f"  ds_read_b32 v{O0+r}, v{O0+r} offset:{A_HIST}")
            e("  s_waitcnt lgkmcnt(0)")
            for r in g:
                put(r)
            if g[0] == 24:
                lab("LA_s24")
                e("  s_mov_b64 exec, s[62:63]")
    stamp("A", "scatter issued")
    def table_stats():
        gM, gR = 122, 123
        e(f"  v_mov_b32 v{gM}, 0")
        e(f"  v_mov_b32 v{gR}, 0")
        e("  s_mov_b32 s58, 0x7fff7fff")
        if 'n' not in AOPT:
            e("  s_waitcnt vmcnt(0)")
        for u in range(4):
            b = TB0 + 4 * u
            for k in range(4):
                e(f"  v_and_b32 v{b+k}, s58, v{b+k}")
            e(f"  v_pk_max_u16 v{b}, v{b}, v{b+1}")
            e(f"  v_pk_max_u16 v{b+2}, v{b+2}, v{b+3}")
            e(f"  v_pk_max_u16 v{b}, v{b}, v{b+2}")
            e(f"  v_lshrrev_b32 v{b+1}, 16, v{b}")
            e(f"  v_and_b32 v{b}, 0xffff, v{b}")
            e(f"  v_max_u32 v{b}, v{b}, v{b+1}")
            e("  s_nop 1")
            e(f"  v_max_u32_dpp v{b}, v{b}, v{b} quad_perm:[1,0,3,2] {DPP}")
            e(f"  v_max_u32 v{gM}, v{gM}, v{b}")
            e(f"  v_sub_u32 v{b}, 0x8000, v{b}")
            e(f"  v_and_b32 v{b}, 0x7fff, v{b}")
            e(f"  v_max_u32 v{gR}, v{gR}, v{b}")
        e(f"  v_lshrrev_b32 v{t5}, 16, v{gC}")
        e(f"  v_and_b32 v{gC}, 0xffff, v{gC}")
        e(f"  v_max_u32 v{gC}, v{gC}, v{t5}")
        e(f"  v_cmp_lt_u32 vcc, 0x3f80, v{gC}")
        e(f"  v_mov_b32 v{t5}, 0x7fff")
        e("  s_nop 0")
        e(f"  v_cndmask_b32 v{t5}, 0, v{t5}, vcc")
        e(f"  v_max_u32 v{gM}, v{gM}, v{t5}")
        wave_max([gM, gR])
        e(f"  v_mov_b32 v{t4}, {A_SCR + 64}")
        e("  s_mov_b32 exec_lo, 0")
        e("  s_mov_b32 exec_hi, 0x80000000")
        e(f"  ds_max_u32 v{t4}, v{gM}")
        e(f"  ds_max_u32 v{t4}, v{gR} offset:4")
        e("  s_mov_b64 exec, -1")
    if 'n' not in AOPT:
        table_stats()
    e("  s_waitcnt lgkmcnt(0)")
    e("  s_barrier")
    stamp("A", "scatter barrier")
    d = 8
    for u in range(6):
        e(f"  v_add_u32 v{t0}, {u*16384}, v4")
        e(f"  ds_read_b128 v[{d+4*u}:{d+4*u+3}], v{t0} offset:{A_A}")
    for u in range(3):
        e(f"  v_add_u32 v{t0}, {u*16384}, v4")
        e(f"  ds_read_b128 v[{d+24+4*u}:{d+24+4*u+3}], v{t0} offset:{A_C}")
    NX = 0 if 'n' in AOPT else 1
    if NX:
        e(f"  v_mov_b32 v{t4}, {A_SCR + 64}")
        e(f"  ds_read_b64 v[{t2}:{t3}], v{t4}")
    for u in range(6):
        e(f"  s_mov_b32 s53, {u*16384}")
        e(f"  s_waitcnt lgkmcnt({8+NX-u})")
        e(f"  buffer_store_dwordx4 v[{d+4*u}:{d+4*u+3}], v4, s[32:35], s53 offen{AST}")
    for u in range(3):
        e(f"  s_mov_b32 s53, {u*16384}")
        e(f"  s_waitcnt lgkmcnt({2+NX-u})")
        e(f"  buffer_store_dwordx4 v[{d+24+4*u}:{d+24+4*u+3}], v4, s[36:39], s53 offen{AST}")
    stamp("A", "stores issued")
    if STAMP == "A":
        e("  s_waitcnt vmcnt(0)")
    stamp("A", "stores done")
    stamp_dump("A", 14, 50)
    e(f"  s_cmp_lt_u32 s50, {-(-(CH*4 - 6*16384) // 1024)}")
    e("  s_cbranch_scc0 LA_t1")
    e(f"  v_add_u32 v{t0}, {6*16384}, v4")
    e(f"  ds_read_b128 v[60:63], v{t0} offset:{A_A}")
    e(f"  s_mov_b32 s53, {6*16384}")
    e("  s_waitcnt lgkmcnt(0)")
    e(f"  buffer_store_dwordx4 v[60:63], v4, s[32:35], s53 offen{AST}")
    lab("LA_t1")
    e(f"  s_cmp_lt_u32 s50, {-(-(CH*2 - 3*16384) // 1024)}")
    e("  s_cbranch_scc0 LA_t2")
    e(f"  v_add_u32 v{t0}, {3*16384}, v4")
    e(f"  ds_read_b128 v[64:67], v{t0} offset:{A_C}")
    e(f"  s_mov_b32 s53, {3*16384}")
    e("  s_waitcnt lgkmcnt(0)")
    e(f"  buffer_store_dwordx4 v[64:67], v4, s[36:39], s53 offen{AST}")
    lab("LA_t2")
    if 'n' in AOPT:
        e(f"  s_waitcnt vmcnt({10 if TABPOS == '0000' else 9})")
        table_stats()
        e("  s_waitcnt lgkmcnt(0)")
        e("  s_barrier")
    e("  s_cmp_eq_u32 s50, 15")
    e("  s_cbranch_scc0 LA_end")
    if 'n' in AOPT:
        e(f"  v_mov_b32 v{t4}, {A_SCR + 64}")
        e(f"  ds_read_b64 v[{t2}:{t3}], v{t4}")
    e("  s_waitcnt lgkmcnt(0)")
    e(f"  v_mov_b32 v{t0}, 0")
    e("  s_mov_b32 exec_lo, 1")
    e("  s_mov_b32 exec_hi, 0")
    e(f"  buffer_store_dwordx2 v[{t2}:{t3}], v{t0}, s[44:47], 0 offen{ATT}")
    lab("LA_end")
    e("  s_endpgm")

def kernel_b():
    vH8, vIA, vIB, vCB, vOne = 1, 2, 4, 6, 7
    G0 = 8
    OA, CH_ = 40, 44
    P0 = 48
    t0, t1, t2, t3, t4, t5, t6, t7, t8 = range(56, 65)
    BS, LN = 65, 69
    XZ = 65
    CU = 73
    vL16 = 77
    WDS = 78
    RCP, RA0 = 80, 96
    def RA(s, j): return RA0 + 4 * j + s
    def RCp(s, j): return RCP + 4 * (j // 2) + s
    RBF, CEN, MR = 96, 70, 110
    WTR = [80, 110, 81, 111, 82, 112, 83, 113, 86, 114, 84, 115]
    IE, RCE = 73, 88
    WD, WU, WS, WR = 80, 82, 84, 86
    sW, sMag, sSc, sInv, sMode, sMsk, sN80, sTail, sPerm = 50, 53, 54, 55, 56, 57, 58, 59, 60
    sTail2 = 61
    sOv = 66
    vm = VmQ()
    e(f".globl {KB}")
    e(".p2align 8")
    e(f".type {KB},@function")
    lab(KB)
    e(f"  s_cmp_ge_u32 s2, {NB}")
    e("  s_cbranch_scc1 LB_end")
    if XMAP:
        e("  s_and_b32 s3, s2, 7")
        e("  s_lshr_b32 s2, s2, 3")
        e(f"  s_mul_i32 s4, s3, {NB//8}")
        if NB % 8:
            e(f"  s_min_u32 s3, s3, {NB%8}")
            e("  s_add_u32 s2, s2, s3")
        e("  s_add_u32 s2, s2, s4")
    e("  s_load_dwordx2 s[78:79], s[0:1], 104    ; ws")
    e("  s_load_dwordx2 s[68:69], s[0:1], 0      ; m")
    e("  s_load_dwordx2 s[70:71], s[0:1], 24     ; dist")
    e("  s_load_dwordx2 s[40:41], s[0:1], 40     ; centers")
    e("  s_load_dwordx4 s[44:47], s[0:1], 56")
    e("  s_load_dwordx4 s[72:75], s[0:1], 72")
    e("  s_load_dwordx2 s[76:77], s[0:1], 88     ; out")
    e("  v_lshrrev_b32 v8, 6, v0")
    e(f"  v_and_b32 v{vL16}, 15, v0")
    e(f"  v_readfirstlane_b32 s{sW}, v8")
    e(f"  v_and_b32 v9, 1, v0")
    e(f"  v_lshlrev_b32 v{vH8}, 3, v9")
    e(f"  v_lshlrev_b32 v{vIA+1}, 4, v9")
    e(f"  v_lshlrev_b32 v{vIB+1}, 4, v9")
    e(f"  v_mov_b32 v{vCB}, {2047*ROWB}")
    e(f"  v_mov_b32 v{vOne}, 1")
    e(f"  s_mul_i32 s80, s2, {BINE*32}")
    e(f"  s_mul_i32 s81, s2, {BINE*2}")
    e(f"  s_mov_b32 s{sMode}, 0")
    e(f"  s_mov_b32 s{sMsk}, 0x7ffff")
    e(f"  s_mov_b32 s{sN80}, {-ROWB}")
    e(f"  s_mov_b32 s{sPerm}, 0x05040100")
    e("  s_waitcnt lgkmcnt(0)")
    e(f"  s_add_u32 s82, s78, {WS_TT}")
    e("  s_addc_u32 s83, s79, 0")
    srd(16, 82, 83, NCH * 1024)
    e(f"  s_add_u32 s82, s78, {WS_STATS}")
    e("  s_addc_u32 s83, s79, 0")
    srd(20, 82, 83, NCH * 8)
    e(f"  s_add_u32 s82, s78, {WS_RECA - 4}")
    e("  s_addc_u32 s83, s79, 0")
    srd(4, 82, 83, TP + 1, 4)
    e(f"  s_add_u32 s82, s78, {WS_RECC - 2}")
    e("  s_addc_u32 s83, s79, 0")
    srd(8, 82, 83, TP + 1, 2)
    srd(12, 68, 69, E, 32)
    srd_off(24, 68, 69, 80, BINE * 32)
    srd_off(28, 76, 77, 80, BINE * 32)
    srd_off(32, 70, 71, 81, BINE * 2)
    e(f"  s_sub_u32 s82, {E*32}, s80")
    e(f"  s_min_u32 s26, s82, {BINE*32}")
    e("  s_mov_b32 s30, s26")
    e("  s_lshr_b32 s34, s26, 4")
    lab("LB_start")
    BPRIO = int(os.environ.get("BPRIO", "1"))
    if BPRIO:
        e("  s_setprio 3")
    stamp("B", "start")
    ST0 = 48
    def run_table_loads():
        g = t0
        e(f"  v_and_b32 v{t1}, 63, v0")
        e(f"  v_lshrrev_b32 v{g}, 4, v{t1}            ; g = lane>>4")
        e(f"  s_lshl_b32 s80, s{sW}, 4")
        e(f"  v_add_u32 v{t1}, s80, v{g}              ; 16w+g")
        e(f"  s_lshl_b32 s81, s2, 2")
        e(f"  v_lshlrev_b32 v{t2}, 10, v{t1}")
        e(f"  v_add_u32 v{t2}, s81, v{t2}")
        for s in range(4):
            e(f"  v_add_u32 v{t3}, {s*4096}, v{t2}")
            e(f"  buffer_load_dwordx2 v[{G0+2*s}:{G0+2*s+1}], v{t3}, s[16:19], 0 offen")
            vm.issue("T")
    rp_n = [0]
    def run_params():
        rp_n[0] += 1
        e(f"  s_mov_b32 s80, {CH}")
        for s in range(4):
            e(f"  v_add_u32 v{t3}, {4*s}, v{t1}")
            e(f"  v_mad_u32_u24 v{t3}, v{t3}, s80, 1")
            e(f"  v_add_u32 v{BS+s}, v{t3}, v{G0+2*s}")
            if NB == 256:
                e(f"  s_cmp_eq_u32 s2, {NB-1}")
                e(f"  s_cbranch_scc0 LB_rp{rp_n[0]}_{s}")
                e(f"  v_add_u32 v{t4}, {4*s}, v{t1}")
                e(f"  v_cmp_gt_u32 vcc, {NBIG}, v{t4}")
                e(f"  v_mov_b32 v{t4}, {CH}")
                e(f"  v_mov_b32 v{G0+2*s+1}, {CH-64}")
                e(f"  v_cndmask_b32 v{G0+2*s+1}, v{G0+2*s+1}, v{t4}, vcc")
                lab(f"LB_rp{rp_n[0]}_{s}")
            e(f"  v_sub_u32 v{LN+s}, v{G0+2*s+1}, v{G0+2*s}")
    run_table_loads()
    STPOS = int(os.environ.get("STPOS", "0"))
    def stats_loads():
        e(f"  v_and_b32 v{t3}, 63, v0")
        e(f"  v_lshlrev_b32 v{t3}, 3, v{t3}")
        for s in range(4):
            e(f"  buffer_load_dwordx2 v[{ST0+2*s}:{ST0+2*s+1}], v{t3}, s[20:23], 0 offen offset:{s*512}")
            vm.issue("ST")
    if STPOS == 0:
        stats_loads()
    if "B" in TOUCH:
        e(f"  v_mov_b32 v{t3}, 0")
        for r in (28,):
            e(f"  buffer_load_dword v79, v{t3}, s[{r}:{r+3}], 0 offen")
            vm.issue("touch")
    ZR = 40
    for k in range(4):
        e(f"  v_mov_b32 v{ZR+k}, 0")
    e(f"  v_lshlrev_b32 v{t3}, 4, v0")
    for u in range(8):
        if u == 4:
            e(f"  v_add_u32 v{t3}, 0x10000, v{t3}")
        e(f"  ds_write_b128 v{t3}, v[{ZR}:{ZR+3}] offset:{(u%4)*16384}")
    vm.wait("T")
    stamp("B", "T arrived")
    run_params()
    e(f"  v_max_u32 v{t3}, v{LN}, v{LN+1}")
    e(f"  v_max3_u32 v{t3}, v{t3}, v{LN+2}, v{LN+3}")
    e(f"  v_cmp_lt_u32 vcc, 0x80, v{t3}")
    e(f"  s_cmp_lg_u64 vcc, 0")
    e(f"  s_cselect_b32 s{sTail}, 1, 0")
    if FASTTAIL:
        e(f"  v_cmp_lt_u32 vcc, 0x90, v{t3}")
        e(f"  s_cmp_lg_u64 vcc, 0")
        e(f"  s_cselect_b32 s{sTail2}, 1, 0")
    def LZ(s, j): return RCp(s, j) if j % 2 == 0 else G0 + 8 + 4 * (j // 2) + s
    if EARLYBAR:
        e("  s_waitcnt lgkmcnt(0)")
        e("  s_barrier")
    for s in range(4):
        lp, lo, hi = t2, t4, t6
        e(f"  v_min_u32 v{lp}, 0x80, v{LN+s}          ; len'")
        e(f"  v_mov_b32 v{lo}, v{vL16}")
        e(f"  v_lshlrev_b32 v{lp}, 16, v{lp}")
        def msk(j):
            return f"s[{84+2*j}:{85+2*j}]" if (BURST and not STAMP) else "vcc"
        def lds(j):
            e(f"  s_mov_b64 exec, {msk(j)}")
            e(f"  buffer_load_ushort v{LZ(s,j)}, v{RA(s,j)}, s[8:11], 0 idxen{BREC}")
            vm.issue(f"C{s}_{j}")
            e(f"  buffer_load_dword v{RA(s,j)}, v{RA(s,j)}, s[4:7], 0 idxen{BREC}")
            vm.issue(f"A{s}_{j}")
        for j in range(8):
            e(f"  v_mul_hi_u32_u24 v{hi}, {(j+1) << 13:#x}, v{lp}     ; ((j+1)*len') >> 3")
            e(f"  v_cmp_lt_u32 {msk(j)}, v{lo}, v{hi}")
            e(f"  v_add_u32 v{t7}, v{BS+s}, v{lo}")
            e(f"  v_add_u32 v{lo}, v{hi}, v{vL16}")
            e(f"  v_cndmask_b32 v{RA(s,j)}, 0, v{t7}, {msk(j)}")
            if not (BURST and not STAMP):
                lds(j)
                e("  s_mov_b64 exec, -1")
        if BURST and not STAMP:
            for j in range(8):
                lds(j)
            e("  s_mov_b64 exec, -1")
        if FASTTAIL:
            if s == 0:
                e(f"  v_add_u32 v{t8}, 0x80, v{vL16}")
            e(f"  v_cmp_lt_u32 vcc, v{t8}, v{LN+s}")
            e(f"  v_add_u32 v{t7}, v{BS+s}, v{t8}")
            e("  s_nop 0")
            e(f"  v_cndmask_b32 v{IE+s}, 0, v{t7}, vcc")
        if STPOS == s + 1:
            stats_loads()
        if s == 2:
            vm.wait("A0_7")
    vm.wait("ST")
    if BPRIO:
        e("  s_setprio 0")
    stamp("B", "rec loads issued")
    a, b = ST0, ST0 + 1
    e(f"  v_max3_u32 v{a}, v{ST0}, v{ST0+2}, v{ST0+4}")
    e(f"  v_max3_u32 v{b}, v{ST0+1}, v{ST0+3}, v{ST0+5}")
    e(f"  v_max_u32 v{a}, v{a}, v{ST0+6}")
    e(f"  v_max_u32 v{b}, v{b}, v{ST0+7}")
    wave_max([a, b])
    e("  s_nop 0")
    e(f"  v_readlane_b32 s80, v{a}, 63")
    e(f"  v_readlane_b32 s81, v{b}, 63")
    e("  s_nop 0")
    e("  s_lshr_b32 s82, s80, 7")
    e("  s_sub_u32 s81, 0x8000, s81")
    e("  s_lshr_b32 s81, s81, 7")
    e("  s_sub_u32 s83, s82, s81")
    e(f"  s_cmp_eq_u32 s{sMode}, 2")
    e("  s_cbranch_scc1 LB_float")
    e("  s_cmp_ge_u32 s80, 0x7f80")
    e("  s_cbranch_scc1 LB_float")
    e("  s_cmp_lt_u32 s82, 32")
    e("  s_cbranch_scc1 LB_float")
    e("  s_cmp_gt_u32 s82, 200")
    e("  s_cbranch_scc1 LB_float")
    e("  s_cmp_gt_i32 s83, 10")
    e("  s_cbranch_scc1 LB_float")
    e(f"  s_mov_b32 s{sMag}, 0x4b400000")
    e("  s_sub_u32 s83, 275, s82")
    e(f"  s_lshl_b32 s{sSc}, s83, 23")
    e("  s_sub_u32 s83, s82, 21")
    e(f"  s_lshl_b32 s{sInv}, s83, 23")
    e("  s_branch LB_fast")
    lab("LB_float")
    e(f"  s_mov_b32 s{sMode}, 2")
    e(f"  s_mov_b32 s{sMag}, 0")
    e(f"  s_mov_b32 s{sSc}, 1.0")
    e(f"  s_mov_b32 s{sInv}, 1.0")
    e(f"  s_mov_b32 s{sTail}, 1")
    e("  s_waitcnt vmcnt(0) lgkmcnt(0)")
    e("  s_barrier")
    e("  s_branch LB_generic")
    lab("LB_fast")
    for s in range(4):
        for jj in range(4):
            vm.wait(f"C{s}_{2*jj+1}")
            e(f"  v_perm_b32 v{RCp(s,2*jj)}, v{LZ(s,2*jj+1)}, v{RCp(s,2*jj)}, s{sPerm}")
    vm.drain()
    stamp("B", "records arrived")

    def dec_idx(ra, dst):
        e(f"  v_bfi_b32 v{dst}, v{ra}, 0, s{sMsk}")
    def dec_rest(ra, rc, hi_half, s):
        e(f"  v_bfe_u32 v{t7}, v{ra}, 19, 11")
        if hi_half:
            e(f"  v_and_b32 v{t8}, 0xffff0000, v{rc}")
        else:
            e(f"  v_lshlrev_b32 v{t8}, 16, v{rc}")
        e(f"  v_mad_i32_i24 v{OA+s}, v{t7}, s{sN80}, v{vCB}")
        e(f"  v_mul_f32 v{CH_+s}, s{sSc}, v{t8}")
        e(f"  ds_add_u32 v{OA+s}, v{vOne} offset:64")
    def gather(s, h, src, tag):
        g0 = G0 + 8 * s + 4 * h
        vi = vIA if h == 0 else vIB
        qp = "[0,0,2,2]" if h == 0 else "[1,1,3,3]"
        e(f"  v_mov_b32_dpp v{vi}, v{src} quad_perm:{qp} {DPP}")
        if "nogather" in ABL:
            e(f"  v_mov_b32 v{vi}, -1")
        e(f"  buffer_load_dwordx4 v[{g0}:{g0+3}], v[{vi}:{vi+1}], s[12:15], 0 idxen offen")
        vm.issue(tag)
    def consume(s, h, isfloat):
        qp = "[0,0,2,2]" if h == 0 else "[1,1,3,3]"
        g0 = G0 + 8 * s + 4 * h
        ad, ch, cl = t0 + 3 * h, t1 + 3 * h, t2 + 3 * h
        e(f"  v_mov_b32_dpp v{ch}, v{CH_+s} quad_perm:{qp} {DPP}")
        e(f"  v_add_u32_dpp v{ad}, v{OA+s}, v{vH8} quad_perm:{qp} {DPP}")
        e(f"  v_lshrrev_b32 v{cl}, 16, v{ch}")
        for k in range(4):
            e(f"  v_dot2_f32_bf16 v{P0+2*k+1}, v{g0+k}, v{ch}, s{sMag}")
            e(f"  v_dot2_f32_bf16 v{P0+2*k}, v{g0+k}, v{cl}, s{sMag}")
            if "noatom" in ABL:
                continue
            if isfloat:
                e(f"  ds_add_f32 v{ad}, v{P0+2*k} offset:{16*k}")
                e(f"  ds_add_f32 v{ad}, v{P0+2*k+1} offset:{16*k+4}")
            else:
                e(f"  ds_add_u64 v{ad}, v[{P0+2*k}:{P0+2*k+1}] offset:{16*k}")
    if not EARLYBAR:
        e("  s_waitcnt lgkmcnt(0)")
        e("  s_barrier")
    stamp("B", "after barrier")
    tI = t6
    for s in range(4):
        dec_idx(RA(s, 0), tI)
        dec_rest(RA(s, 0), RCp(s, 0), False, s)
        gather(s, 0, tI, f"g0_{s}_0")
        gather(s, 1, tI, f"g0_{s}_1")

    def epi_loads1():
        gg, nn = t7, vL16
        e(f"  v_and_b32 v{t8}, 63, v0")
        e(f"  v_lshrrev_b32 v{gg}, 4, v{t8}")
        e(f"  v_lshlrev_b32 v{t8}, 6, v{gg}")
        e(f"  v_lshl_add_u32 v{t8}, v{nn}, 1, v{t8}     ; 64g + 2n")
        for k, off in enumerate((0, 32, 256, 288)):
            e(f"  global_load_ushort v{WTR[k]}, v{t8}, s[72:73] offset:{off}"); vm.issue("E1")
        for k in range(2):
            e(f"  global_load_ushort v{WTR[8+k]}, v{t8}, s[44:45] offset:{32*k}"); vm.issue("E1")
            e(f"  global_load_ushort v{WTR[10+k]}, v{t8}, s[46:47] offset:{32*k}"); vm.issue("E1")
        e(f"  v_lshlrev_b32 v{t8}, 7, v{gg}")
        e(f"  v_lshl_add_u32 v{t8}, v{nn}, 1, v{t8}     ; 128g + 2n")
        for k in range(4):
            e(f"  global_load_ushort v{WTR[4+k]}, v{t8}, s[74:75] offset:{32*k}"); vm.issue("E1")
        e(f"  v_lshlrev_b32 v{t8}, 2, v{gg}")
        e(f"  global_load_dword v{CEN}, v{t8}, s[40:41]"); vm.issue("E1")
        e(f"  s_lshl_b32 s80, s{sW}, 5")
        e(f"  v_lshl_add_u32 v{t8}, v{nn}, 1, s80")
        for u in range(7):
            e(f"  buffer_load_ushort v{RBF+2*u}, v{t8}, s[32:35], 0 offen offset:{u*512}"); vm.issue("E1")
            e(f"  v_mov_b32 v{RBF+2*u+1}, 0")
    def epi_loads2():
        gg, nn = t7, vL16
        e(f"  v_and_b32 v{t8}, 63, v0")
        e(f"  v_lshrrev_b32 v{gg}, 4, v{t8}")
        e(f"  s_lshl_b32 s80, s{sW}, 9")
        e(f"  v_lshlrev_b32 v{t8}, 5, v{nn}")
        e(f"  v_lshl_add_u32 v{t8}, v{gg}, 3, v{t8}")
        e(f"  v_add_u32 v{t8}, s80, v{t8}")
        for u in range(7):
            e(f"  s_mov_b32 s81, {u*8192}")
            e(f"  buffer_load_dwordx2 v[{MR+2*u}:{MR+2*u+1}], v{t8}, s[24:27], s81 offen{BM}"); vm.issue("E2")
    def epi_prep_w():
        e(f"  v_lshl_or_b32 v{WD}, v{WTR[1]}, 16, v{WTR[0]}")
        e(f"  v_lshl_or_b32 v{WD+1}, v{WTR[3]}, 16, v{WTR[2]}")
        e(f"  v_lshl_or_b32 v{WU}, v{WTR[5]}, 16, v{WTR[4]}")
        e(f"  v_lshl_or_b32 v{WU+1}, v{WTR[7]}, 16, v{WTR[6]}")
        e(f"  v_lshl_or_b32 v{WR}, v{WTR[9]}, 16, v{WTR[8]}")
        e(f"  v_lshl_or_b32 v{WS}, v{WTR[11]}, 16, v{WTR[10]}")
        e(f"  v_mov_b32 v{WR+1}, 0")
        e(f"  v_mov_b32 v{WS+1}, 0")
        c0, c1, x, y, p = XZ, XZ + 1, XZ + 2, XZ + 3, XZ + 4
        for k in range(2):
            e(f"  v_lshlrev_b32 v{x}, 16, v{WD+k}")
            e(f"  v_and_b32 v{y}, 0xffff0000, v{WD+k}")
            e(f"  v_mul_f32 v{x}, s{sInv}, v{x}")
            e(f"  v_mul_f32 v{y}, s{sInv}, v{y}")
            e(f"  v_cvt_pk_bf16_f32 v{WDS+k}, v{x}, v{y}")
        e(f"  v_lshlrev_b32 v{c0}, 16, v{CEN}")
        e(f"  v_and_b32 v{c1}, 0xffff0000, v{CEN}")
    def epi_prep_rbf(u):
        c0, c1, x, y, p = XZ, XZ + 1, XZ + 2, XZ + 3, XZ + 4
        r = RBF + 2 * u
        e("  s_mov_b32 s80, 0xc1200000           ; -10.0")
        e("  s_mov_b32 s81, 0x3fb8aa3b           ; log2(e)")
        e(f"  v_lshlrev_b32 v{r}, 16, v{r}")
        e(f"  v_sub_f32 v{x}, v{r}, v{c0}")
        e(f"  v_sub_f32 v{y}, v{r}, v{c1}")
        for op in ("sq", "m10", "exp"):
            e(f"  v_cvt_pk_bf16_f32 v{p}, v{x}, v{y}")
            e(f"  v_lshlrev_b32 v{x}, 16, v{p}")
            e(f"  v_and_b32 v{y}, 0xffff0000, v{p}")
            if op == "sq":
                e(f"  v_mul_f32 v{x}, v{x}, v{x}")
                e(f"  v_mul_f32 v{y}, v{y}, v{y}")
            elif op == "m10":
                e(f"  v_mul_f32 v{x}, s80, v{x}")
                e(f"  v_mul_f32 v{y}, s80, v{y}")
            else:
                e(f"  v_mul_f32 v{x}, s81, v{x}")
                e(f"  v_mul_f32 v{y}, s81, v{y}")
                e(f"  v_exp_f32 v{x}, v{x}")
                e(f"  v_exp_f32 v{y}, v{y}")
                e("  s_nop 0")
        e(f"  v_cvt_pk_bf16_f32 v{r}, v{x}, v{y}")
    def epi_prep():
        epi_prep_w()
        for u in range(7):
            epi_prep_rbf(u)

    LASTBAR = int(os.environ.get("LASTBAR", "6"))
    FIRSTBAR = int(os.environ.get("FIRSTBAR", "0"))
    for j in range(8):
        BARPOS = int(os.environ.get("BARPOS", "0"))
        dobar = "nobar" not in ABL and FIRSTBAR <= j <= LASTBAR and str(j) in os.environ.get("BARSET", "01234567")
        if dobar and BARPOS == 0:
            e("  s_barrier")
        if j in (0, 1, 2, 4, 6, 7):
            stamp("B", f"phase {j} begin")
        for s in range(4):
            last = (j == 7)
            if s and s % BARN == 0 and not last:
                e("  s_barrier")
            if not last:
                dec_idx(RA(s, j + 1), tI)
            vm.wait(f"g{j}_{s}_0")
            consume(s, 0, False)
            if not last:
                gather(s, 0, tI, f"g{j+1}_{s}_0")
            if dobar and BARPOS == 1 and s == 0:
                e("  s_barrier")
            vm.wait(f"g{j}_{s}_1")
            consume(s, 1, False)
            if not last:
                gather(s, 1, tI, f"g{j+1}_{s}_1")
                if dobar and BARPOS == 2 and s == 0:
                    e("  s_barrier")
                dec_rest(RA(s, j + 1), RCp(s, j + 1), (j + 1) % 2 == 1, s)
            step = 4 * j + s
            if FASTTAIL and 21 <= step <= 24:
                q = step - 21
                e(f"  v_cmp_ne_u32 vcc, 0, v{IE+q}")
                e("  s_mov_b64 exec, vcc")
                e(f"  buffer_load_ushort v{RCE+q}, v{IE+q}, s[8:11], 0 idxen{BREC}")
                vm.issue(f"XC{q}")
                e(f"  buffer_load_dword v{IE+q}, v{IE+q}, s[4:7], 0 idxen{BREC}")
                vm.issue(f"XA{q}")
                e("  s_mov_b64 exec, -1")
            if step == 15:
                epi_loads1()
            if SPREAD:
                if step == 19:
                    vm.wait("E1")
                    epi_prep_w()
                if 20 <= step <= 26:
                    epi_prep_rbf(step - 20)
                if step == 27:
                    epi_loads2()
            else:
                if step == 20:
                    vm.wait("E1")
                    epi_prep()
                if step == 23:
                    epi_loads2()
    stamp("B", "main done")
    e(f"  s_cmp_eq_u32 s{sTail}, 0")
    e("  s_cbranch_scc1 LB_epi")
    if "notail" in ABL:
        e("  s_branch LB_epi")
    if FASTTAIL:
        q_keep = list(vm.q)
        e("  s_waitcnt vmcnt(0)")
        for s in range(4):
            dec_idx(IE + s, tI)
            dec_rest(IE + s, RCE + s, False, s)
            gather(s, 0, tI, "x")
            gather(s, 1, tI, "x")
        e("  s_waitcnt vmcnt(0)")
        for s in range(4):
            consume(s, 0, False)
            consume(s, 1, False)
        vm.q = q_keep
        e(f"  s_cmp_eq_u32 s{sTail2}, 0")
        e("  s_cbranch_scc1 LB_epi")
    lab("LB_generic")
    q_main = list(vm.q)
    e("  s_waitcnt vmcnt(0)")
    run_table_loads()
    e("  s_waitcnt vmcnt(0)")
    run_params()
    for s in range(4):
        e(f"  v_min_u32 v{CU+s}, {0x90 if FASTTAIL else 0x80:#x}, v{LN+s}")
        e(f"  s_cmp_eq_u32 s{sMode}, 2")
        e(f"  s_cbranch_scc0 LB_gen{s}_c")
        e(f"  v_mov_b32 v{CU+s}, 0")
        lab(f"LB_gen{s}_c")
    for s in range(4):
        lab(f"LB_gen{s}")
        e(f"  v_add_u32 v{t0}, v{CU+s}, v{vL16}")
        e(f"  v_cmp_lt_u32 vcc, v{t0}, v{LN+s}")
        e(f"  s_cbranch_vccz LB_gen{s}_done")
        e(f"  v_add_u32 v{t0}, v{BS+s}, v{t0}")
        e(f"  v_add_u32 v{CU+s}, 16, v{CU+s}")
        e(f"  v_cndmask_b32 v{t0}, -1, v{t0}, vcc")
        e(f"  buffer_load_dword v{G0+8}, v{t0}, s[4:7], 0 idxen")
        e(f"  buffer_load_ushort v{G0+9}, v{t0}, s[8:11], 0 idxen")
        e("  s_waitcnt vmcnt(0)")
        dec_idx(G0 + 8, tI)
        dec_rest(G0 + 8, G0 + 9, False, 0)
        gather(0, 0, tI, "x")
        gather(0, 1, tI, "x")
        e("  s_waitcnt vmcnt(0)")
        e(f"  s_cmp_eq_u32 s{sMode}, 2")
        e(f"  s_cbranch_scc1 LB_gen{s}_f")
        consume(0, 0, False)
        consume(0, 1, False)
        e(f"  s_branch LB_gen{s}")
        lab(f"LB_gen{s}_f")
        consume(0, 0, True)
        consume(0, 1, True)
        e(f"  s_branch LB_gen{s}")
        lab(f"LB_gen{s}_done")
    e(f"  s_cmp_eq_u32 s{sMode}, 2")
    e("  s_cbranch_scc0 LB_epi")
    epi_loads1()
    e("  s_waitcnt vmcnt(0)")
    epi_prep()
    epi_loads2()
    lab("LB_epi")
    vm.q = []
    e("  s_waitcnt lgkmcnt(0)")
    e("  s_barrier")
    stamp("B", "final barrier")
    g = t0
    e(f"  v_and_b32 v{t1}, 63, v0")
    e(f"  v_lshrrev_b32 v{g}, 4, v{t1}")
    e(f"  s_lshl_b32 s80, s{sW}, 4")
    e(f"  v_add_u32 v{t1}, s80, v{vL16}")
    e(f"  v_mul_u32_u24 v{t1}, {ROWB}, v{t1}")
    e(f"  v_lshl_add_u32 v{t2}, v{g}, 4, v{t1}")
    e(f"  v_add_u32 v{t3}, {4*256*ROWB}, v{t1}")
    e(f"  v_add_u32 v{t4}, {4*256*ROWB}, v{t2}")
    A_ = lambda u: 8 + 12 * (u % 4)
    G_ = lambda u: 8 + 12 * (u % 4) + 4
    R_ = lambda u: 8 + 12 * (u % 4) + 8
    PKS = (66, 68)
    X0, vMx = 70, 71
    NTILE = -(-BINE // 16)
    W6 = NTILE - 96
    def tile_reads(u):
        ra, rc = (t2, t1) if u < 4 else (t4, t3)
        e(f"  ds_read_b128 v[{A_(u)}:{A_(u)+3}], v{ra} offset:{(u%4)*256*ROWB}")
        e(f"  ds_read_b32 v{G_(u)}, v{rc} offset:{(u%4)*256*ROWB+64}")
    def tile_stage1(u):
        a, gg, rr = A_(u), G_(u), R_(u)
        PK = PKS[u % 2]
        e(f"  v_max_u32 v{vMx}, v{vMx}, v{gg}")
        e(f"  s_cbranch_scc1 LB_e{u}_f")
        e(f"  v_mul_u32_u24 v{gg}, 0x12d, v{gg}")
        e(f"  v_lshlrev_b32 v{gg+1}, 22, v{gg}")
        for k in (0, 2):
            e(f"  v_sub_u32 v{a+k}, v{a+k}, v{gg+1}")
            e(f"  v_sub_u32 v{a+k+1}, v{a+k+1}, v{gg+1}")
            e(f"  v_ashrrev_i32 v{gg+2}, 22, v{a+k}")
            e(f"  v_add_u32 v{gg+2}, v{gg+2}, v{gg}")
            e(f"  v_ashrrev_i32 v{gg+2}, 10, v{gg+2}")
            e(f"  v_sub_u32 v{a+k+1}, v{a+k+1}, v{gg+2}")
        for k in range(4):
            e(f"  v_cvt_f32_i32 v{a+k}, v{a+k}")
        lab(f"LB_e{u}_f")
        e(f"  v_cvt_pk_bf16_f32 v{PK}, v{a}, v{a+1}")
        e(f"  v_cvt_pk_bf16_f32 v{PK+1}, v{a+2}, v{a+3}")
        e(f"  v_mfma_f32_16x16x16_bf16 v[{gg}:{gg+3}], v[{WS}:{WS+1}], v[{RBF+2*u}:{RBF+2*u+1}], 0")
        e(f"  v_mfma_f32_16x16x16_bf16 v[{rr}:{rr+3}], v[{WR}:{WR+1}], v[{RBF+2*u}:{RBF+2*u+1}], 0")
        e(f"  v_mfma_f32_16x16x16_bf16 v[{a}:{a+3}], v[{WDS}:{WDS+1}], v[{PK}:{PK+1}], 0")
    def tile_stage2(u):
        a, gg = A_(u), G_(u)
        PK = PKS[u % 2]
        for k in range(4):
            e(f"  v_mul_f32 v{a+k}, v{a+k}, v{gg+k}")
        e(f"  v_cvt_pk_bf16_f32 v{PK}, v{a}, v{a+1}")
        e(f"  v_cvt_pk_bf16_f32 v{PK+1}, v{a+2}, v{a+3}")
        e("  s_nop 1")
        e(f"  v_mfma_f32_16x16x16_bf16 v[{gg}:{gg+3}], v[{WU}:{WU+1}], v[{PK}:{PK+1}], 0")
    def tile_stage3(u):
        a, gg, rr = A_(u), G_(u), R_(u)
        m0, m1 = MR + 2 * u, MR + 2 * u + 1
        e(f"  v_lshlrev_b32 v{a}, 16, v{m0}")
        e(f"  v_and_b32 v{a+1}, 0xffff0000, v{m0}")
        e(f"  v_lshlrev_b32 v{a+2}, 16, v{m1}")
        e(f"  v_and_b32 v{a+3}, 0xffff0000, v{m1}")
        for k in range(4):
            e(f"  v_fmac_f32 v{a+k}, v{gg+k}, v{rr+k}")
        e(f"  v_cvt_pk_bf16_f32 v{m0}, v{a}, v{a+1}")
        e(f"  v_cvt_pk_bf16_f32 v{m1}, v{a+2}, v{a+3}")
        e(f"  s_mov_b32 s81, {u*8192}")
        e(f"  buffer_store_dwordx2 v[{m0}:{m1}], v{t6}, s[28:31], s81 offen{BOUT}")
    def guarded(u, fn, tag):
        if u == 6:
            e(f"  s_cmp_ge_u32 s{sW}, {W6}")
            e(f"  s_cbranch_scc1 LB_skip6{tag}")
            if tag == "b":
                e(f"  s_cmp_eq_u32 s{sMode}, 2")
        fn(u)
        if u == 6:
            lab(f"LB_skip6{tag}")
    for u in (0, 1, 2, 3):
        tile_reads(u)
    e(f"  s_lshl_b32 s80, s{sW}, 9")
    e(f"  v_lshlrev_b32 v{t6}, 5, v{vL16}")
    e(f"  v_lshl_add_u32 v{t6}, v{g}, 3, v{t6}")
    e(f"  v_add_u32 v{t6}, s80, v{t6}")
    e(f"  v_mov_b32 v{vMx}, 0")
    for gi, grp in enumerate(((0, 1, 2, 3), (4, 5, 6))):
        if gi:
            for u in grp:
                guarded(u, tile_reads, "a")
        e("  s_waitcnt lgkmcnt(0)")
        e(f"  s_cmp_eq_u32 s{sMode}, 2")
        for u in grp:
            guarded(u, tile_stage1, "b")
        e("  s_nop 7")
        for u in grp:
            guarded(u, tile_stage2, "c")
        if gi == 0:
            e("  s_waitcnt vmcnt(0)              ; m rows")
        e("  s_nop 7")
        for u in grp:
            guarded(u, tile_stage3, "d")
    e(f"  v_cmp_lt_u32 s[{sOv}:{sOv+1}], 0x1ff, v{vMx}" if False else f"  v_cmp_lt_u32 vcc, 0x1ff, v{vMx}")
    e(f"  s_mov_b64 s[{sOv}:{sOv+1}], vcc")
    stamp("B", "epilogue done")
    stamp_dump("B", 78, sW)
    e(f"  s_cmp_eq_u32 s{sMode}, 2")
    e("  s_cbranch_scc1 LB_end")
    e(f"  s_cmp_eq_u64 s[{sOv}:{sOv+1}], 0")
    e("  s_cbranch_scc1 LB_noov")
    e(f"  v_mov_b32 v{t3}, {B_FLAG}")
    e(f"  ds_write_b32 v{t3}, v{vOne}")
    lab("LB_noov")
    e("  s_waitcnt lgkmcnt(0)")
    e("  s_barrier")
    e(f"  v_mov_b32 v{t3}, {B_FLAG}")
    e(f"  ds_read_b32 v{t3}, v{t3}")
    e("  s_waitcnt lgkmcnt(0)")
    e(f"  v_readfirstlane_b32 s80, v{t3}")
    e("  s_cmp_eq_u32 s80, 0")
    e("  s_cbranch_scc1 LB_end")
    e("  s_waitcnt vmcnt(0)")
    e("  s_barrier")
    e(f"  s_mov_b32 s{sMode}, 2")
    e("  s_branch LB_start")
    lab("LB_end")
    e("  s_endpgm")

def descriptor(name, vgpr, sgpr):
    e(".p2align 6")
    e(f".amdhsa_kernel {name}")
    e(f"  .amdhsa_next_free_vgpr {vgpr}")
    e(f"  .amdhsa_next_free_sgpr {sgpr}")
    e(f"  .amdhsa_accum_offset {vgpr}")
    e("  .amdhsa_group_segment_fixed_size 0")
    e("  .amdhsa_kernarg_size 112")
    e("  .amdhsa_user_sgpr_count 2")
    e("  .amdhsa_user_sgpr_kernarg_segment_ptr 1")
    e("  .amdhsa_system_sgpr_workgroup_id_x 1")
    e("  .amdhsa_float_denorm_mode_32 3")
    e(".end_amdhsa_kernel")

header = open("standalone__molecular_angular_gemnet__graph.s.ref").read().split("; Override launch")[0]
e(header.rstrip())
for _l in """
; Algorithm (L = 1, so sbf @ w_sbf = cos(f*angle[t]) * (rbf[o] @ w_sbf) and the per-triplet layer factors out of the sum):
;   S[o]   = sum over triplets t with idx_out[t] = o of cos(f*angle[t]) * m[idx_in[t]]
;   out[o] = m[o] + (((S[o] @ w_down) * (rbf[o] @ w_sbf)) @ w_up) * (rbf[o] @ w_rbf)
; Launch 1 (part): each workgroup counting-sorts one chunk of ~25000 triplets in LDS by (output bin, source range) and
;   writes 6-byte records (source row, local output row, bf16 cosine) plus a table of run starts to d_ws.  It also
;   reads its slice of m (into the last-level cache) and reports max |m| and the smallest non-zero row maximum.
; Launch 2 (main): one workgroup per bin of 1564 output edges.  Every wave keeps the records of its 16 runs in
;   registers and walks them in 8 phases of ascending source rows (all workgroups sweep m together, so the gathers
;   hit L2), accumulates cos * m in LDS and finishes with the edge-level layers on the matrix cores.
;   Accumulation: products of two bf16 values are exact in f32; they are rounded to a 22-bit fixed-point grid scaled to
;   max |m| and added with 64-bit integer LDS atomics (two features each; LDS f32 atomics are serialised per lane).
;   If the rows of m span more than 2^10 in magnitude, m or a cosine is not finite, or an edge has more than 511
;   triplets, the bin is accumulated with f32 LDS atomics instead.
""".strip().split("\n"):
    e(_l)
for _k in os.environ.get("LIST", "AB"):
    if _k == "A":
        e(f"; @launch kernel={KA} grid=({NCH},1,1) block=(1024,1,1) lds={A_LDS}")
    elif _k == "e":
        e(f"; @launch kernel=empty_kernel grid=(1,1,1) block=(64,1,1) lds=0")
    elif _k == "E":
        e(f"; @launch kernel=empty_kernel grid=(250,1,1) block=(1024,1,1) lds=131072")
    else:
        e(f"; @launch kernel={KB} grid=({NB},1,1) block=(1024,1,1) lds={B_LDS}")
e('.amdgcn_target "amdgcn-amd-amdhsa--gfx950"')
e(".text")
kernel_a()
kernel_b()
if set(os.environ.get("LIST", "")) & set("eE"):
    e(".globl empty_kernel")
    e(".p2align 8")
    e(".type empty_kernel,@function")
    lab("empty_kernel")
    e("  s_endpgm")
e('.section .rodata,"a"')
if set(os.environ.get("LIST", "")) & set("eE"):
    descriptor("empty_kernel", 128, 102)
descriptor(KA, 128, 102)
descriptor(KB, 128, 102)
dst = sys.argv[1] if len(sys.argv) > 1 else "standalone__molecular_angular_gemnet__graph.s"
open(dst, "w").write("\n".join(out) + "\n")
print("wrote", dst, len(out), "lines")
```
